```python
import torch

def _softmax(x, axis=-1):
    return torch.softmax(x, dim=axis)
def _gelu(x):
    return torch.nn.functional.gelu(x, approximate="tanh")
def _silu(x):
    return torch.nn.functional.silu(x)
def _sigmoid(x):
    return torch.sigmoid(x)
def _layernorm(x, axis=-1, eps=1e-5):
    m = x.mean(dim=axis, keepdim=True)
    v = x.var(dim=axis, keepdim=True, unbiased=False)
    return (x - m) / torch.sqrt(v + eps)
def _scatter_add(tgt, idx, src, axis=0):
    return tgt.clone().index_add_(axis, idx, src)
def _segment_sum(src, seg, n):
    out = torch.zeros((n,) + src.shape[1:], dtype=src.dtype)
    return out.index_add_(0, seg, src)
def _pad(x, pw):
    flat = tuple(v for pair in reversed(pw) for v in pair)
    return torch.nn.functional.pad(x, flat)

kernel_name = 'recurrent_scan__gqa_block_cached__dense_activation_squared_relu__decode'

def setup_inputs():

    _w = (lambda a: (lambda t: t.to(torch.bfloat16) if t.is_floating_point() else t)(torch.as_tensor(a)))
    def _A_setup():
        B, Sq, D = 2, 1, 640
        Hq, Hkv, Sk, Dh = 32, 32, 8192, 192
        assert Hq % Hkv == 0, (Hq, Hkv)
        return {
            "x": _w((lambda *s: torch.randn(*s, dtype=torch.bfloat16) * 0.05)(B, Sq, D)),
            "k_cache": _w((lambda *s: torch.randn(*s, dtype=torch.bfloat16) * 1.6)(B, Hkv, Sk, Dh)),
            "v_cache": _w((lambda *s: torch.randn(*s, dtype=torch.bfloat16) * 0.2)(B, Hkv, Sk, Dh)),
            "wq": _w((lambda *s: torch.randn(*s, dtype=torch.bfloat16) * 1.6)(D, Hq * Dh) * (D ** -0.5)),
            "wo": _w((lambda *s: torch.randn(*s, dtype=torch.bfloat16) * 0.2)(Hq * Dh, D) * ((Hq * Dh) ** -0.5)),
        }
    _A_in = _A_setup()

    def _B_setup():
        B, S, D, F = 2, 1, 640, 1536
        return {
            "x": _w((lambda *s: torch.randn(*s, dtype=torch.bfloat16) * 0.05)(B, S, D)),
            "w1": _w((lambda *s: torch.randn(*s, dtype=torch.bfloat16) * 0.1)(D, F)),
            "b1": _w((lambda *s: torch.randn(*s, dtype=torch.bfloat16) * 0.1)(F)),
            "w2": _w((lambda *s: torch.randn(*s, dtype=torch.bfloat16) * 0.1)(F, D)),
            "b2": _w((lambda *s: torch.randn(*s, dtype=torch.bfloat16) * 0.1)(D)),
        }
    _B_in = _B_setup()

    return {
        "A_x": _A_in["x"],
        "A_k_cache": _A_in["k_cache"],
        "A_v_cache": _A_in["v_cache"],
        "A_wq": _A_in["wq"],
        "A_wo": _A_in["wo"],
        "B_x": _B_in["x"],
        "B_w1": _B_in["w1"],
        "B_b1": _B_in["b1"],
        "B_w2": _B_in["w2"],
        "B_b2": _B_in["b2"],
    }

def reference(A_x, A_k_cache, A_v_cache, A_wq, A_wo, B_x, B_w1, B_b1, B_w2, B_b2):
    def _A_ref(x, k_cache, v_cache, wq, wo):
        B, Sq, D = x.shape
        Hq, Dh = 32, 192
        Hkv = k_cache.shape[1]
        rep = Hq // Hkv
        q = (lambda x, *d: x.permute(*d))((x @ wq).reshape(B, Sq, Hq, Dh), 0, 2, 1, 3)
        k = (lambda x, n, axis: torch.repeat_interleave(x, n, dim=axis))(k_cache, rep, axis=1)
        v = (lambda x, n, axis: torch.repeat_interleave(x, n, dim=axis))(v_cache, rep, axis=1)
        scores = torch.einsum("bhqd,bhkd->bhqk", q, k) * (Dh ** -0.5)
        p = _softmax(scores, axis=-1)
        o = torch.einsum("bhqk,bhkd->bhqd", p, v)
        return (lambda x, *d: x.permute(*d))(o, 0, 2, 1, 3).reshape(B, Sq, Hq * Dh) @ wo

    def _B_ref(x, w1, b1, w2, b2):
        h = torch.einsum("bsd,df->bsf", x, w1) + b1
        zero = torch.zeros_like(h)
        r = torch.where(h > zero, h, zero)
        h = r * r
        out = torch.einsum("bsf,fd->bsd", h, w2) + b2
        return out

    x = A_x
    xn = _layernorm(x, axis=-1)
    s = _A_ref(xn, A_k_cache, A_v_cache, A_wq, A_wo)
    g = _silu(_B_ref(xn, B_w1, B_b1, B_w2, B_b2))
    return x + s * g
```

```python
import re
TRANS = ("v_exp_f32", "v_log_f32", "v_rcp_f32", "v_rsq_f32", "v_sqrt_f32", "v_sin_f32", "v_cos_f32")
_reg = re.compile(r"(?<![a-z_0-9])([vs])(?:(\d+)|\[(\d+):(\d+)\])(?![a-z_0-9])")

def regs(tok):
    out = []
    for m in _reg.finditer(tok):
        k = m.group(1)
        if m.group(2) is not None: out.append((k, int(m.group(2))))
        else: out += [(k, i) for i in range(int(m.group(3)), int(m.group(4)) + 1)]
    if re.search(r"\bvcc\b", tok): out.append(("s", "vcc"))
    if re.search(r"\bm0\b", tok): out.append(("s", "m0"))
    return out

class Ins:
    def __init__(self, text):
        self.text = text
        t = text.split(";")[0].strip()
        p = t.split(None, 1)
        self.op = p[0]
        rest = p[1] if len(p) > 1 else ""
        ops = []; d = 0; cur = ""
        for ch in rest:
            if ch == "[": d += 1
            if ch == "]": d -= 1
            if ch == "," and d == 0: ops.append(cur.strip()); cur = ""
            else: cur += ch
        if cur.strip(): ops.append(cur.strip())
        if ops:
            ops[-1] = ops[-1].split(" ")[0] if not ops[-1].startswith("hwreg") else ops[-1]
        self.ops = ops
        op = self.op
        self.valu = op.startswith("v_")
        self.salu = op.startswith("s_")
        self.vmem = op.startswith(("buffer_", "global_"))
        self.ds = op.startswith("ds_")
        self.trans = op.replace("_e32", "").replace("_e64", "") in TRANS
        self.dot = op.startswith("v_dot2")
        self.dpp = "_dpp" in op
        self.sdwa = "_sdwa" in op
        self.perml = op.startswith("v_permlane")
        self.rdlane = op.startswith(("v_readfirstlane", "v_readlane"))
        self.states = 1
        if op == "s_nop": self.states = int(ops[0]) + 1
        W = []; R = []
        if self.valu:
            if self.perml:
                W = regs(ops[0]) + regs(ops[1]); R = list(W)
            else:
                W = regs(ops[0]); k = 1
                if "_co_" in op or op.startswith("v_div_scale") or op.startswith("v_mad_u64"):
                    W += regs(ops[1]); k = 2
                for o in ops[k:]: R += regs(o)
                if op.startswith(("v_dot2c", "v_fmac", "v_writelane")) or self.dpp or self.sdwa: R += regs(ops[0])
        elif self.vmem:
            lds = re.search(r"\blds\b", t) is not None
            if "load" in op and not lds:
                W = regs(ops[0])
                if "d16" in op: R += regs(ops[0])
                for o in ops[1:]: R += regs(o)
            else:
                for o in ops: R += regs(o)
                if "atomic" in op and " sc0" in t: W = regs(ops[0])
                if lds: R.append(("s", "m0"))
        elif self.ds:
            if op.startswith(("ds_read", "ds_bpermute", "ds_swizzle", "ds_permute")):
                W = regs(ops[0])
                if "d16" in op: R += regs(ops[0])
                for o in ops[1:]: R += regs(o)
            else:
                for o in ops: R += regs(o)
        elif self.salu:
            if op.startswith(("s_cmp", "s_cbranch", "s_branch", "s_waitcnt", "s_barrier", "s_nop", "s_sleep", "s_endpgm", "s_setprio")):
                for o in ops: R += regs(o)
            else:
                if ops: W = regs(ops[0])
                for o in ops[1:]: R += regs(o)
        self.W = set(W); self.R = set(R)
        self.widestore = self.vmem and "store" in op and ("x3" in op or "x4" in op)
        self.storedata = set(regs(ops[0])) if self.widestore and op.startswith("buffer") else (set(regs(ops[1])) if self.widestore else set())

def need(p, c):
    n = 0
    pv = {r for r in p.W if r[0] == "v"}; ps = {r for r in p.W if r[0] == "s"}
    if p.valu:
        if pv & c.R:
            if c.dpp or c.perml: n = max(n, 2)
            if c.rdlane: n = max(n, 1)
            if p.trans or p.sdwa: n = max(n, 1)
        if p.dot and (pv & (c.R | c.W)):
            same = c.op == p.op
            if same:
                ab = set()
                if c.op.startswith("v_dot2c"):
                    for o in c.ops[1:3]: ab |= set(regs(o))
                else:
                    for o in c.ops[1:3]: ab |= set(regs(o))
                if pv & ab: n = max(n, 3)
            else:
                n = max(n, 3)
        if ps & c.R:
            if c.valu: n = max(n, 4 if c.rdlane or c.op.startswith("v_writelane") else 2)
            if c.vmem: n = max(n, 5)
            if c.salu: n = max(n, 1)
    if p.salu and ("s", "m0") in p.W and ("s", "m0") in c.R: n = max(n, 1)
    if p.widestore and (p.storedata & c.W): n = max(n, 2)
    return n

class Em:
    def __init__(self):
        self.L = []; self.hist = []
        self.vmq = 0
        self.vmdone = 0
        self.nops = 0
    def raw(self, s): self.L.append(s)
    def label(self, name):
        self.L.append(name + ":")
    def __call__(self, text):
        for t in text.split("\n"):
            t = t.strip()
            if not t or t.startswith(";"):
                if t: self.L.append("    " + t)
                continue
            c = Ins(t)
            dist = 0; pad = 0
            for p in reversed(self.hist[-8:]):
                nd = need(p, c)
                if nd - dist > pad: pad = nd - dist
                dist += p.states
                if dist >= 6: break
            if pad > 0:
                nop = Ins(f"s_nop {pad-1}"); self.L.append("    " + nop.text); self.hist.append(nop); self.nops += 1
            self.L.append("    " + t); self.hist.append(c)
            if c.vmem: self.vmq += 1
        return self.vmq - 1
    def vm(self, text):
        self(text); return self.vmq - 1
    def wait_vm(self, idx, extra=""):
        if idx < self.vmdone:
            if extra: self("s_waitcnt " + extra)
            return
        n = self.vmq - 1 - idx
        assert n <= 63
        self(f"s_waitcnt vmcnt({n}) {extra}".strip())
        self.vmdone = idx + 1
    def pace(self, maxout):
        idx = self.vmq - 1 - maxout
        if idx >= self.vmdone: self.wait_vm(idx)
    def landed(self, idx): return idx < self.vmdone
    def text(self): return "\n".join(self.L) + "\n"
```

```python
import sys, struct
from em import Em
KN = "recurrent_scan__gqa_block_cached__dense_activation_squared_relu__decode"
R = 8192 * 384
def f32(x): return "0x%08x" % struct.unpack("<I", struct.pack("<f", x))[0]
LOG2E = 1.4426950408889634
XN, QP, QB, MX, LW, HP, OP, YP = 0, 2560, 8704, 11776, 11808, 11840, 12288, 18560
LDS_A = YP + 8 * 2560
Y_OFF, ML_OFF, G_OFF, WS_SIZE = 0, 0xA0000, 0x100000, 0x300000
OOB = 0x40000000
DPPF = "row_mask:0xf bank_mask:0xf"

HEADER = open("cdna_kernels/" + KN + ".s.ref").read().split("; Override launch")[0] if True else ""

def allred8(e, op, rs):
    for m in ("quad_perm:[1,0,3,2]", "quad_perm:[2,3,0,1]", "row_half_mirror"):
        for r in rs: e(f"{op}_dpp v{r}, v{r}, v{r} {m} {DPPF}")
def allred_rows(e, op, r, t):
    e(f"v_mov_b32 v{t}, v{r}"); e(f"v_permlane16_swap_b32 v{r}, v{t}"); e(f"{op} v{r}, v{r}, v{t}")
    e(f"v_mov_b32 v{t}, v{r}"); e(f"v_permlane32_swap_b32 v{r}, v{t}"); e(f"{op} v{r}, v{r}, v{t}")
def swapred(e, kind, pairs):
    for a, b in pairs: e(f"v_permlane{kind}_swap_b32 v{a}, v{b}")
    for a, b in pairs: e(f"v_add_f32 v{a}, v{a}, v{b}")
def srd(e, d, lo, hi, size, addlo=None):
    if addlo is None:
        e(f"s_mov_b32 s{d}, s{lo}"); e(f"s_mov_b32 s{d+1}, s{hi}")
    else:
        e(f"s_add_u32 s{d}, s{lo}, {addlo}"); e(f"s_addc_u32 s{d+1}, s{hi}, 0")
    e(f"s_mov_b32 s{d+2}, {size}"); e(f"s_mov_b32 s{d+3}, 0x20000")

def kernel_a(P):
    T, D, qpat, wo_start, wo_every = P["T"], P["D"], P["qpat"], P["wo_start"], P["wo_every"]
    polw, polo = P["polw"], P["polo"]
    stamps = P.get("stamps", False)
    e = Em()
    ACC, Q, SC, BUF0, NBUF = 16, 40, 52, 84, 14
    SK, SV, SWQ, SWO, SX, SW1, SW2, SWS = 44, 48, 52, 56, 60, 64, 68, 76
    def stamp(k):
        if stamps: e(f"s_memrealtime s[{84+2*k}:{85+2*k}]"); e("s_waitcnt lgkmcnt(0)")
    e("s_cmp_ge_u32 s2, 256"); e("s_cbranch_scc1 LA_done")
    e("s_load_dwordx16 s[16:31], s[0:1], 0")
    e("s_load_dwordx8 s[32:39], s[0:1], 64")
    e("s_load_dwordx2 s[40:41], s[0:1], 96")
    if stamps: e("s_memrealtime s[84:85]")
    e("v_lshrrev_b32 v9, 6, v0"); e("v_and_b32 v1, 63, v0"); e("v_readfirstlane_b32 s3, v9")
    e("s_and_b32 s80, s2, 7"); e("s_lshr_b32 s81, s2, 3")
    e("s_lshl_b32 s4, s80, 2"); e("s_lshr_b32 s82, s81, 3"); e("s_add_u32 s4, s4, s82")
    e("s_bfe_u32 s5, s81, 0x10002")
    e("s_and_b32 s6, s81, 3")
    e("s_lshl_b32 s7, s80, 5"); e("s_add_u32 s7, s7, s81")
    e("s_lshl_b32 s8, s5, 5"); e("s_add_u32 s8, s8, s4")
    e(f"s_mul_i32 s82, s8, {R}")
    e("s_lshl_b32 s8, s8, 2"); e("s_add_u32 s8, s8, s6")
    e("v_lshrrev_b32 v9, 3, v1"); e("v_and_b32 v10, 7, v1"); e("v_lshlrev_b32 v10, 4, v10")
    e("v_mul_u32_u24 v2, 384, v9"); e("v_add_u32 v2, v2, v10")
    e("v_mul_u32_u24 v3, 12288, v9"); e("v_add_u32 v3, v3, v10")
    e("s_lshl_b32 s9, s6, 3"); e("s_add_u32 s9, s9, s3"); e(f"s_mul_i32 s9, s9, {T*384}")
    e("s_mul_i32 s11, s3, 98304"); e("s_mul_i32 s12, s3, 30720")
    e("s_and_b32 s83, s3, 1"); e("s_mul_i32 s83, s83, 1280")
    e("v_mul_u32_u24 v11, 20, v1"); e("v_add_u32 v11, s83, v11")
    e("s_mul_i32 s80, s4, 384"); e("s_mul_i32 s81, s4, 245760")
    e("s_waitcnt lgkmcnt(0)")
    srd(e, SX, 16, 17, 2560)
    x0 = e.vm(f"buffer_load_dwordx4 v[12:15], v11, s[{SX}:{SX+3}], 0 offen")
    x1 = e.vm(f"buffer_load_dword v10, v11, s[{SX}:{SX+3}], 0 offen offset:16")
    srd(e, SK, 18, 19, R, "s82")
    srd(e, SWQ, 22, 23, 0, "s80"); e(f"s_sub_u32 s{SWQ+2}, {640*12288}, s80")
    late_setup_done = [False]
    def late_setup():
        srd(e, SV, 20, 21, R, "s82")
        srd(e, SWO, 24, 25, 245760, "s81")
        e("s_mul_i32 s80, s7, 12"); e("s_mul_i32 s81, s7, 7680")
        srd(e, SW1, 28, 29, 0, "s80"); e(f"s_sub_u32 s{SW1+2}, {640*3072}, s80")
        srd(e, SW2, 32, 33, 7680, "s81")
        srd(e, SWS, 40, 41, WS_SIZE)
        e("s_add_u32 s30, s30, s80"); e("s_addc_u32 s31, s31, 0")
        e("s_load_dwordx2 s[72:73], s[30:31], 0"); e("s_load_dword s74, s[30:31], 8")
        e("s_mov_b32 s13, 0xffff0000"); e(f"s_mov_b32 s14, {f32(192 ** -0.5)}"); e(f"s_mov_b32 s15, {f32(LOG2E)}")
        e("v_lshrrev_b32 v4, 4, v1"); e("v_mul_u32_u24 v4, 1280, v4"); e("v_and_b32 v9, 15, v1")
        e("v_lshl_add_u32 v4, v9, 4, v4")
        e("v_cmp_gt_u32 vcc, 8, v9")
        e("v_mov_b32 v5, 0x01000504"); e("v_mov_b32 v6, 0x03020706")
        e("v_mov_b32 v7, 0x05040100"); e("v_mov_b32 v8, 0x07060302")
        e("v_cndmask_b32 v5, v5, v7, vcc"); e("v_cndmask_b32 v6, v6, v8, vcc")
        e("v_mov_b32 v7, 0xff800000")
        e("v_mov_b32 v8, 0")
        for r in range(ACC, ACC + 24): e(f"v_mov_b32 v{r}, 0")
        e("s_waitcnt lgkmcnt(0)")

    items = []
    kn = 0; wn = 0
    i = 0
    while wn < 10:
        c = qpat[i % len(qpat)]; i += 1
        if c == "W": items.append(("W", wn)); wn += 1
        else: items.append(("K", kn)); kn += 1
    rest = [("K", t) for t in range(kn, 32)] + [("V", t) for t in range(32)]
    on = 0
    for it in rest:
        pos = it[1] + (32 if it[0] == "V" else 0)
        items.append(it)
        if pos == P["f1_at"]: items.append(("F", 0))
        if pos >= wo_start and (pos - wo_start) % wo_every == 0 and on < 15:
            items.append(("O", on)); on += 1
    assert on == 15, on
    pool = list(range(NBUF))
    wpool = [SC, SC + 12]
    def alloc(kind):
        if kind == "W" and wpool: return wpool.pop(0)
        assert pool, "out of buffers"
        pool.sort(); return BUF0 + 12 * pool.pop(0)
    def free(r):
        if r in (SC, SC + 12): wpool.append(r)
        else: pool.append((r - BUF0) // 12)
    state = dict(xn=False, q=False, p=False, wdone=0, kdone=0, vdone=0, f1=False)
    inflight = {"W": [], "K": [], "V": [], "O": [], "F": []}
    pend = []
    WO = {}
    LO = {}; HI = {}
    spare = [252]
    cur_so = [None]
    def soff(base, const):
        key = (base, const)
        if cur_so[0] != key:
            e(f"s_add_u32 s10, s{base}, {const}"); cur_so[0] = key
    def kv_off(t):
        gpt = T // 8
        n, gi = divmod(t, gpt)
        o = (n * 32 * T + 8 * gi) * 384
        if gi % 2 == 1: return o - 3072, 3072
        return o, 0
    def issue(it):
        kind, n = it
        if kind in "KV":
            r = alloc(kind); c, im = kv_off(n); soff(9, c)
            s = SK if kind == "K" else SV
            ids = [e.vm(f"buffer_load_dwordx4 v[{r+4*j}:{r+4*j+3}], v2, s[{s}:{s+3}], s10 offen offset:{im+128*j} nt") for j in range(3)]
            inflight[kind].append((n, r, ids))
        elif kind == "W":
            r = alloc(kind); soff(11, n * 786432)
            ids = [e.vm(f"buffer_load_dwordx4 v[{r+4*j}:{r+4*j+3}], v3, s[{SWQ}:{SWQ+3}], s10 offen offset:{128*j} {polw}") for j in range(3)]
            inflight[kind].append((n, r, ids))
        elif kind == "O":
            r = BUF0 + 12 * NBUF - 8 * (n + 1)
            for bi in {(r - BUF0) // 12, (r + 7 - BUF0) // 12}:
                if bi in pool: pool.remove(bi); taken.add(bi)
                assert bi in taken, "wo landing buffer busy"
            i_, j_ = n % 3, n // 3
            ids = []
            for h in range(2):
                soff(12, (i_ + 3 * h) * 5120)
                ids.append(e.vm(f"buffer_load_dwordx4 v[{r+4*h}:{r+4*h+3}], v4, s[{SWO}:{SWO+3}], s10 offen offset:{256*j_} {polo}"))
            inflight[kind].append((n, r, ids))
        elif kind == "F":
            ra = alloc("F"); rb = alloc("F")
            e("s_mul_i32 s80, s3, 80"); e("v_add_u32 v9, s80, v1"); e("v_mul_u32_u24 v10, 3072, v9")
            ids = [e.vm(f"buffer_load_dwordx3 v[{ra}:{ra+2}], v10, s[{SW1}:{SW1+3}], 0 offen {polw}")]
            e(f"v_add_u32 v10, {64*3072}, v10"); e("v_cmp_gt_u32 vcc, 16, v1"); e(f"v_mov_b32 v11, {OOB}")
            e("v_cndmask_b32 v10, v11, v10, vcc")
            ids.append(e.vm(f"buffer_load_dwordx3 v[{ra+4}:{ra+6}], v10, s[{SW1}:{SW1+3}], 0 offen {polw}"))
            e("s_mul_i32 s80, s3, 160"); e("v_add_u32 v10, s80, v4"); e("v_and_b32 v9, 15, v1")
            e("v_cmp_gt_u32 vcc, 10, v9"); e("v_cndmask_b32 v10, v11, v10, vcc")
            ids.append(e.vm(f"buffer_load_dwordx4 v[{rb}:{rb+3}], v10, s[{SW2}:{SW2+3}], 0 offen nt"))
            e("v_add_u32 v10, 5120, v10"); e("v_cmp_gt_u32 vcc, 32, v1"); e("v_cndmask_b32 v10, v11, v10, vcc")
            ids.append(e.vm(f"buffer_load_dwordx4 v[{rb+4}:{rb+7}], v10, s[{SW2}:{SW2+3}], 0 offen nt"))
            inflight[kind].append((n, (ra, rb), ids))
    taken = set()

    def layernorm():
        e.wait_vm(x1)
        t = alloc("K")
        src = [12, 13, 14, 15, 10]
        for k in range(5):
            e(f"v_lshlrev_b32 v{t+2*k}, 16, v{src[k]}"); e(f"v_and_b32 v{t+2*k+1}, s13, v{src[k]}")
        e(f"v_add_f32 v9, v{t}, v{t+1}")
        for k in range(2, 10): e(f"v_add_f32 v9, v9, v{t+k}")
        allred8(e, "v_add_f32", [9]); e(f"v_add_f32_dpp v9, v9, v9 row_mirror {DPPF}"); allred_rows(e, "v_add_f32", 9, 10)
        e(f"v_mul_f32 v9, {f32(1/640)}, v9")
        e("v_mov_b32 v12, 0")
        for k in range(10):
            e(f"v_sub_f32 v13, v{t+k}, v9"); e("v_fmac_f32 v12, v13, v13")
        allred8(e, "v_add_f32", [12]); e(f"v_add_f32_dpp v12, v12, v12 row_mirror {DPPF}"); allred_rows(e, "v_add_f32", 12, 10)
        e(f"v_mul_f32 v12, {f32(1/640)}, v12")
        e("v_cvt_pk_bf16_f32 v9, v9, v12")
        e("v_and_b32 v12, s13, v9"); e("v_lshlrev_b32 v9, 16, v9")
        e(f"v_add_f32 v12, {f32(1e-5)}, v12"); e("v_cvt_pk_bf16_f32 v12, v12, v12"); e("v_and_b32 v12, s13, v12")
        e("v_sqrt_f32 v12, v12"); e("v_cvt_pk_bf16_f32 v12, v12, v12"); e("v_and_b32 v12, s13, v12")
        e("v_rcp_f32 v13, v12")
        for k in range(10): e(f"v_sub_f32 v{t+k}, v{t+k}, v9")
        for k in range(5):
            a, b = t + 2 * k, t + 2 * k + 1
            e(f"v_cvt_pk_bf16_f32 v{b}, v{a}, v{b}"); e(f"v_lshlrev_b32 v{a}, 16, v{b}"); e(f"v_and_b32 v{b}, s13, v{b}")
            for r in (a, b):
                e(f"v_mul_f32 v14, v{r}, v13"); e(f"v_fma_f32 v15, -v14, v12, v{r}"); e(f"v_fma_f32 v{r}, v15, v13, v14")
            e(f"v_cvt_pk_bf16_f32 v{a}, v{a}, v{b}")
            e(f"ds_write_b32 v11, v{a} offset:{XN+4*k}")
        e("s_waitcnt lgkmcnt(0)"); e("s_barrier")
        free(t)
        e("v_lshrrev_b32 v9, 3, v1"); e("s_lshl_b32 s80, s3, 3"); e("v_add_u32 v9, s80, v9"); e("v_lshlrev_b32 v9, 1, v9")
        e("s_mul_i32 s80, s5, 1280"); e("v_add_u32 v9, s80, v9")
        for k in range(10): e(f"ds_read_u16 v{Q+k}, v9 offset:{XN+128*k}")
        e("s_waitcnt lgkmcnt(0)")
        state["xn"] = True

    def pv(r, plo, ids=None):
        e(f"v_lshlrev_b32 v9, 16, v{plo}")
        for j in range(3):
            if ids is not None: e.wait_vm(ids[j])
            for dw in range(4):
                e(f"v_dot2c_f32_bf16 v{ACC+8*j+2*dw}, v{r+4*j+dw}, v{plo}")
                e(f"v_dot2c_f32_bf16 v{ACC+8*j+2*dw+1}, v{r+4*j+dw}, v9")

    def acc_reduce_write(base, stride, addr):
        swapred(e, 32, [(ACC + 8 * j + x, ACC + 8 * j + x + 4) for j in range(3) for x in range(4)])
        swapred(e, 16, [(ACC + 8 * j + x, ACC + 8 * j + x + 2) for j in range(3) for x in range(2)])
        for j in range(3):
            a = ACC + 8 * j
            e(f"v_add_f32_dpp v{a+2}, v{a}, v{a} row_ror:8 row_mask:0xf bank_mask:0x3")
        for j in range(3):
            a = ACC + 8 * j
            e(f"v_add_f32_dpp v{a+2}, v{a+1}, v{a+1} row_ror:8 row_mask:0xf bank_mask:0xc")
        for j in range(3):
            e(f"ds_write_b32 v{addr}, v{ACC+8*j+2} offset:{base+256*j}")
    def red_addr(dst, stride):
        e(f"v_and_b32 v{dst}, 7, v1"); e(f"v_lshlrev_b32 v{dst}, 5, v{dst}")
        e("v_bfe_u32 v9, v1, 5, 1"); e(f"v_lshl_add_u32 v{dst}, v9, 4, v{dst}")
        e("v_bfe_u32 v9, v1, 4, 1"); e(f"v_lshl_add_u32 v{dst}, v9, 3, v{dst}")
        e("v_bfe_u32 v9, v1, 3, 1"); e(f"v_lshl_add_u32 v{dst}, v9, 2, v{dst}")
        e(f"s_mul_i32 s80, s3, {stride}"); e(f"v_add_u32 v{dst}, s80, v{dst}")

    def q_final():
        red_addr(10, 768)
        acc_reduce_write(QP, 768, 10)
        e("s_waitcnt lgkmcnt(0)"); e("s_barrier")
        e(f"v_lshlrev_b32 v10, 2, v1"); e(f"v_add_u32 v10, {QP}, v10")
        for j in range(3):
            for w2 in range(4):
                r = ACC + 8 * j + 2 * w2
                e(f"ds_read2st64_b32 v[{r}:{r+1}], v10 offset0:{6*w2+j} offset1:{6*w2+3+j}")
        e("s_mul_i32 s80, s3, 384"); e(f"s_add_u32 s80, s80, {QB}")
        e("v_lshlrev_b32 v10, 1, v1"); e("v_add_u32 v10, s80, v10")
        e("v_and_b32 v11, 7, v1"); e("v_lshlrev_b32 v11, 4, v11"); e("v_add_u32 v11, s80, v11")
        e("s_waitcnt lgkmcnt(0)")
        for k in range(1, 8):
            for j in range(3): e(f"v_add_f32 v{ACC+8*j}, v{ACC+8*j}, v{ACC+8*j+k}")
        for j in range(3):
            e(f"v_cvt_pk_bf16_f32 v{ACC+8*j}, v{ACC+8*j}, v{ACC+8*j}")
            e(f"ds_write_b16 v10, v{ACC+8*j} offset:{128*j}")
        for j in range(3): e(f"ds_read_b128 v[{Q+4*j}:{Q+4*j+3}], v11 offset:{128*j}")
        for r in range(ACC, ACC + 24): e(f"v_mov_b32 v{r}, 0")
        e("s_waitcnt lgkmcnt(0)")
        state["q"] = True
        stamp(1)

    def post_ops(a, b):
        ops = []
        for m in ("quad_perm:[1,0,3,2]", "quad_perm:[2,3,0,1]", "row_half_mirror"):
            for r in (a, b): ops.append(f"v_add_f32_dpp v{r}, v{r}, v{r} {m} {DPPF}")
        ops += [f"v_cvt_pk_bf16_f32 v{b}, v{a}, v{b}", f"v_lshlrev_b32 v{a}, 16, v{b}", f"v_and_b32 v{b}, s13, v{b}",
                f"v_mul_f32 v{a}, s14, v{a}", f"v_mul_f32 v{b}, s14, v{b}",
                f"v_cvt_pk_bf16_f32 v{b}, v{a}, v{b}", f"v_lshlrev_b32 v{a}, 16, v{b}", f"v_and_b32 v{b}, s13, v{b}",
                f"v_max3_f32 v7, v7, v{a}, v{b}"]
        return ops
    def qk_pair(A, B):
        (ta, ra, _), (tb, rb, _) = A, B
        a, b = SC + ta, SC + tb
        e(f"v_mov_b32 v{a}, 0"); e(f"v_mov_b32 v{b}, 0")
        dots = []
        for k in range(12):
            dots.append(f"v_dot2c_f32_bf16 v{a}, v{ra+k}, v{Q+k}"); dots.append(f"v_dot2c_f32_bf16 v{b}, v{rb+k}, v{Q+k}")
        for k, d in enumerate(dots):
            e(d)
            if pend and k >= 1 and (k % 3 != 0): e(pend.pop(0))
        while pend: e(pend.pop(0))
        pend.extend(post_ops(a, b))
        free(ra); free(rb)

    def f1():
        (_, (ra, rb), ids) = inflight["F"][0]
        h = alloc("F")
        e("s_mul_i32 s80, s3, 160"); e("v_lshlrev_b32 v9, 1, v1"); e("v_add_u32 v9, s80, v9")
        e(f"ds_read_u16 v10, v9 offset:{XN}"); e(f"ds_read_u16 v11, v9 offset:{XN+1280}")
        e(f"ds_read_u16 v12, v9 offset:{XN+128}"); e(f"ds_read_u16 v13, v9 offset:{XN+1280+128}")
        for k in range(12): e(f"v_mov_b32 v{h+k}, 0")
        e("s_waitcnt lgkmcnt(0)")
        for half in range(2):
            if half: e("s_mov_b64 exec, 0xffff")
            for b in range(2):
                lo = 10 + 2 * half + b
                e(f"v_lshlrev_b32 v14, 16, v{lo}")
                for dw in range(3):
                    e(f"v_dot2c_f32_bf16 v{h+6*b+2*dw}, v{ra+4*half+dw}, v{lo}")
                    e(f"v_dot2c_f32_bf16 v{h+6*b+2*dw+1}, v{ra+4*half+dw}, v14")
        e("s_mov_b64 exec, -1")
        swapred(e, 32, [(h + k, h + 6 + k) for k in range(6)])
        swapred(e, 16, [(h + k, h + 3 + k) for k in range(3)])
        allred8(e, "v_add_f32", [h, h + 1, h + 2])
        for k in range(3): e(f"v_add_f32_dpp v{h+k}, v{h+k}, v{h+k} row_mirror {DPPF}")
        e("v_lshrrev_b32 v9, 4, v1"); e("v_mul_u32_u24 v9, 12, v9"); e("s_mul_i32 s80, s3, 48"); e("v_add_u32 v9, s80, v9")
        for k in range(3): e(f"ds_write_b32 v9, v{h+k} offset:{HP+4*k}")
        e("s_waitcnt lgkmcnt(0)")
        free(h); free(ra)
        state["f1"] = True

    def f2():
        (_, (ra, rb), ids) = inflight["F"].pop(0)
        o = alloc("F"); o2 = alloc("F")
        accs = [o + k for k in range(8)] + [o2 + k for k in range(8)]
        e("v_and_b32 v9, 7, v1"); e("v_mul_u32_u24 v9, 48, v9"); e("v_lshrrev_b32 v14, 4, v1")
        e("v_lshl_add_u32 v15, v14, 2, v9"); e("v_and_b32 v14, 1, v14"); e("v_lshl_add_u32 v9, v14, 2, v9")
        e(f"ds_read_b32 v10, v15 offset:{HP}"); e(f"ds_read_b32 v11, v15 offset:{HP+24}")
        e(f"ds_read_b32 v12, v9 offset:{HP+16}"); e(f"ds_read_b32 v13, v9 offset:{HP+40}")
        e("v_lshlrev_b32 v14, 4, v14")
        e(f"v_mov_b32 v{o+8}, s72"); e(f"v_mov_b32 v{o+9}, s73"); e("v_cmp_gt_u32 vcc, 32, v1")
        e(f"v_cndmask_b32 v{o+8}, v{o+9}, v{o+8}, vcc")
        e(f"v_lshrrev_b32 v{o+8}, v14, v{o+8}"); e(f"v_lshlrev_b32 v{o+8}, 16, v{o+8}")
        e(f"v_mov_b32 v{o+9}, s74"); e(f"v_lshrrev_b32 v{o+9}, v14, v{o+9}"); e(f"v_lshlrev_b32 v{o+9}, 16, v{o+9}")
        for r in accs: e(f"v_mov_b32 v{r}, 0")
        e("s_waitcnt lgkmcnt(0)")
        allred8(e, "v_add_f32", [10, 11, 12, 13])
        for a, b, b1 in ((10, 11, o + 8), (12, 13, o + 9)):
            e(f"v_cvt_pk_bf16_f32 v{b}, v{a}, v{b}"); e(f"v_lshlrev_b32 v{a}, 16, v{b}"); e(f"v_and_b32 v{b}, s13, v{b}")
            e(f"v_add_f32 v{a}, v{a}, v{b1}"); e(f"v_add_f32 v{b}, v{b}, v{b1}")
            e(f"v_cvt_pk_bf16_f32 v{b}, v{a}, v{b}"); e(f"v_lshlrev_b32 v{a}, 16, v{b}"); e(f"v_and_b32 v{b}, s13, v{b}")
            e(f"v_max_f32 v{a}, 0, v{a}"); e(f"v_max_f32 v{b}, 0, v{b}")
            e(f"v_mul_f32 v{a}, v{a}, v{a}"); e(f"v_mul_f32 v{b}, v{b}, v{b}")
            e(f"v_cvt_pk_bf16_f32 v{a}, v{a}, 0"); e(f"v_cvt_pk_bf16_f32 v{b}, v{b}, 0")
        e.wait_vm(ids[-1])
        for half in range(2):
            for b in range(2):
                lo = 10 + 2 * half + b
                e(f"v_lshlrev_b32 v14, 16, v{lo}")
                for dw in range(4):
                    e(f"v_dot2c_f32_bf16 v{accs[8*b+2*dw]}, v{rb+4*half+dw}, v{lo}")
                    e(f"v_dot2c_f32_bf16 v{accs[8*b+2*dw+1]}, v{rb+4*half+dw}, v14")
        swapred(e, 32, [(accs[k], accs[8 + k]) for k in range(8)])
        swapred(e, 16, [(accs[k], accs[4 + k]) for k in range(4)])
        e("v_and_b32 v9, 15, v1"); e("v_cmp_gt_u32 vcc, 10, v9"); e("v_lshlrev_b32 v9, 5, v9")
        e("v_bfe_u32 v10, v1, 4, 1"); e("v_lshl_add_u32 v9, v10, 4, v9")
        e("v_lshrrev_b32 v10, 5, v1"); e("v_mul_u32_u24 v10, 2560, v10"); e("v_add_u32 v9, v9, v10")
        e("s_mul_i32 s80, s7, 5120"); e("s_mul_i32 s81, s3, 320"); e("s_add_u32 s80, s80, s81"); e(f"s_add_u32 s80, s80, {G_OFF}")
        e("v_add_u32 v9, s80, v9"); e(f"v_mov_b32 v10, {OOB}"); e("v_cndmask_b32 v9, v10, v9, vcc")
        e.vm(f"buffer_store_dwordx4 v[{o}:{o+3}], v9, s[{SWS}:{SWS+3}], 0 offen {P['pols']}")
        e("s_nop 1")
        free(o); free(o2); free(rb)

    def transition():
        while pend: e(pend.pop(0))
        assert state["f1"]
        e(f"v_max_f32_dpp v7, v7, v7 row_ror:8 {DPPF}"); allred_rows(e, "v_max_f32", 7, 9)
        e("s_lshl_b32 s80, s3, 2"); e("v_mov_b32 v10, s80")
        e(f"ds_write_b32 v10, v7 offset:{MX}")
        e("v_and_b32 v9, 7, v1"); e("v_lshlrev_b32 v9, 2, v9")
        e("s_waitcnt lgkmcnt(0)"); e("s_barrier")
        e(f"ds_read_b32 v7, v9 offset:{MX}"); e("s_waitcnt lgkmcnt(0)")
        allred8(e, "v_max_f32", [7])
        e("v_mul_f32 v9, s15, v7")
        for t0 in range(0, 32, 4):
            for t in range(t0, t0 + 4): e(f"v_fma_f32 v{SC+t}, v{SC+t}, s15, -v9")
            for t in range(t0, t0 + 4): e(f"v_exp_f32 v{SC+t}, v{SC+t}")
            for t in range(t0, t0 + 4): e(f"v_add_f32 v8, v8, v{SC+t}")
            for t in range(t0, t0 + 4): e(f"v_cvt_pk_bf16_f32 v{SC+t}, v{SC+t}, 0")
        e(f"v_add_f32_dpp v8, v8, v8 row_ror:8 {DPPF}"); allred_rows(e, "v_add_f32", 8, 9)
        e(f"ds_write_b32 v10, v8 offset:{LW}")
        for r in range(Q, Q + 12): e(f"v_mov_b32 v{r}, 0")
        state["p"] = True
        stamp(2)

    def operm(n, r):
        i_, j_ = n % 3, n // 3
        for dw in range(4):
            a, b = r + dw, r + 4 + dw
            f = spare.pop()
            e(f"v_perm_b32 v{f}, v{b}, v{a}, v5"); e(f"v_perm_b32 v{b}, v{b}, v{a}, v6")
            LO[(i_, j_, dw)] = f; HI[(i_, j_, dw)] = b
            spare.append(a)

    f2_pending = [False]
    def run_ready(drain=False):
        while inflight["W"] and state["xn"] and e.landed(inflight["W"][0][2][-1]):
            n, r, ids = inflight["W"].pop(0); pv(r, Q + n); free(r); state["wdone"] += 1
            if state["wdone"] == 10:
                q_final(); return
        np_ = 0
        while state["q"] and len(inflight["K"]) >= 2 and e.landed(inflight["K"][1][2][-1]) and np_ < P["maxpairs"]:
            A = inflight["K"].pop(0); B = inflight["K"].pop(0); qk_pair(A, B); state["kdone"] += 2; np_ += 1
        if inflight["F"] and not state["f1"] and e.landed(inflight["F"][0][2][1]): f1()
        while inflight["O"] and e.landed(inflight["O"][0][2][-1]):
            n, r, ids = inflight["O"].pop(0); operm(n, r)
        if state["kdone"] == 32 and not state["p"]:
            transition(); f2_pending[0] = True
        while state["p"] and inflight["V"] and e.landed(inflight["V"][0][2][-1]):
            n, r, ids = inflight["V"].pop(0); pv(r, SC + n); free(r); state["vdone"] += 1
            if n < 28: e(f"v_mov_b32 v{SC+n}, 0")
        if f2_pending[0] and state["vdone"] >= P["f2_after"]:
            f2(); f2_pending[0] = False

    nl = {"K": 3, "V": 3, "W": 3, "O": 2, "F": 4}
    for idx, it in enumerate(items):
        needwait = (e.vmq - e.vmdone - (2 if not state["xn"] else 0)) + nl[it[0]] > D
        if needwait and not state["xn"]:
            late_setup(); layernorm()
        e.pace(D - nl[it[0]])
        issue(it)
        run_ready()
    red_addr(10, 784)
    e("v_and_b32 v11, 7, v1"); e("v_mul_u32_u24 v11, 784, v11"); e("v_bfe_u32 v9, v1, 3, 1"); e("v_mul_u32_u24 v9, 48, v9")
    e("v_add_u32 v11, v11, v9"); e("v_lshrrev_b32 v9, 4, v1"); e("v_lshl_add_u32 v11, v9, 2, v11")
    e("s_mul_i32 s80, s3, 96"); e("v_add_u32 v11, s80, v11")
    e("v_and_b32 v12, 15, v1"); e("v_lshlrev_b32 v12, 5, v12"); e("v_bfe_u32 v9, v1, 5, 1"); e("v_lshl_add_u32 v12, v9, 4, v12")
    e("v_bfe_u32 v9, v1, 4, 1"); e("v_lshl_add_u32 v12, v9, 3, v12"); e("s_mul_i32 s80, s3, 2560"); e("v_add_u32 v12, s80, v12")
    e("s_mul_i32 s80, s3, 320"); e("v_lshlrev_b32 v13, 4, v1"); e("v_add_u32 v13, s80, v13")
    e("s_mul_i32 s81, s8, 2560"); e("v_add_u32 v14, s81, v13")
    assert not inflight["K"] and not inflight["W"] and state["p"] and not f2_pending[0]
    while inflight["V"] or inflight["O"]:
        v = inflight["V"][0] if inflight["V"] else None
        o = inflight["O"][0] if inflight["O"] else None
        if o is not None and (v is None or o[2][0] < v[2][0]):
            inflight["O"].pop(0); e.wait_vm(o[2][-1]); operm(o[0], o[1])
        else:
            inflight["V"].pop(0); pv(v[1], SC + v[0], v[2])
            if v[0] < 28: e(f"v_mov_b32 v{SC+v[0]}, 0")
    stamp(3)
    acc_reduce_write(OP, 784, 10)
    e("s_waitcnt lgkmcnt(0)"); e("s_barrier")
    for k in range(3): e(f"ds_read_b32 v{ACC+k}, v11 offset:{OP+16*k}")
    e("s_waitcnt lgkmcnt(0)")
    allred8(e, "v_add_f32", [ACC, ACC + 1, ACC + 2])
    for k in range(3): e(f"v_mov_b32_dpp v{ACC+4+k}, v{ACC+k} row_ror:8 {DPPF}")
    for k in range(3): e(f"v_cvt_pk_bf16_f32 v{ACC+k}, v{ACC+k}, v{ACC+4+k}")
    Y = Q
    for i_ in range(3):
        for j_ in range(5):
            for dw in range(4):
                e(f"v_dot2c_f32_bf16 v{Y+8*j_+2*dw}, v{LO[(i_,j_,dw)]}, v{ACC+i_}")
                e(f"v_dot2c_f32_bf16 v{Y+8*j_+2*dw+1}, v{HI[(i_,j_,dw)]}, v{ACC+i_}")
    swapred(e, 32, [(Y + 8 * j + x, Y + 8 * j + x + 4) for j in range(5) for x in range(4)])
    swapred(e, 16, [(Y + 8 * j + x, Y + 8 * j + x + 2) for j in range(5) for x in range(2)])
    for j in range(5): e(f"ds_write_b64 v12, v[{Y+8*j}:{Y+8*j+1}] offset:{YP+512*j}")
    e("s_waitcnt lgkmcnt(0)"); e("s_barrier")
    e("s_mov_b64 exec, 0xfffff")
    for w in range(8): e(f"ds_read_b128 v[{BUF0+4*w}:{BUF0+4*w+3}], v13 offset:{YP+2560*w}")
    for w in range(1, 8):
        e(f"s_waitcnt lgkmcnt({7-w})")
        for k in range(4): e(f"v_add_f32 v{BUF0+k}, v{BUF0+k}, v{BUF0+4*w+k}")
    e.vm(f"buffer_store_dwordx4 v[{BUF0}:{BUF0+3}], v14, s[{SWS}:{SWS+3}], 0 offen {P['pols']}")
    e("s_mov_b64 exec, -1")
    e("s_cmp_lg_u32 s3, 7"); e("s_cbranch_scc1 LA_done")
    e("v_and_b32 v9, 7, v1"); e("v_lshlrev_b32 v9, 2, v9"); e(f"ds_read_b32 v9, v9 offset:{LW}")
    e("v_mov_b32 v8, v7"); e("s_lshl_b32 s80, s8, 3"); e(f"s_add_u32 s80, s80, {ML_OFF}"); e("v_mov_b32 v10, s80")
    e("s_waitcnt lgkmcnt(0)")
    allred8(e, "v_add_f32", [9])
    e("s_mov_b64 exec, 1")
    e.vm(f"buffer_store_dwordx2 v[8:9], v10, s[{SWS}:{SWS+3}], 0 offen {P['pols']}")
    if stamps:
        e("s_waitcnt vmcnt(0)")
        stamp(7)
        e("s_add_u32 s40, s40, 0x10000000"); e("s_addc_u32 s41, s41, 0"); e("s_mov_b32 s42, 0x100000"); e("s_mov_b32 s43, 0x20000")
        e("s_getreg_b32 s85, hwreg(HW_REG_XCC_ID)")
        for k in range(92, 98): e(f"s_mov_b32 s{k}, s84")
        for k in range(16): e(f"v_mov_b32 v{16+k}, s{84+k}")
        e("s_lshl_b32 s80, s2, 6"); e("v_mov_b32 v1, s80")
        for k in range(4): e(f"buffer_store_dwordx4 v[{16+4*k}:{19+4*k}], v1, s[40:43], 0 offen offset:{16*k}")
    e.label("LA_done")
    e("s_endpgm")
    return e

def bf16r(e, r):
    e(f"v_cvt_pk_bf16_f32 v{r}, v{r}, v{r}"); e(f"v_and_b32 v{r}, s13, v{r}")

def kernel_b(P):
    e = Em()
    e("s_cmp_ge_u32 s2, 80"); e("s_cbranch_scc1 LB_done")
    e("s_load_dwordx2 s[16:17], s[0:1], 0")
    e("s_load_dwordx4 s[20:23], s[0:1], 72")
    e("s_load_dwordx2 s[40:41], s[0:1], 96")
    e("s_cmp_ge_u32 s2, 40"); e("s_cselect_b32 s5, 1, 0"); e("s_mul_i32 s6, s5, 40"); e("s_sub_u32 s6, s2, s6"); e("s_lshl_b32 s6, s6, 6")
    e("v_lshrrev_b32 v9, 6, v0"); e("v_and_b32 v1, 63, v0"); e("v_readfirstlane_b32 s3, v9")
    e("v_lshrrev_b32 v2, 2, v0"); e("v_and_b32 v3, 3, v0"); e("v_lshlrev_b32 v3, 4, v3")
    e("v_mul_u32_u24 v4, 2560, v2"); e("v_add_u32 v4, v4, v3")
    e(f"s_mul_i32 s7, s5, {128*2560}"); e("s_add_u32 s7, s7, s6")
    e("v_add_u32 v4, s7, v4")
    e("s_lshl_b32 s7, s5, 10"); e(f"s_add_u32 s7, s7, {ML_OFF}"); e("v_lshl_add_u32 v5, v2, 3, s7")
    e("v_mul_u32_u24 v6, 5120, v2"); e("v_add_u32 v6, v6, v3")
    e("s_mul_i32 s7, s5, 2560"); e("s_add_u32 s7, s7, s6"); e(f"s_add_u32 s7, s7, {G_OFF}"); e("v_add_u32 v6, s7, v6")
    e(f"v_add_u32 v7, {128*5120}, v6")
    e("v_and_b32 v8, 7, v1"); e("v_lshlrev_b32 v8, 2, v8"); e("s_lshr_b32 s7, s6, 1"); e("v_add_u32 v8, s7, v8")
    e("s_mul_i32 s7, s5, 1280"); e("v_add_u32 v30, s7, v8")
    e("s_mov_b32 s13, 0xffff0000"); e(f"s_mov_b32 s15, {f32(LOG2E)}")
    e("s_waitcnt lgkmcnt(0)")
    srd(e, 44, 40, 41, WS_SIZE); srd(e, 48, 16, 17, 2560); srd(e, 52, 20, 21, 1280); srd(e, 56, 22, 23, 2560)
    ml = e.vm("buffer_load_dwordx2 v[10:11], v5, s[44:47], 0 offen")
    y = e.vm("buffer_load_dwordx4 v[12:15], v4, s[44:47], 0 offen")
    g0 = e.vm("buffer_load_dwordx4 v[16:19], v6, s[44:47], 0 offen")
    g1 = e.vm("buffer_load_dwordx4 v[20:23], v7, s[44:47], 0 offen")
    xb = e.vm("buffer_load_dword v31, v30, s[48:51], 0 offen")
    bb = e.vm("buffer_load_dword v32, v8, s[52:55], 0 offen")
    e("v_bfe_u32 v9, v1, 5, 1"); e("v_lshl_add_u32 v3, v9, 6, v3"); e("v_bfe_u32 v9, v1, 4, 1"); e("v_lshl_add_u32 v3, v9, 3, v3")
    e("s_lshl_b32 s7, s3, 7"); e("v_add_u32 v3, s7, v3")
    e("v_lshrrev_b32 v9, 3, v1"); e("v_lshlrev_b32 v2, 7, v9"); e("v_and_b32 v9, 7, v1"); e("v_lshl_add_u32 v2, v9, 3, v2")
    e.wait_vm(ml)
    e(f"v_max_f32_dpp v24, v10, v10 row_ror:4 {DPPF}"); e(f"v_max_f32_dpp v24, v24, v24 row_ror:8 {DPPF}")
    e("v_sub_f32 v24, v10, v24"); e("v_mul_f32 v24, s15, v24"); e("v_exp_f32 v24, v24")
    e("v_mul_f32 v25, v24, v11")
    e(f"v_add_f32_dpp v25, v25, v25 row_ror:4 {DPPF}"); e(f"v_add_f32_dpp v25, v25, v25 row_ror:8 {DPPF}")
    e("v_rcp_f32 v25, v25"); e("v_mul_f32 v24, v24, v25")
    e.wait_vm(y)
    for k in range(4): e(f"v_mul_f32 v{12+k}, v{12+k}, v24")
    e.wait_vm(g1)
    for k in range(4): e(f"v_add_f32 v{16+k}, v{16+k}, v{20+k}")
    swapred(e, 32, [(12 + k, 16 + k) for k in range(4)])
    swapred(e, 16, [(12, 14), (13, 15)])
    for m in ("row_ror:4", "row_ror:8"):
        for r in (12, 13): e(f"v_add_f32_dpp v{r}, v{r}, v{r} {m} {DPPF}")
    e("ds_write_b64 v3, v[12:13]")
    e("s_waitcnt lgkmcnt(0)"); e("s_barrier")
    e("s_cmp_lg_u32 s3, 0"); e("s_cbranch_scc1 LB_done")
    e("ds_read_b64 v[12:13], v2"); e("ds_read_b64 v[14:15], v2 offset:64")
    e("s_waitcnt lgkmcnt(0)")
    for r in (12, 13, 14, 15): e(f"v_add_f32_dpp v{r}, v{r}, v{r} row_ror:8 {DPPF}")
    for r in (12, 13, 14, 15): allred_rows(e, "v_add_f32", r, 16 + r - 12)
    e.wait_vm(bb)
    e("v_lshlrev_b32 v20, 16, v32"); e("v_and_b32 v21, s13, v32")
    e("v_lshlrev_b32 v22, 16, v31"); e("v_and_b32 v23, s13, v31")
    for k in range(2):
        s_, g_ = 12 + k, 14 + k
        bf16r(e, s_); bf16r(e, g_)
        e(f"v_add_f32 v{g_}, v{g_}, v{20+k}"); bf16r(e, g_)
        e(f"v_mul_f32 v16, s15, v{g_}"); e("v_exp_f32 v16, -v16"); e("v_add_f32 v16, 1.0, v16"); e("v_rcp_f32 v17, v16")
        e(f"v_mul_f32 v{g_}, v{g_}, v17"); bf16r(e, g_)
        e(f"v_mul_f32 v{s_}, v{s_}, v{g_}"); bf16r(e, s_)
        e(f"v_add_f32 v{s_}, v{s_}, v{22+k}")
    e("v_cvt_pk_bf16_f32 v12, v12, v13")
    e("s_mov_b64 exec, 0xff")
    e("buffer_store_dword v12, v30, s[56:59], 0 offen")
    e.label("LB_done")
    e("s_endpgm")
    return e

def desc(name, vgpr, sgpr):
    return f""".amdhsa_kernel {name}
  .amdhsa_next_free_vgpr {vgpr}
  .amdhsa_next_free_sgpr {sgpr}
  .amdhsa_accum_offset {vgpr}
  .amdhsa_group_segment_fixed_size 0
  .amdhsa_kernarg_size 104
  .amdhsa_user_sgpr_count 2
  .amdhsa_user_sgpr_kernarg_segment_ptr 1
  .amdhsa_system_sgpr_workgroup_id_x 1
  .amdhsa_float_denorm_mode_32 3
.end_amdhsa_kernel
"""

DEF = dict(T=16, D=9, qpat="WK", wo_start=18, wo_every=3, polw="", polo="", pols="", f1_at=20, f2_after=2, maxpairs=3)

def build(**kw):
    P = dict(DEF); P.update(kw)
    a = kernel_a(P); b = kernel_b(P)
    s = HEADER
    s += f"; @launch kernel={KN}_kernel grid=(256,1,1) block=(512,1,1) lds={LDS_A}\n"
    s += f"; @launch kernel=fin_kernel grid=(80,1,1) block=(512,1,1) lds=1024\n"
    s += '.amdgcn_target "amdgcn-amd-amdhsa--gfx950"\n.text\n'
    s += f".globl {KN}_kernel\n.p2align 8\n.type {KN}_kernel,@function\n{KN}_kernel:\n" + a.text()
    s += f".globl fin_kernel\n.p2align 8\n.type fin_kernel,@function\nfin_kernel:\n" + b.text()
    s += '.section .rodata,"a"\n.p2align 6\n' + desc(KN + "_kernel", 256, 102) + ".p2align 6\n" + desc("fin_kernel", 40, 64)
    return s

if __name__ == "__main__":
    out = sys.argv[1]
    kw = {}
    for a in sys.argv[2:]:
        k, v = a.split("=", 1)
        kw[k] = int(v) if v.lstrip("-").isdigit() else v.replace("+", " ")
    open(out, "w").write(build(**kw))
```

```python
import sys, struct
from em import Em
KN = "recurrent_scan__gqa_block_cached__dense_activation_squared_relu__decode"
R = 8192 * 384
def f32(x): return "0x%08x" % struct.unpack("<I", struct.pack("<f", x))[0]
LOG2E = 1.4426950408889634
XN, TP, QB, HB, MX, CNT, FP, GP, SP, OP, YP = 0, 2560, 6656, 7040, 7296, 7360, 7424, 11520, 12032, 12544, 18816
LDS_A = YP + 8 * 2560
EP_OFF, ML_OFF, PX_OFF, G_OFF, Y_OFF, WS_SIZE = 0, 0x1000, 0x10000, 0x30000, 0x50000, 0x100000
OOB = 0x40000000
DPPF = "row_mask:0xf bank_mask:0xf"
SPIN = 200000

HEADER = open("cdna_kernels/" + KN + ".s.ref").read().split("; Override launch")[0]

def allred8(e, op, rs):
    for m in ("quad_perm:[1,0,3,2]", "quad_perm:[2,3,0,1]", "row_half_mirror"):
        for r in rs: e(f"{op}_dpp v{r}, v{r}, v{r} {m} {DPPF}")
def allred_rows(e, op, r, t):
    for k in (16, 32):
        e(f"v_mov_b32 v{t}, v{r}"); e(f"v_permlane{k}_swap_b32 v{r}, v{t}"); e(f"{op} v{r}, v{r}, v{t}")
def swapred(e, kind, pairs):
    for a, b in pairs: e(f"v_permlane{kind}_swap_b32 v{a}, v{b}")
    for a, b in pairs: e(f"v_add_f32 v{a}, v{a}, v{b}")
def srd(e, d, lo, hi, size, addlo=None):
    if addlo is None:
        e(f"s_mov_b32 s{d}, s{lo}"); e(f"s_mov_b32 s{d+1}, s{hi}")
    else:
        e(f"s_add_u32 s{d}, s{lo}, {addlo}"); e(f"s_addc_u32 s{d+1}, s{hi}, 0")
    e(f"s_mov_b32 s{d+2}, {size}"); e(f"s_mov_b32 s{d+3}, 0x20000")
def bf16r(e, r):
    e(f"v_cvt_pk_bf16_f32 v{r}, v{r}, v{r}"); e(f"v_and_b32 v{r}, s13, v{r}")

def kernel(P):
    T, wo_start, wo_every = P["T"], P["wo_start"], P["wo_every"]
    polw, polo, SC1 = P["polw"], P["polo"], P["sc"]
    stamps = P.get("stamps", False)
    abl = P["abl"]
    e = Em(); slow = Em()
    ACC, Q, SC, BUF0, NBUF = 16, 40, 52, 84, 14
    SK, SV, SWQ, SWO, SX, SB1, SW2, SWS = 44, 48, 52, 56, 60, 64, 68, 76
    SB2, SOUT = SWQ, SB1
    TAG, SEL, MSK = 75, 72, 73
    COEF, XV, B2V = 253, 254, 255
    def S(d): return f"s[{d}:{d+3}]"
    smap = dict(kv.split(":") for kv in P["sm"].split(","))
    def stamp(name):
        if stamps and name in smap:
            k = int(smap[name]); e(f"s_memrealtime s[{84+2*k}:{85+2*k}]"); e("s_waitcnt lgkmcnt(0)")
    e("s_cmp_ge_u32 s2, 256"); e("s_cbranch_scc1 LA_done")
    e("s_load_dwordx16 s[16:31], s[0:1], 0")
    e("s_load_dwordx8 s[32:39], s[0:1], 64")
    e("s_load_dwordx2 s[40:41], s[0:1], 96")
    if stamps or P["fixend"]: e("s_memrealtime s[84:85]")
    e("v_lshrrev_b32 v9, 6, v0"); e("v_and_b32 v1, 63, v0"); e("v_readfirstlane_b32 s3, v9")
    e("s_and_b32 s80, s2, 7"); e("s_lshr_b32 s81, s2, 3")
    e("s_lshr_b32 s82, s81, 3"); e("s_lshl2_add_u32 s4, s80, s82")
    e("s_and_b32 s83, s81, 7")
    e("s_cmp_ge_u32 s83, 3"); e("s_cselect_b32 s42, 1, 0"); e("s_mul_i32 s43, s42, 3"); e("s_sub_u32 s43, s83, s43")
    e("s_mul_i32 s100, s4, 3"); e("s_add_u32 s43, s43, s100")
    e("s_mul_i32 s100, s80, 3"); e("s_add_u32 s100, s100, s82")
    e("s_sub_u32 s101, s83, 6")
    e("s_cmp_eq_u32 s82, 3"); e(f"s_cselect_b32 s12, 0, {319*3072+128}")
    e("s_movk_i32 s10, 3072")
    e("s_cmp_lt_u32 s83, 6")
    e("s_cselect_b32 s42, s42, s101"); e("s_cselect_b32 s43, s43, s100"); e("s_cselect_b32 s10, 12288, s10")
    e(f"s_cselect_b32 s{SWQ+2}, {319*12288+128}, s12")
    e("s_mul_i32 s11, s42, 320"); e("s_mul_i32 s42, s11, s10"); e("s_mul_i32 s43, s43, 128")
    e("v_lshrrev_b32 v9, 3, v0"); e("v_and_b32 v10, 7, v1"); e("v_lshlrev_b32 v10, 4, v10")
    e("v_mul_u32_u24 v3, s10, v9"); e("v_add_u32 v3, v3, v10")
    e("s_mul_i32 s12, s3, 1280")
    e("v_mul_u32_u24 v11, 20, v1"); e("v_add_u32 v11, s12, v11")
    e("s_mul_i32 s10, s10, 64")
    e("s_waitcnt lgkmcnt(0)")
    e("s_cselect_b32 s100, s22, s28"); e("s_cselect_b32 s101, s23, s29")
    srd(e, SX, 16, 17, 2560)
    x0 = e.vm(f"buffer_load_dwordx4 v[12:15], v11, {S(SX)}, 0 offen")
    x1 = e.vm(f"buffer_load_dword v8, v11, {S(SX)}, 0 offen offset:16")
    e("s_add_u32 s42, s42, s43")
    e(f"s_add_u32 s{SWQ}, s100, s42"); e(f"s_addc_u32 s{SWQ+1}, s101, 0"); e(f"s_mov_b32 s{SWQ+3}, 0x20000")
    if "w" in abl: e(f"s_mov_b32 s{SWQ+2}, 0")
    wid = []
    for i in range(5):
        if i >= 2: e(f"s_mul_i32 s12, s10, {i}")
        so = "0" if i == 0 else ("s10" if i == 1 else "s12")
        wid.append(e.vm(f"buffer_load_dwordx4 v[{SC+4*i}:{SC+4*i+3}], v3, {S(SWQ)}, {so} offen {polw}"))
    e(f"s_load_dword s{TAG}, s[40:41], {EP_OFF}")
    e("s_bfe_u32 s5, s81, 0x10002"); e("s_and_b32 s6, s81, 3")
    e("s_lshl_b32 s7, s80, 5"); e("s_add_u32 s7, s7, s81")
    e("s_lshl_b32 s8, s5, 5"); e("s_add_u32 s8, s8, s4"); e(f"s_mul_i32 s82, s8, {R}")
    e("s_lshl2_add_u32 s8, s8, s6")
    e("v_lshrrev_b32 v9, 3, v1"); e("v_mul_u32_u24 v2, 384, v9"); e("v_add_u32 v2, v2, v10")
    e("s_lshl3_add_u32 s9, s6, s3"); e(f"s_mul_i32 s9, s9, {T*384}")
    srd(e, SK, 18, 19, R, "s82")

    def late_setup():
        srd(e, SV, 20, 21, R, "s82")
        e("s_sub_u32 s81, 31, s81"); e("s_mul_i32 s82, s81, 26"); e("s_lshr_b32 s82, s82, 8")
        e("s_mul_i32 s83, s82, 10"); e("s_sub_u32 s83, s81, s83")
        e("s_mul_i32 s74, s80, 3"); e("s_add_u32 s74, s74, s82")
        e(f"s_mul_i32 s81, s74, {64*1280}"); e("s_lshl_b32 s100, s83, 7"); e("s_add_u32 s81, s81, s100")
        e("s_mul_i32 s26, s83, 24"); e("s_add_u32 s26, s26, s74"); e("s_lshl_b32 s26, s26, 9"); e(f"s_add_u32 s26, s26, {G_OFF}")
        e("s_lshl2_add_u32 s27, s80, s82"); e("s_lshl_b32 s27, s27, 12"); e(f"s_add_u32 s27, s27, {PX_OFF+6*512}")
        e("s_cmp_lt_u32 s82, 3")
        e("s_cselect_b32 s81, s81, 0"); e(f"s_cselect_b32 s100, {0 if 'w' in abl else 63*1280+128}, 0"); e(f"s_cselect_b32 s26, s26, {OOB}"); e("s_cselect_b32 s74, s74, 99")
        srd(e, SW2, 32, 33, "s100", "s81")
        e("s_mul_i32 s81, s4, 245760"); e("s_mul_i32 s12, s3, 30720")
        srd(e, SWO, 24, 25, 0 if "o" in abl else 245760, "s81")
        srd(e, SB1, 30, 31, 3072)
        srd(e, SWS, 40, 41, 0 if "s" in abl else WS_SIZE)
        e("s_mov_b32 s13, 0xffff0000"); e(f"s_mov_b32 s14, {f32(192 ** -0.5)}"); e(f"s_mov_b32 s15, {f32(LOG2E)}")
        e(f"s_mov_b32 s{SEL}, 0x0c0c0400"); e(f"s_mov_b32 s{MSK}, 0xffffff00")
        e("s_cmp_lt_u32 s2, %d" % (0 if "c" in abl else 80)); e("s_cselect_b32 s100, 1, 0")
        e("s_cmp_ge_u32 s2, 40"); e("s_cselect_b32 s42, 1, 0"); e("s_mul_i32 s43, s42, 40"); e("s_sub_u32 s43, s2, s43"); e("s_lshl_b32 s43, s43, 6")
        e("v_lshrrev_b32 v4, 4, v1"); e("v_mul_u32_u24 v4, 1280, v4"); e("v_and_b32 v9, 15, v1")
        e("v_lshl_add_u32 v4, v9, 4, v4")
        e("v_cmp_gt_u32 vcc, 8, v9")
        e("v_mov_b32 v5, 0x01000504"); e("v_mov_b32 v6, 0x03020706")
        e("v_mov_b32 v7, 0x05040100"); e("v_mov_b32 v9, 0x07060302")
        e("v_cndmask_b32 v5, v5, v7, vcc"); e("v_cndmask_b32 v6, v6, v9, vcc")
        e("v_mov_b32 v7, 0xff800000")
        for r in range(ACC, ACC + 16): e(f"v_mov_b32 v{r}, 0")
        e(f"ds_write_b32 v{ACC}, v{ACC} offset:{CNT}")

    items = []
    on = 0
    for pos in range(64):
        items.append(("K", pos) if pos < 32 else ("V", pos - 32))
        if pos >= wo_start and (pos - wo_start) % wo_every == 0 and on < 15:
            items.append(("O", on)); on += 1
        if pos == 32 + P["m_at"]: items.append(("M", 0))
    assert on == 15, on
    pool = list(range(NBUF))
    def alloc(top=False):
        assert pool, "out of buffers"
        pool.sort(); return BUF0 + 12 * pool.pop(-1 if top else 0)
    def free(r): pool.append((r - BUF0) // 12)
    state = dict(q=False, p=False, kdone=0, vdone=0, f2=0, ex=0, ml=False, fw=False, g=False, m=0)
    inflight = {k: [] for k in "KVOFQMG"}
    stores = []
    pend = []
    LO = {}; HI = {}
    spare = [252]
    cur_so = [None]
    taken = set()
    heavy = []
    pacing = [False]
    def soff(base, const):
        key = (base, const)
        if cur_so[0] != key:
            e(f"s_add_u32 s10, s{base}, {const}"); cur_so[0] = key
    def kv_off(t):
        gpt = T // 8
        n, gi = divmod(t, gpt)
        o = (n * 32 * T + 8 * gi) * 384
        if gi % 2 == 1: return o - 3072, 3072
        return o, 0
    def q_loads(E):
        return [E.vm(f"buffer_load_dwordx4 v[{Q}:{Q+3}], v{Q+6}, {S(SWS)}, 0 offen {SC1}")]
    def m_loads(E):
        E("v_lshrrev_b32 v10, 2, v1"); E("s_lshl_b32 s80, s3, 8"); E("v_lshl_add_u32 v10, v10, 4, s80")
        E("s_cmp_eq_u32 s100, 1"); E(f"s_cselect_b32 s80, {ML_OFF}, {OOB}"); E("s_lshl_b32 s81, s42, 11"); E("s_add_u32 s80, s80, s81"); E("s_xor_b32 s81, s80, 0x800")
        a = E.vm(f"buffer_load_dwordx4 v[{SC}:{SC+3}], v10, {S(SWS)}, s80 offen {SC1}")
        b = E.vm(f"buffer_load_dwordx4 v[{SC+4}:{SC+7}], v10, {S(SWS)}, s81 offen {SC1}")
        return [a, b]
    def hload(t):
        if pacing[0]:
            D = P["DV"] if state["p"] else (P["DK"] if state["q"] else P["DP"])
            if D >= 10: D = D // 10 + (1 if (len(heavy) * (D % 10)) % 10 < D % 10 else 0)
            i = len(heavy) - D
            if i >= 0: e.wait_vm(heavy[i])
        i = e.vm(t); heavy.append(i); return i
    W2R, B1R = SC + 28, SC + 27
    def issue(it):
        kind, n = it
        if kind in "KV":
            stamp("g%d" % (n + (32 if kind == "V" else 0)))
            r = alloc(); c, im = kv_off(n); soff(9, c)
            s = SK if kind == "K" else SV
            ent = [n, r, [], 0]
            inflight[kind].append(ent)
            for j in range(3):
                ent[2].append(hload(f"buffer_load_dwordx4 v[{r+4*j}:{r+4*j+3}], v2, {S(s)}, s10 offen offset:{im+128*j} nt"))
                if pacing[0]: run_ready()
        elif kind == "O":
            r = BUF0 + 12 * NBUF - 8 * (n + 1)
            for bi in {(r - BUF0) // 12, (r + 7 - BUF0) // 12}:
                if bi in pool: pool.remove(bi); taken.add(bi)
                assert bi in taken, "wo landing buffer busy"
            i_, j_ = n % 3, n // 3
            ids = []
            for h in range(2):
                soff(12, (i_ + 3 * h) * 5120)
                ids.append(e.vm(f"buffer_load_dwordx4 v[{r+4*h}:{r+4*h+3}], v4, {S(SWO)}, s10 offen offset:{256*j_} {polo}"))
            inflight[kind].append((n, r, ids))
        elif kind == "F":
            e("v_lshrrev_b32 v9, 3, v0"); e("v_mul_u32_u24 v9, 1280, v9"); e("v_and_b32 v10, 7, v1"); e("v_lshl_add_u32 v9, v10, 4, v9")
            ids = [e.vm(f"buffer_load_dwordx4 v[{W2R}:{W2R+3}], v9, {S(SW2)}, 0 offen {polw}")]
            e("v_and_b32 v9, 15, v1"); e("v_lshlrev_b32 v9, 3, v9"); e("v_bfe_u32 v10, v1, 4, 1"); e(f"v_lshl_add_u32 v{Q+7}, v10, 2, v9")
            e("s_lshl_b32 s80, s74, 7")
            ids.append(e.vm(f"buffer_load_dword v{B1R}, v{Q+7}, {S(SB1)}, s80 offen"))
            inflight[kind].append((n, 0, ids))
            e("v_lshrrev_b32 v9, 2, v0"); e("v_mul_u32_u24 v9, 2560, v9"); e("v_and_b32 v0, 3, v0"); e("v_lshl_add_u32 v0, v0, 4, v9")
        elif kind == "Q":
            e("s_lshl_b32 s80, s4, 12"); e("s_lshl_b32 s81, s5, 8"); e("s_add_u32 s80, s80, s81"); e(f"s_add_u32 s80, s80, {PX_OFF}")
            e("s_lshl_b32 s81, s3, 9"); e("s_cmp_lt_u32 s3, 3"); e("s_cselect_b32 s81, s81, 0"); e("s_add_u32 s80, s80, s81")
            e("s_sub_u32 s81, s3, 3"); e("s_lshl_b32 s82, s81, 8"); e("s_add_u32 s82, s82, s27")
            e("s_cmp_lt_u32 s74, 24"); e("s_cselect_b32 s81, s81, 9"); e("s_movk_i32 s83, 1536")
            e("s_cmp_lt_u32 s81, 2"); e("s_cselect_b32 s80, s82, s80"); e("s_cselect_b32 s83, 512, s83")
            e("v_bfe_u32 v9, v1, 4, 1"); e("v_mul_u32_u24 v9, s83, v9"); e("v_and_b32 v10, 15, v1"); e("v_lshl_add_u32 v9, v10, 4, v9")
            e(f"v_add_u32 v{Q+6}, s80, v9")
            stamp("qissue")
            inflight[kind].append((n, Q, q_loads(e)))
        elif kind == "M":
            assert state["vdone"] >= 8 and state["ex"] >= 8
            inflight[kind].append((n, SC, m_loads(e)))
        elif kind == "G":
            e("v_lshrrev_b32 v10, 2, v1"); e("v_cmp_gt_u32 vcc, 3, v10"); e("v_lshlrev_b32 v10, 9, v10")
            e("v_and_b32 v9, 3, v1"); e("v_lshl_add_u32 v10, v9, 4, v10"); e(f"v_mov_b32 v9, {OOB}"); e("v_cndmask_b32 v10, v9, v10, vcc")
            e("s_cmp_eq_u32 s100, 1"); e(f"s_cselect_b32 s82, 0, {OOB}")
            e("s_lshr_b32 s80, s43, 8"); e("s_mul_i32 s80, s80, 24"); e("s_mul_i32 s81, s3, 3"); e("s_add_u32 s80, s80, s81"); e("s_lshl_b32 s80, s80, 9")
            e("s_lshl_b32 s81, s42, 8"); e("s_add_u32 s80, s80, s81"); e("s_and_b32 s81, s43, 0xc0"); e("s_add_u32 s80, s80, s81")
            e("s_add_u32 s80, s80, s82"); e(f"s_add_u32 s80, s80, {G_OFF}")
            ids = [e.vm(f"buffer_load_dwordx4 v[{SC}:{SC+3}], v10, {S(SWS)}, s80 offen {SC1}")]
            srd(e, SB2, 34, 35, 1280); srd(e, SOUT, 36, 37, 2560)
            e("v_and_b32 v9, 15, v1"); e("v_lshlrev_b32 v9, 1, v9")
            e("s_lshr_b32 s80, s43, 1"); e("s_add_u32 s80, s80, s82"); e("s_mul_i32 s81, s42, 1280"); e("s_add_u32 s81, s81, s80")
            ids.append(e.vm(f"buffer_load_ushort v{B2V}, v9, {S(SB2)}, s80 offen"))
            ids.append(e.vm(f"buffer_load_ushort v{XV}, v9, {S(SX)}, s81 offen"))
            inflight[kind].append((n, SC, ids))
    def issue_next(n=1):
        for _ in range(n): issue(items.pop(0))

    def put_tag(E, r):
        for k in range(4): E(f"v_mov_b32_sdwa v{r+k}, s{TAG} dst_sel:BYTE_0 dst_unused:UNUSED_PRESERVE src0_sel:BYTE_{k}")
    def cmp_tag(E, r, t0, t1):
        E(f"v_perm_b32 v{t0}, v{r+1}, v{r}, s{SEL}"); E(f"v_perm_b32 v{t1}, v{r+3}, v{r+2}, s{SEL}")
        E(f"v_lshl_or_b32 v{t0}, v{t1}, 16, v{t0}"); E(f"v_cmp_ne_u32 vcc, s{TAG}, v{t0}")
    def tagcheck(name, cmp, loadfn, cond_consumer):
        if "s" in abl: return
        cmp(e)
        e(f"s_cbranch_scc1 L{name}_slow"); e.label(f"L{name}_ok"); e("s_nop 0")
        slow.label(f"L{name}_slow")
        if cond_consumer:
            slow("s_cmp_eq_u32 s100, 0"); slow(f"s_cbranch_scc1 L{name}_ok")
        slow(f"s_mov_b32 s101, {SPIN}")
        slow.label(f"L{name}_loop")
        slow("s_nop 4")
        loadfn(slow); slow("s_waitcnt vmcnt(0)")
        cmp(slow)
        slow(f"s_cbranch_scc0 L{name}_ok")
        slow("s_sub_u32 s101, s101, 1"); slow(f"s_cbranch_scc0 L{name}_loop"); slow(f"s_branch L{name}_ok")

    def layernorm():
        stamp("setup")
        e("s_cmp_ge_u32 s3, 2"); e("s_cbranch_scc1 Lln")
        sv = e.vmdone
        e.wait_vm(x1)
        stamp("xland")
        t = Q
        src = [12, 13, 14, 15, 8]
        for k in range(5):
            e(f"v_lshlrev_b32 v{t+2*k}, 16, v{src[k]}"); e(f"v_and_b32 v{t+2*k+1}, s13, v{src[k]}")
        e(f"v_add_f32 v9, v{t}, v{t+1}")
        for k in range(2, 10): e(f"v_add_f32 v9, v9, v{t+k}")
        allred8(e, "v_add_f32", [9]); e(f"v_add_f32_dpp v9, v9, v9 row_mirror {DPPF}"); allred_rows(e, "v_add_f32", 9, 10)
        e(f"v_mul_f32 v9, {f32(1/640)}, v9")
        e("v_mov_b32 v12, 0")
        for k in range(10):
            e(f"v_sub_f32 v13, v{t+k}, v9"); e("v_fmac_f32 v12, v13, v13")
        allred8(e, "v_add_f32", [12]); e(f"v_add_f32_dpp v12, v12, v12 row_mirror {DPPF}"); allred_rows(e, "v_add_f32", 12, 10)
        e(f"v_mul_f32 v12, {f32(1/640)}, v12")
        e("v_cvt_pk_bf16_f32 v9, v9, v12")
        e("v_and_b32 v12, s13, v9"); e("v_lshlrev_b32 v9, 16, v9")
        e(f"v_add_f32 v12, {f32(1e-5)}, v12"); e("v_cvt_pk_bf16_f32 v12, v12, v12"); e("v_and_b32 v12, s13, v12")
        e("v_sqrt_f32 v12, v12"); e("v_cvt_pk_bf16_f32 v12, v12, v12"); e("v_and_b32 v12, s13, v12")
        e("v_rcp_f32 v13, v12")
        for k in range(10): e(f"v_sub_f32 v{t+k}, v{t+k}, v9")
        for k in range(5):
            a, b = t + 2 * k, t + 2 * k + 1
            e(f"v_cvt_pk_bf16_f32 v{b}, v{a}, v{b}"); e(f"v_lshlrev_b32 v{a}, 16, v{b}"); e(f"v_and_b32 v{b}, s13, v{b}")
            for r in (a, b):
                e(f"v_mul_f32 v14, v{r}, v13"); e(f"v_fma_f32 v15, -v14, v12, v{r}"); e(f"v_fma_f32 v{r}, v15, v13, v14")
            e(f"v_cvt_pk_bf16_f32 v{a}, v{a}, v{b}")
            e(f"ds_write_b32 v11, v{a} offset:{XN+4*k}")
        e.label("Lln"); e.vmdone = sv
        stamp("ln")
        e("v_lshrrev_b32 v9, 3, v0"); e("v_add_u32 v9, s11, v9"); e("v_lshlrev_b32 v9, 1, v9")
        e("s_waitcnt lgkmcnt(0)"); e("s_barrier")
        for i in range(5):
            for b in range(2): e(f"ds_read_u16 v{Q+2*i+b}, v9 offset:{XN+1280*b+128*i}")
        e(f"s_and_b32 s80, s{TAG}, 0x7f7f7f7f"); e("s_add_u32 s80, s80, 0x01010101"); e(f"s_and_b32 s{TAG}, s{TAG}, 0x80808080"); e(f"s_xor_b32 s{TAG}, s{TAG}, s80")
        issue_next(P["pk1"])
        stamp("bar0")

    def tile_dots(r, m0, m1):
        for b, m in enumerate((m0, m1)):
            e(f"v_lshlrev_b32 v{9+b}, 16, v{m}")
        for b, m in enumerate((m0, m1)):
            for dw in range(4):
                e(f"v_dot2c_f32_bf16 v{ACC+8*b+2*dw}, v{r+dw}, v{m}")
                e(f"v_dot2c_f32_bf16 v{ACC+8*b+2*dw+1}, v{r+dw}, v{9+b}")
    def tile_reduce(base):
        e("v_and_b32 v11, 7, v1"); e("v_lshlrev_b32 v11, 5, v11"); e("s_lshl_b32 s80, s3, 9"); e("v_add_u32 v11, s80, v11")
        e("v_bfe_u32 v9, v1, 5, 1"); e("v_lshl_add_u32 v11, v9, 8, v11"); e("v_bfe_u32 v9, v1, 3, 2"); e("v_lshl_add_u32 v11, v9, 3, v11")
        swapred(e, 32, [(ACC + x, ACC + 8 + x) for x in range(8)])
        swapred(e, 16, [(ACC + x, ACC + 4 + x) for x in range(4)])
        for x in range(2): e(f"v_add_f32_dpp v{ACC+4+x}, v{ACC+x}, v{ACC+x} row_ror:8 row_mask:0xf bank_mask:0x3")
        for x in range(2): e(f"v_add_f32_dpp v{ACC+4+x}, v{ACC+2+x}, v{ACC+2+x} row_ror:8 row_mask:0xf bank_mask:0xc")
        e(f"ds_write_b64 v11, v[{ACC+4}:{ACC+5}] offset:{base}")
    def tile_publish(base, sreg, tag):
        e("v_and_b32 v10, 31, v1"); e("v_lshlrev_b32 v10, 4, v10"); e("v_bfe_u32 v9, v1, 5, 1"); e("v_lshl_add_u32 v9, v9, 11, v10")
        for w in range(4): e(f"ds_read_b128 v[{ACC+4*w}:{ACC+4*w+3}], v9 offset:{base+512*w}")
        e("s_waitcnt lgkmcnt(0)")
        for st in (8, 4):
            for k in range(st): e(f"v_add_f32 v{ACC+k}, v{ACC+k}, v{ACC+st+k}")
        for k in range(4): e(f"v_mov_b32 v{ACC+4+k}, v{ACC+k}")
        swapred(e, 32, [(ACC + k, ACC + 4 + k) for k in range(4)])
        if tag: put_tag(e, ACC)
        e("s_mov_b64 exec, 0xffffffff")
        stores.append(e.vm(f"buffer_store_dwordx4 v[{ACC}:{ACC+3}], v10, {S(SWS)}, {sreg} offen {SC1}"))
        e("s_mov_b64 exec, -1"); e("s_nop 0")

    def w_phase():
        e("s_waitcnt lgkmcnt(0)")
        for i in range(5):
            e.wait_vm(wid[i]); tile_dots(SC + 4 * i, Q + 2 * i, Q + 2 * i + 1)
        stamp("wdots")
        tile_reduce(TP)
        e("s_lshl_b32 s81, s7, 9"); e(f"s_add_u32 s81, s81, {PX_OFF}"); e(f"s_cmp_eq_u32 s3, {P['pubw']}"); e(f"s_cselect_b32 s81, s81, {OOB}")
        e("v_mov_b32 v8, 0")
        e("s_waitcnt lgkmcnt(0)"); e("s_barrier")
        stamp("bar1")
        tile_publish(TP, "s81", True)
        stamp("qpub")

    def q_final():
        inflight["Q"].pop(0)
        assert e.landed(inflight["F"][0][2][-1])
        stamp("qland")
        def cmp(E):
            cmp_tag(E, Q, 9, 10); E("s_cmp_lg_u64 vcc, 0")
        tagcheck("q", cmp, q_loads, False)
        stamp("qok")
        for k in range(4): e(f"v_and_b32 v{Q+k}, s{MSK}, v{Q+k}")
        swapred(e, 16, [(Q, Q + 2), (Q + 1, Q + 3)])
        a, b = Q, Q + 1
        e(f"v_cvt_pk_bf16_f32 v{b}, v{a}, v{b}")
        e("s_cmp_lt_u32 s3, 3"); e("s_cbranch_scc1 Lqh")
        e(f"v_lshlrev_b32 v{a}, 16, v{b}"); e(f"v_and_b32 v{b}, s13, v{b}")
        e(f"v_lshlrev_b32 v9, 16, v{B1R}"); e(f"v_and_b32 v10, s13, v{B1R}")
        e(f"v_add_f32 v{a}, v{a}, v9"); e(f"v_add_f32 v{b}, v{b}, v10")
        e(f"v_cvt_pk_bf16_f32 v{b}, v{a}, v{b}"); e(f"v_lshlrev_b32 v{a}, 16, v{b}"); e(f"v_and_b32 v{b}, s13, v{b}")
        e(f"v_max_f32 v{a}, 0, v{a}"); e(f"v_max_f32 v{b}, 0, v{b}")
        e(f"v_mul_f32 v{a}, v{a}, v{a}"); e(f"v_mul_f32 v{b}, v{b}, v{b}")
        e(f"v_cvt_pk_bf16_f32 v{b}, v{a}, v{b}")
        e.label("Lqh")
        e("s_lshl_b32 s80, s3, 7"); e(f"v_add_u32 v10, s80, v{Q+7}"); e("v_and_b32 v11, 7, v1"); e("v_lshlrev_b32 v11, 4, v11")
        e("s_cmp_ge_u32 s3, 5"); e("s_cbranch_scc1 Lqw")
        e(f"ds_write_b32 v10, v{b} offset:{QB}")
        e.label("Lqw")
        e("s_waitcnt lgkmcnt(0)"); e("s_barrier")
        for j in range(3): e(f"ds_read_b128 v[{Q+4*j}:{Q+4*j+3}], v11 offset:{QB+128*j}")
        e("s_waitcnt lgkmcnt(0)")
        state["q"] = True
        stamp("q")

    def post_ops(a, b):
        ops = []
        for m in ("quad_perm:[1,0,3,2]", "quad_perm:[2,3,0,1]", "row_half_mirror"):
            for r in (a, b): ops.append(f"v_add_f32_dpp v{r}, v{r}, v{r} {m} {DPPF}")
        ops += [f"v_cvt_pk_bf16_f32 v{b}, v{a}, v{b}", f"v_lshlrev_b32 v{a}, 16, v{b}", f"v_and_b32 v{b}, s13, v{b}",
                f"v_mul_f32 v{a}, s14, v{a}", f"v_mul_f32 v{b}, s14, v{b}",
                f"v_cvt_pk_bf16_f32 v{b}, v{a}, v{b}", f"v_lshlrev_b32 v{a}, 16, v{b}", f"v_and_b32 v{b}, s13, v{b}",
                f"v_max3_f32 v7, v7, v{a}, v{b}"]
        return ops
    def drain_pend(n):
        for _ in range(min(n, len(pend))): e(pend.pop(0))
    def k_part(ent):
        t, r, ids, j = ent
        a = SC + t
        assert t < 27 or state["f2"] >= 1
        if j == 0: e(f"v_mov_b32 v{a}, 0")
        for dw in range(4):
            e(f"v_dot2c_f32_bf16 v{a}, v{r+4*j+dw}, v{Q+4*j+dw}")
            if dw or j: drain_pend(1)
        ent[3] += 1
        if ent[3] == 3:
            free(r); state["kdone"] += 1
            if t % 2 == 1:
                drain_pend(99); pend.extend(post_ops(a - 1, a))
    def v_part(ent):
        t, r, ids, j = ent
        plo = SC + t
        assert state["ex"] > t
        if j == 0: e(f"v_lshlrev_b32 v14, 16, v{plo}")
        for dw in range(4):
            e(f"v_dot2c_f32_bf16 v{ACC+8*j+2*dw}, v{r+4*j+dw}, v{plo}")
            e(f"v_dot2c_f32_bf16 v{ACC+8*j+2*dw+1}, v{r+4*j+dw}, v14")
        ent[3] += 1
        if ent[3] == 3:
            free(r); state["vdone"] += 1

    def f2a():
        inflight["F"].pop(0)
        e("v_lshrrev_b32 v9, 3, v1"); e("s_lshl_b32 s80, s3, 4"); e("v_lshl_add_u32 v9, v9, 1, s80")
        e(f"ds_read_u16 v12, v9 offset:{HB}"); e(f"ds_read_u16 v13, v9 offset:{HB+128}")
        for r in range(ACC, ACC + 16): e(f"v_mov_b32 v{r}, 0")
        e("s_waitcnt lgkmcnt(0)")
        tile_dots(W2R, 12, 13)
        tile_reduce(FP)
        e("s_waitcnt lgkmcnt(0)")
        state["f2"] = 1
        if not P["bar"]:
            e("s_barrier"); state["f2"] = 2
    def f2b():
        e(f"s_cmp_eq_u32 s3, {P['pubw']}"); e(f"s_cselect_b32 s81, s26, {OOB}")
        tile_publish(FP, "s81", False)
        for r in range(ACC + 23, ACC - 1, -1): e(f"v_mov_b32 v{r}, 0")
        e("v_and_b32 v15, 3, v1"); e("v_lshlrev_b32 v15, 7, v15"); e("v_bfe_u32 v9, v1, 5, 1"); e("v_lshl_add_u32 v15, v9, 6, v15")
        e("v_bfe_u32 v9, v1, 4, 1"); e("v_lshl_add_u32 v15, v9, 5, v15"); e("s_lshl_b32 s80, s3, 2"); e("v_add_u32 v15, s80, v15")
        state["f2"] = 3

    def exps(n):
        t0 = state["ex"]; ts = list(range(t0, min(32, t0 + n)))
        for t in ts: e(f"v_fma_f32 v{SC+t}, v{SC+t}, s15, -v3")
        for t in ts: e(f"v_exp_f32 v{SC+t}, v{SC+t}")
        for t in ts: e(f"v_add_f32 v8, v8, v{SC+t}")
        for t in ts: e(f"v_cvt_pk_bf16_f32 v{SC+t}, v{SC+t}, 0")
        state["ex"] += len(ts)

    def transition():
        assert state["f2"] == 3
        drain_pend(99)
        e(f"v_max_f32_dpp v7, v7, v7 row_ror:8 {DPPF}"); allred_rows(e, "v_max_f32", 7, 9)
        e("v_mul_f32 v3, s15, v7")
        exps(P["exn"])
        for r in range(Q, Q + 12): e(f"v_mov_b32 v{r}, 0")
        state["p"] = True
        stamp("trans")

    def ml_publish():
        for s_ in stores: assert e.landed(s_)
        e(f"v_add_f32_dpp v8, v8, v8 row_ror:8 {DPPF}"); allred_rows(e, "v_add_f32", 8, 9)
        e("s_lshl_b32 s80, s3, 3"); e("v_mov_b32 v10, s80"); e("v_mov_b32 v11, 1"); e("v_mov_b32 v12, 0")
        e("v_and_b32 v9, 7, v1"); e("v_lshlrev_b32 v9, 3, v9")
        e("s_mov_b64 exec, 1")
        e(f"ds_write_b32 v10, v7 offset:{MX}"); e(f"ds_write_b32 v10, v8 offset:{MX+4}")
        e(f"ds_add_rtn_u32 v10, v12, v11 offset:{CNT}")
        e("s_mov_b64 exec, -1")
        e(f"ds_read_b64 v[12:13], v9 offset:{MX}")
        e("s_waitcnt lgkmcnt(0)")
        e("v_readfirstlane_b32 s80, v10")
        e("v_mov_b32 v10, v12"); allred8(e, "v_max_f32", [10])
        e("v_sub_f32 v12, v12, v10"); e("v_mul_f32 v12, s15, v12"); e("v_exp_f32 v12, v12"); e("v_mul_f32 v12, v12, v13")
        allred8(e, "v_add_f32", [12])
        e(f"v_mov_b32 v11, s{TAG}"); e(f"v_mov_b32 v13, s{TAG}")
        e("s_lshl_b32 s81, s8, 4"); e(f"s_add_u32 s81, s81, {ML_OFF}"); e("s_cmp_eq_u32 s80, 7"); e(f"s_cselect_b32 s80, s81, {OOB}")
        e("s_mov_b64 exec, 1")
        e.vm(f"buffer_store_dwordx4 v[10:13], off, {S(SWS)}, s80 {SC1}")
        e("s_mov_b64 exec, -1"); e("s_nop 0")
        state["ml"] = True

    def fw_step():
        e("v_and_b32 v9, 7, v1"); e("v_lshlrev_b32 v9, 3, v9"); e("v_mov_b32 v10, 0")
        e(f"s_mov_b32 s101, {SPIN}")
        e.label("Lfw")
        e(f"ds_read_b32 v11, v10 offset:{CNT}"); e(f"ds_read_b32 v12, v9 offset:{MX}")
        e("s_waitcnt lgkmcnt(0)")
        e("v_readfirstlane_b32 s80, v11")
        e("s_cmp_eq_u32 s80, 8"); e("s_cbranch_scc1 Lfw_ok")
        e("s_sub_u32 s101, s101, 1"); e("s_cbranch_scc0 Lfw")
        e.label("Lfw_ok")
        allred8(e, "v_max_f32", [12])
        e("v_sub_f32 v7, v7, v12"); e("v_mul_f32 v7, s15, v7"); e("v_exp_f32 v7, v7")
        state["fw"] = True

    def m_step():
        inflight["M"].pop(0)
        def cmp(E):
            regs = [SC + 1, SC + 3, SC + 5, SC + 7]; pairs = ["s[80:81]", "s[82:83]"]
            E(f"v_cmp_ne_u32 vcc, s{TAG}, v{regs[0]}")
            for k, r in enumerate(regs[1:]):
                E(f"v_cmp_ne_u32 {pairs[k % 2]}, s{TAG}, v{r}"); E(f"s_or_b64 vcc, vcc, {pairs[k % 2]}")
        tagcheck("m", cmp, m_loads, True)
        m, l = SC, SC + 2
        e(f"v_max_f32_dpp v10, v{m}, v{m} row_ror:4 {DPPF}"); e(f"v_max_f32_dpp v10, v10, v10 row_ror:8 {DPPF}")
        e(f"v_sub_f32 v10, v{m}, v10"); e("v_mul_f32 v10, s15, v10"); e("v_exp_f32 v10, v10")
        e(f"v_mul_f32 v11, v10, v{l}")
        e(f"v_add_f32_dpp v11, v11, v11 row_ror:4 {DPPF}"); e(f"v_add_f32_dpp v11, v11, v11 row_ror:8 {DPPF}")
        e("v_rcp_f32 v11, v11"); e(f"v_mul_f32 v{COEF}, v10, v11")
        state["m"] = 1
        if not P["bar"]:
            e("s_barrier"); state["m"] = 2; items.insert(0, ("G", 0))

    def col_reduce(a, base):
        swapred(e, 32, [(a, a + 2), (a + 1, a + 3)])
        swapred(e, 16, [(a, a + 1)])
        e(f"v_add_f32_dpp v{a}, v{a}, v{a} row_ror:8 {DPPF}"); e(f"v_add_f32_dpp v{a}, v{a}, v{a} row_ror:4 {DPPF}")
        e(f"ds_write_b32 v15, v{a} offset:{base}")
    def g_step():
        inflight["G"].pop(0)
        col_reduce(SC, GP)
        for k in range(7, -1, -1): e(f"v_mov_b32 v{SC+k}, 0")
        state["g"] = True

    def operm(n, r):
        i_, j_ = n % 3, n // 3
        for dw in range(4):
            a, b = r + dw, r + 4 + dw
            f = spare.pop()
            e(f"v_perm_b32 v{f}, v{b}, v{a}, v5"); e(f"v_perm_b32 v{b}, v{b}, v{a}, v6")
            LO[(i_, j_, dw)] = f; HI[(i_, j_, dw)] = b
            spare.append(a)

    def after_pv(n):
        if 8 <= n < 28: e(f"v_mov_b32 v{SC+n}, 0")
        if state["ex"] < 32:
            exps(P["exn"])
            if state["ex"] == 32: ml_publish()
        if n >= P["fw_at"] and not state["fw"]: fw_step()
    def run_ready():
        if inflight["Q"] and e.landed(inflight["Q"][0][2][-1]): q_final()
        np_ = 0
        while state["q"] and inflight["K"] and np_ < P["maxparts"]:
            ent = inflight["K"][0]
            if ent[3] >= len(ent[2]) or not e.landed(ent[2][ent[3]]): break
            k_part(ent); np_ += 1
            if ent[3] == 3: inflight["K"].pop(0)
        if state["q"] and state["f2"] == 0 and state["kdone"] >= P["f2_at"]: f2a()
        elif state["f2"] == 2: f2b()
        while inflight["O"] and e.landed(inflight["O"][0][2][-1]):
            n, r, ids = inflight["O"].pop(0); operm(n, r)
        if state["kdone"] == 32 and not state["p"]: transition()
        while state["p"] and inflight["V"]:
            ent = inflight["V"][0]
            if ent[3] >= len(ent[2]) or not e.landed(ent[2][ent[3]]): break
            v_part(ent)
            if ent[3] == 3:
                inflight["V"].pop(0); after_pv(ent[0])
        if inflight["M"] and e.landed(inflight["M"][0][2][-1]): m_step()
        if inflight["G"] and e.landed(inflight["G"][0][2][-1]): g_step()

    late_setup()
    issue_next(P["pk0"])
    layernorm(); w_phase()
    pacing[0] = True
    items.insert(0, ("F", 0))
    items.insert(1 + P["qdelay"], ("Q", 0))
    while items:
        it = items.pop(0)
        issue(it)
        run_ready()
        if it[0] in "KV" and P["bar"] and state["q"]:
            pos = it[1] + (32 if it[0] == "V" else 0)
            if pos % P["bar"] == P["bar"] - 1 and pos < P["barend"]:
                e("s_barrier")
                if state["f2"] == 1: state["f2"] = 2
                if state["m"] == 1: state["m"] = 2; items.insert(0, ("G", 0))
    assert state["fw"] and state["g"] and state["ml"]
    e("v_and_b32 v10, 7, v1"); e("v_lshlrev_b32 v10, 5, v10")
    e("v_bfe_u32 v9, v1, 5, 1"); e("v_lshl_add_u32 v10, v9, 4, v10")
    e("v_bfe_u32 v9, v1, 3, 2"); e("v_lshl_add_u32 v10, v9, 2, v10")
    e("s_mul_i32 s80, s3, 784"); e("v_add_u32 v10, s80, v10")
    e("v_and_b32 v11, 7, v1"); e("v_mul_u32_u24 v11, 784, v11"); e("v_bfe_u32 v9, v1, 3, 1"); e("v_mul_u32_u24 v9, 48, v9")
    e("v_add_u32 v11, v11, v9"); e("v_lshrrev_b32 v9, 4, v1"); e("v_lshl_add_u32 v11, v9, 2, v11")
    e("s_mul_i32 s80, s3, 96"); e("v_add_u32 v11, s80, v11")
    e("v_and_b32 v12, 15, v1"); e("v_lshlrev_b32 v8, 5, v12"); e("v_lshlrev_b32 v3, 1, v12")
    e("v_bfe_u32 v9, v1, 5, 1"); e("v_lshl_add_u32 v12, v9, 4, v8")
    e("v_bfe_u32 v9, v1, 4, 1"); e("v_lshl_add_u32 v12, v9, 3, v12"); e("s_mul_i32 s80, s3, 2560"); e("v_add_u32 v12, s80, v12")
    e("s_mul_i32 s80, s3, 320"); e("v_lshlrev_b32 v13, 4, v1"); e("v_add_u32 v13, s80, v13")
    e("s_mul_i32 s11, s8, 2560"); e(f"s_add_u32 s11, s11, {Y_OFF}")
    e(f"s_mul_i32 s9, s42, {128*2560}"); e("s_add_u32 s9, s9, s43"); e(f"s_add_u32 s9, s9, {Y_OFF}")
    e("s_mul_i32 s12, s42, 1280"); e("s_lshr_b32 s80, s43, 1"); e("s_add_u32 s12, s12, s80")
    e(f"s_mov_b32 s101, {SPIN}")
    assert not inflight["K"] and state["p"]
    while inflight["V"] or inflight["O"]:
        v = inflight["V"][0] if inflight["V"] else None
        o = inflight["O"][0] if inflight["O"] else None
        if o is not None and (v is None or o[2][0] < v[2][v[3]]):
            inflight["O"].pop(0); e.wait_vm(o[2][-1]); operm(o[0], o[1])
        else:
            e.wait_vm(v[2][v[3]]); v_part(v)
            if v[3] == 3:
                inflight["V"].pop(0)
                if v[0] < 28: e(f"v_mov_b32 v{SC+v[0]}, 0")
    stamp("vdone")
    acc = ACC
    swapred(e, 32, [(acc + 8 * j + x, acc + 8 * j + x + 4) for j in range(3) for x in range(4)])
    swapred(e, 16, [(acc + 8 * j + x, acc + 8 * j + x + 2) for j in range(3) for x in range(2)])
    for j in range(3): e(f"v_add_f32_dpp v{acc+8*j+2}, v{acc+8*j}, v{acc+8*j} row_ror:8 row_mask:0xf bank_mask:0x3")
    for j in range(3): e(f"v_add_f32_dpp v{acc+8*j+2}, v{acc+8*j+1}, v{acc+8*j+1} row_ror:8 row_mask:0xf bank_mask:0xc")
    for j in range(3):
        e(f"v_mul_f32 v{acc+8*j+2}, v{acc+8*j+2}, v7"); e(f"ds_write_b32 v10, v{acc+8*j+2} offset:{OP+256*j}")
    e("s_waitcnt lgkmcnt(0)"); e("s_barrier")
    stamp("tb1")
    for k in range(3): e(f"ds_read_b32 v{ACC+k}, v11 offset:{OP+16*k}")
    e("s_waitcnt lgkmcnt(0)")
    allred8(e, "v_add_f32", [ACC, ACC + 1, ACC + 2])
    for k in range(3): e(f"v_mov_b32_dpp v{ACC+4+k}, v{ACC+k} row_ror:8 {DPPF}")
    for k in range(3): e(f"v_cvt_pk_bf16_f32 v{ACC+k}, v{ACC+k}, v{ACC+4+k}")
    Y = Q
    for i_ in range(3):
        for j_ in range(5):
            for dw in range(4):
                e(f"v_dot2c_f32_bf16 v{Y+8*j_+2*dw}, v{LO[(i_,j_,dw)]}, v{ACC+i_}")
                e(f"v_dot2c_f32_bf16 v{Y+8*j_+2*dw+1}, v{HI[(i_,j_,dw)]}, v{ACC+i_}")
    stamp("tdots")
    swapred(e, 32, [(Y + 8 * j + x, Y + 8 * j + x + 4) for j in range(5) for x in range(4)])
    swapred(e, 16, [(Y + 8 * j + x, Y + 8 * j + x + 2) for j in range(5) for x in range(2)])
    for j in range(5): e(f"ds_write_b64 v12, v[{Y+8*j}:{Y+8*j+1}] offset:{YP+512*j}")
    e("s_waitcnt lgkmcnt(0)"); e("s_barrier")
    stamp("tb2")
    e("s_mov_b64 exec, 0xfffff")
    for w in range(8): e(f"ds_read_b128 v[{BUF0+4*w}:{BUF0+4*w+3}], v13 offset:{YP+2560*w}")
    for w in range(1, 8):
        e(f"s_waitcnt lgkmcnt({7-w})")
        for k in range(4): e(f"v_add_f32 v{BUF0+k}, v{BUF0+k}, v{BUF0+4*w+k}")
    put_tag(e, BUF0)
    e.vm(f"buffer_store_dwordx4 v[{BUF0}:{BUF0+3}], v13, {S(SWS)}, s11 offen {SC1}")
    e("s_mov_b64 exec, -1")
    stamp("ystore")
    e("s_cmp_eq_u32 s100, 0"); e("s_cbranch_scc1 LA_fin")
    B = BUF0 + 32
    e.vm(f"buffer_load_dwordx4 v[{B}:{B+3}], v0, {S(SWS)}, s9 offen {SC1}")
    g = ACC
    e(f"ds_read_b128 v[{g}:{g+3}], v8 offset:{GP}"); e(f"ds_read_b128 v[{g+4}:{g+7}], v8 offset:{GP+16}")
    e(f"v_lshlrev_b32 v{B2V}, 16, v{B2V}"); e(f"v_lshlrev_b32 v{XV}, 16, v{XV}")
    e("s_waitcnt lgkmcnt(0)")
    for st in (4, 2, 1):
        for k in range(st): e(f"v_add_f32 v{g+k}, v{g+k}, v{g+st+k}")
    bf16r(e, g); e(f"v_add_f32 v{g}, v{g}, v{B2V}"); bf16r(e, g)
    e(f"v_mul_f32 v9, s15, v{g}"); e("v_exp_f32 v9, -v9"); e("v_add_f32 v9, 1.0, v9"); e("v_rcp_f32 v9, v9")
    e(f"v_mul_f32 v{g}, v{g}, v9"); bf16r(e, g)
    e.label("Lpoll")
    e("s_waitcnt vmcnt(0)")
    cmp_tag(e, B, 9, 10)
    e("s_and_b64 exec, vcc, vcc"); e("s_cbranch_scc0 Lpoll_done")
    e("s_sub_u32 s101, s101, 1"); e("s_cbranch_scc1 Lpoll_done")
    e(f"buffer_load_dwordx4 v[{B}:{B+3}], v0, {S(SWS)}, s9 offen {SC1}")
    e("s_branch Lpoll")
    e.label("Lpoll_done")
    e("s_mov_b64 exec, -1")
    stamp("pdone")
    for k in range(4): e(f"v_and_b32 v{B+k}, s{MSK}, v{B+k}")
    for k in range(4): e(f"v_mul_f32 v{B+k}, v{B+k}, v{COEF}")
    col_reduce(B, SP)
    e("s_waitcnt lgkmcnt(0)"); e("s_barrier")
    e("s_cmp_lg_u32 s3, 0"); e("s_cbranch_scc1 LA_fin")
    e(f"ds_read_b128 v[{B}:{B+3}], v8 offset:{SP}"); e(f"ds_read_b128 v[{B+4}:{B+7}], v8 offset:{SP+16}")
    e("s_waitcnt lgkmcnt(0)")
    for st in (4, 2, 1):
        for k in range(st): e(f"v_add_f32 v{B+k}, v{B+k}, v{B+st+k}")
    bf16r(e, B); e(f"v_mul_f32 v{B}, v{B}, v{g}"); bf16r(e, B); e(f"v_add_f32 v{B}, v{B}, v{XV}")
    e(f"v_cvt_pk_bf16_f32 v{B}, v{B}, v{B}")
    e("s_mov_b64 exec, 0xffff")
    e(f"buffer_store_short v{B}, v3, {S(SOUT)}, s12 offen")
    e("s_cmp_lg_u32 s2, 0"); e("s_cbranch_scc1 LA_fin")
    e(f"v_mov_b32 v9, s{TAG}"); e("s_mov_b64 exec, 1")
    e(f"buffer_store_dword v9, off, {S(SWS)}, 0 offset:{EP_OFF} {SC1}")
    e.label("LA_fin")
    if P["fixend"]:
        e("s_cmp_lg_u32 s2, 0"); e("s_cbranch_scc1 LA_done"); e("s_cmp_lg_u32 s3, 0"); e("s_cbranch_scc1 LA_done")
        e("s_waitcnt vmcnt(0)"); e("s_memrealtime s[86:87]"); e("s_waitcnt lgkmcnt(0)"); e("s_sub_u32 s86, s86, s84")
        e("s_mov_b32 s40, s38"); e("s_mov_b32 s41, s39"); e("s_mov_b32 s42, 256"); e("s_mov_b32 s43, 0x20000")
        e("s_mov_b64 exec, 1"); e("v_mov_b32 v9, s86"); e("buffer_store_dword v9, off, s[40:43], 0")
        e.label("Lfix"); e("s_memrealtime s[86:87]"); e("s_waitcnt lgkmcnt(0)"); e("s_sub_u32 s86, s86, s84")
        e(f"s_cmp_lt_u32 s86, {P['fixend']}"); e("s_cbranch_scc1 Lfix")
    if stamps:
        e(f"s_cmp_lg_u32 s3, {P['sw']}"); e("s_cbranch_scc1 LA_done")
        e("s_mov_b64 exec, 1")
        e("s_waitcnt vmcnt(0)")
        stamp("end")
        e("s_add_u32 s40, s40, 0x10000000"); e("s_addc_u32 s41, s41, 0"); e("s_mov_b32 s42, 0x100000"); e("s_mov_b32 s43, 0x20000")
        e("s_getreg_b32 s85, hwreg(HW_REG_XCC_ID)")
        if "polls" in smap:
            k = 84 + 2 * int(smap["polls"])
            e(f"s_sub_u32 s{k}, {SPIN}, s101"); e(f"s_mul_i32 s{k}, s{k}, 100"); e(f"s_add_u32 s{k}, s{k}, s84")
        for k in range(16): e(f"v_mov_b32 v{16+k}, s{84+k}")
        e("s_lshl_b32 s80, s2, 6"); e("v_mov_b32 v1, s80")
        for k in range(4): e(f"buffer_store_dwordx4 v[{16+4*k}:{19+4*k}], v1, s[40:43], 0 offen offset:{16*k}")
    e.label("LA_done")
    e("s_endpgm")
    return e.text() + slow.text() + "    s_endpgm\n"

def desc(name, vgpr, sgpr):
    return f""".amdhsa_kernel {name}
  .amdhsa_next_free_vgpr {vgpr}
  .amdhsa_next_free_sgpr {sgpr}
  .amdhsa_accum_offset {vgpr}
  .amdhsa_group_segment_fixed_size 0
  .amdhsa_kernarg_size 104
  .amdhsa_user_sgpr_count 2
  .amdhsa_user_sgpr_kernarg_segment_ptr 1
  .amdhsa_system_sgpr_workgroup_id_x 1
  .amdhsa_float_denorm_mode_32 3
.end_amdhsa_kernel
"""

DEF = dict(abl="", sm="q:1,trans:2,vdone:3,qpub:4,ystore:5,polls:6,end:7", sw=0, bar=2, barend=62,
           T=16, DP=6, DK=3, DV=3, wo_start=18, wo_every=3, polw="nt", polo="", sc="sc1", maxparts=6,
           pk0=1, pk1=1, qdelay=1, f2_at=12, m_at=14, fw_at=26, exn=4, pubw=0, fixend=0)

def build(**kw):
    P = dict(DEF); P.update(kw)
    a = kernel(P)
    s = HEADER
    s += f"; @launch grid=(256,1,1) block=(512,1,1) lds={LDS_A}\n"
    s += '.amdgcn_target "amdgcn-amd-amdhsa--gfx950"\n.text\n'
    s += f".globl {KN}_kernel\n.p2align 8\n.type {KN}_kernel,@function\n{KN}_kernel:\n" + a
    s += '.section .rodata,"a"\n.p2align 6\n' + desc(KN + "_kernel", 256, 102)
    return s

if __name__ == "__main__":
    out = sys.argv[1]
    kw = {}
    for a in sys.argv[2:]:
        k, v = a.split("=", 1)
        kw[k] = int(v) if v.lstrip("-").isdigit() else v.replace("+", " ")
    open(out, "w").write(build(**kw))
```

```python
import sys, struct
from em import Em
KN = "recurrent_scan__gqa_block_cached__dense_activation_squared_relu__decode"
R = 8192 * 384
def f32(x): return "0x%08x" % struct.unpack("<I", struct.pack("<f", x))[0]
LOG2E = 1.4426950408889634
XN, TP, QB, HB, MX, CNT, FP, GP, SP, OP, YP = 0, 2560, 6656, 7040, 7296, 7360, 7424, 11520, 12032, 12544, 18944
OST = 800
LDS_A = YP + 8 * 2560
EP_OFF, ML_OFF, PX_OFF, G_OFF, Y_OFF, WS_SIZE = 0, 0x1000, 0x10000, 0x30000, 0x50000, 0x100000
OOB = 0x40000000
DPPF = "row_mask:0xf bank_mask:0xf"
SPIN = 200000

HEADER = open("cdna_kernels/" + KN + ".s.ref").read().split("; Override launch")[0]

def allred8(e, op, rs):
    for m in ("quad_perm:[1,0,3,2]", "quad_perm:[2,3,0,1]", "row_half_mirror"):
        for r in rs: e(f"{op}_dpp v{r}, v{r}, v{r} {m} {DPPF}")
def allred_rows(e, op, r, t):
    for k in (16, 32):
        e(f"v_mov_b32 v{t}, v{r}"); e(f"v_permlane{k}_swap_b32 v{r}, v{t}"); e(f"{op} v{r}, v{r}, v{t}")
def swapred(e, kind, pairs):
    for a, b in pairs: e(f"v_permlane{kind}_swap_b32 v{a}, v{b}")
    for a, b in pairs: e(f"v_add_f32 v{a}, v{a}, v{b}")
def swapred_pk(e, kind, a, b, n):
    for x in range(n): e(f"v_permlane{kind}_swap_b32 v{a+x}, v{b+x}")
    for x in range(0, n, 2): e(f"v_pk_add_f32 v[{a+x}:{a+x+1}], v[{a+x}:{a+x+1}], v[{b+x}:{b+x+1}]")
def srd(e, d, lo, hi, size, addlo=None):
    if addlo is None:
        e(f"s_mov_b32 s{d}, s{lo}"); e(f"s_mov_b32 s{d+1}, s{hi}")
    else:
        e(f"s_add_u32 s{d}, s{lo}, {addlo}"); e(f"s_addc_u32 s{d+1}, s{hi}, 0")
    e(f"s_mov_b32 s{d+2}, {size}"); e(f"s_mov_b32 s{d+3}, 0x20000")
def bf16r(e, r):
    e(f"v_cvt_pk_bf16_f32 v{r}, v{r}, v{r}"); e(f"v_and_b32 v{r}, s13, v{r}")

def kernel(P):
    T, wo_start, wo_every = P["T"], P["wo_start"], P["wo_every"]
    polw, polo, SC1 = P["polw"], P["polo"], P["sc"]
    stamps = P.get("stamps", False)
    abl = P["abl"]
    e = Em(); slow = Em()
    ACC, Q, SC, BUF0, NBUF = 16, 40, 52, 84, 14
    SK, SV, SWQ, SWO, SX, SB1, SW2, SWS = 44, 48, 52, 56, 60, 64, 68, 76
    SB2, SOUT = SWQ, SB1
    TAG, SEL, MSK = 75, 72, 73
    COEF, XV, B2V = 253, 254, 255
    def S(d): return f"s[{d}:{d+3}]"
    smap = dict(kv.split(":") for kv in P["sm"].split(","))
    def stamp(name):
        if stamps and name in smap:
            k = int(smap[name]); e(f"s_memrealtime s[{84+2*k}:{85+2*k}]"); e("s_waitcnt lgkmcnt(0)")
    e("s_cmp_ge_u32 s2, 256"); e("s_cbranch_scc1 LA_done")
    e("s_load_dwordx16 s[16:31], s[0:1], 0")
    e("s_load_dwordx8 s[32:39], s[0:1], 64")
    e("s_load_dwordx2 s[40:41], s[0:1], 96")
    if stamps or P["fixend"]: e("s_memrealtime s[84:85]")
    e("v_lshrrev_b32 v9, 6, v0"); e("v_and_b32 v1, 63, v0"); e("v_readfirstlane_b32 s3, v9")
    e("s_and_b32 s80, s2, 7"); e("s_lshr_b32 s81, s2, 3")
    e("s_lshr_b32 s82, s81, 3"); e("s_lshl2_add_u32 s4, s80, s82")
    e("s_and_b32 s83, s81, 7")
    e("s_cmp_ge_u32 s83, 3"); e("s_cselect_b32 s42, 1, 0"); e("s_mul_i32 s43, s42, 3"); e("s_sub_u32 s43, s83, s43")
    e("s_mul_i32 s100, s4, 3"); e("s_add_u32 s43, s43, s100")
    e("s_mul_i32 s100, s80, 3"); e("s_add_u32 s100, s100, s82")
    e("s_sub_u32 s101, s83, 6")
    e("s_cmp_eq_u32 s82, 3"); e(f"s_cselect_b32 s12, 0, {319*3072+128}")
    e("s_movk_i32 s10, 3072")
    e("s_cmp_lt_u32 s83, 6")
    e("s_cselect_b32 s42, s42, s101"); e("s_cselect_b32 s43, s43, s100"); e("s_cselect_b32 s10, 12288, s10")
    e(f"s_cselect_b32 s{SWQ+2}, {319*12288+128}, s12")
    e("s_mul_i32 s11, s42, 320"); e("s_mul_i32 s42, s11, s10"); e("s_mul_i32 s43, s43, 128")
    e("v_lshrrev_b32 v9, 3, v0"); e("v_and_b32 v10, 7, v1"); e("v_lshlrev_b32 v10, 4, v10")
    e("v_mul_u32_u24 v3, s10, v9"); e("v_add_u32 v3, v3, v10")
    e("s_mul_i32 s12, s3, 1280")
    e("v_mul_u32_u24 v11, 20, v1"); e("v_add_u32 v11, s12, v11")
    e("s_mul_i32 s10, s10, 64")
    e("s_waitcnt lgkmcnt(0)")
    e("s_cselect_b32 s100, s22, s28"); e("s_cselect_b32 s101, s23, s29")
    srd(e, SX, 16, 17, 2560)
    if stamps:
        for k in range(1, 8): e(f"s_mov_b32 s{84+2*k}, s84")
    x0 = e.vm(f"buffer_load_dwordx4 v[12:15], v11, {S(SX)}, 0 offen")
    x1 = e.vm(f"buffer_load_dword v8, v11, {S(SX)}, 0 offen offset:16")
    e("s_add_u32 s42, s42, s43")
    e(f"s_add_u32 s{SWQ}, s100, s42"); e(f"s_addc_u32 s{SWQ+1}, s101, 0"); e(f"s_mov_b32 s{SWQ+3}, 0x20000")
    if "w" in abl: e(f"s_mov_b32 s{SWQ+2}, 0")
    wid = []
    for i in range(5):
        if i >= 2: e(f"s_mul_i32 s12, s10, {i}")
        so = "0" if i == 0 else ("s10" if i == 1 else "s12")
        wid.append(e.vm(f"buffer_load_dwordx4 v[{SC+4*i}:{SC+4*i+3}], v3, {S(SWQ)}, {so} offen {polw}"))
    e(f"s_load_dword s{TAG}, s[40:41], {EP_OFF}")
    e("s_bfe_u32 s5, s81, 0x10002"); e("s_and_b32 s6, s81, 3")
    e("s_lshl_b32 s7, s80, 5"); e("s_add_u32 s7, s7, s81")
    e("s_lshl_b32 s8, s5, 5"); e("s_add_u32 s8, s8, s4"); e(f"s_mul_i32 s82, s8, {R}")
    e("s_lshl2_add_u32 s8, s8, s6")
    e("v_lshrrev_b32 v9, 3, v1"); e("v_mul_u32_u24 v2, 384, v9"); e("v_add_u32 v2, v2, v10")
    e("s_lshl3_add_u32 s9, s6, s3"); e(f"s_mul_i32 s9, s9, {T*384}")
    srd(e, SK, 18, 19, R, "s82")

    def late_setup():
        srd(e, SV, 20, 21, R, "s82")
        e("s_sub_u32 s81, 31, s81"); e("s_mul_i32 s82, s81, 26"); e("s_lshr_b32 s82, s82, 8")
        e("s_mul_i32 s83, s82, 10"); e("s_sub_u32 s83, s81, s83")
        e("s_mul_i32 s74, s80, 3"); e("s_add_u32 s74, s74, s82")
        e(f"s_mul_i32 s81, s74, {64*1280}"); e("s_lshl_b32 s100, s83, 7"); e("s_add_u32 s81, s81, s100")
        e("s_mul_i32 s26, s83, 24"); e("s_add_u32 s26, s26, s74"); e("s_lshl_b32 s26, s26, 9"); e(f"s_add_u32 s26, s26, {G_OFF}")
        e("s_lshl2_add_u32 s27, s80, s82"); e("s_lshl_b32 s27, s27, 12"); e(f"s_add_u32 s27, s27, {PX_OFF+6*512}")
        e("s_cmp_lt_u32 s82, 3")
        e("s_cselect_b32 s81, s81, 0"); e(f"s_cselect_b32 s100, {0 if 'w' in abl else 63*1280+128}, 0"); e(f"s_cselect_b32 s26, s26, {OOB}"); e("s_cselect_b32 s74, s74, 99")
        srd(e, SW2, 32, 33, "s100", "s81")
        e("s_mul_i32 s81, s4, 245760"); e("s_mul_i32 s12, s3, 10240")
        srd(e, SWO, 24, 25, 0 if "o" in abl else 245760, "s81")
        srd(e, SB1, 30, 31, 3072)
        srd(e, SWS, 40, 41, 0 if "s" in abl else WS_SIZE)
        e("s_mov_b32 s13, 0xffff0000"); e(f"s_mov_b32 s14, {f32(192 ** -0.5)}"); e(f"s_mov_b32 s15, {f32(LOG2E)}")
        e(f"s_mov_b32 s{SEL}, 0x0c0c0400"); e(f"s_mov_b32 s{MSK}, 0xffffff00")
        e("s_cmp_lt_u32 s2, %d" % (0 if "c" in abl else 80)); e("s_cselect_b32 s100, 1, 0")
        e("s_cmp_ge_u32 s2, 40"); e("s_cselect_b32 s42, 1, 0"); e("s_mul_i32 s43, s42, 40"); e("s_sub_u32 s43, s2, s43"); e("s_lshl_b32 s43, s43, 6")
        e("v_lshlrev_b32 v4, 4, v1"); e("v_lshlrev_b32 v5, 2, v1")
        e("s_mov_b32 s20, 0x05040100"); e("s_mov_b32 s21, 0x07060302")
        e("v_mov_b32 v7, 0xff800000")
        for r in range(ACC, ACC + 16): e(f"v_mov_b32 v{r}, 0")
        e(f"ds_write_b32 v{ACC}, v{ACC} offset:{CNT}")

    items = []
    on = 0
    W = P["W"]; assert W % 3 == 0
    vl = [(t, j) for t in range(32 - W) for j in range(3)] + [(t, j) for j in range(3) for t in range(32 - W, 32)]
    for pos in range(64):
        items.append(("K", pos) if pos < 32 else ("V", pos - 32))
        if pos >= wo_start and (pos - wo_start) % wo_every == 0 and on < 12:
            items.append(("O", on)); on += 1
        if pos == 32 + P["m_at"]: items.append(("M", 0))
    assert on == 12, on
    pool = list(range(NBUF))
    def alloc(top=False):
        assert pool, "out of buffers"
        pool.sort(); return BUF0 + 12 * pool.pop(-1 if top else 0)
    def free(r): pool.append((r - BUF0) // 12)
    state = dict(vcnt=[0, 0, 0], A=0, Abar=0, B=0, addr=False, q=False, p=False, kdone=0, vdone=0, f2=0, ex=0, ml=False, fw=False, g=False, m=0)
    inflight = {k: [] for k in "KVOFQMG"}
    stores = []
    pend = []
    LO = {}; HI = {}
    spare = [252]
    cur_so = [None]
    taken = set()
    heavy = []
    pacing = [False]
    def soff(base, const):
        key = (base, const)
        if cur_so[0] != key:
            e(f"s_add_u32 s10, s{base}, {const}"); cur_so[0] = key
    def kv_off(t):
        gpt = T // 8
        n, gi = divmod(t, gpt)
        o = (n * 32 * T + 8 * gi) * 384
        if gi % 2 == 1: return o - 3072, 3072
        return o, 0
    def q_loads(E):
        return [E.vm(f"buffer_load_dwordx4 v[{Q}:{Q+3}], v{Q+6}, {S(SWS)}, 0 offen {SC1}")]
    def m_loads(E):
        E("v_lshrrev_b32 v10, 2, v1"); E("s_lshl_b32 s80, s3, 8"); E("v_lshl_add_u32 v10, v10, 4, s80")
        E("s_cmp_eq_u32 s100, 1"); E(f"s_cselect_b32 s80, {ML_OFF}, {OOB}"); E("s_lshl_b32 s81, s42, 11"); E("s_add_u32 s80, s80, s81"); E("s_xor_b32 s81, s80, 0x800")
        a = E.vm(f"buffer_load_dwordx4 v[{SC}:{SC+3}], v10, {S(SWS)}, s80 offen {SC1}")
        b = E.vm(f"buffer_load_dwordx4 v[{SC+4}:{SC+7}], v10, {S(SWS)}, s81 offen {SC1}")
        return [a, b]
    def hload(t):
        if pacing[0]:
            D = P["DV"] if state["p"] else (P["DK"] if state["q"] else P["DP"])
            if len(heavy) >= P["de_at"]: D = P["DE"]
            if D >= 10: D = D // 10 + (1 if (len(heavy) * (D % 10)) % 10 < D % 10 else 0)
            i = len(heavy) - D
            if i >= 0: e.wait_vm(heavy[i])
        i = e.vm(t); heavy.append(i); return i
    W2R, B1R = SC + 28, SC + 27
    def issue(it):
        kind, n = it
        if kind in "KV":
            stamp("g%d" % (n + (32 if kind == "V" else 0)))
            r = alloc()
            s = SK if kind == "K" else SV
            ent = [n, r, [], 0]
            inflight[kind].append(ent)
            for k in range(3):
                t, j = (n, k) if kind == "K" else vl[3 * n + k]
                c, im = kv_off(t); soff(9, c)
                ent[2].append(hload(f"buffer_load_dwordx4 v[{r+4*k}:{r+4*k+3}], v2, {S(s)}, s10 offen offset:{im+128*j} nt"))
                if pacing[0]: run_ready()
        elif kind == "O":
            r = BUF0 + 12 * NBUF - 10 * (n + 1)
            for bi in {(r - BUF0) // 12, (r + 9 - BUF0) // 12}:
                if bi in pool: pool.remove(bi); taken.add(bi)
                assert bi in taken, "wo landing buffer busy"
            j_, p_ = n // 4, n % 4
            soff(12, (64 * j_ + 2 * p_) * 1280)
            ids = []
            for h in range(2):
                ids.append(e.vm(f"buffer_load_dwordx4 v[{r+4*h}:{r+4*h+3}], v4, {S(SWO)}, s10 offen offset:{1280*h} {polo}"))
                ids.append(e.vm(f"buffer_load_dword v{r+8+h}, v5, {S(SWO)}, s10 offen offset:{1280*h+1024} {polo}"))
            inflight[kind].append((n, r, ids))
        elif kind == "F":
            e("v_lshrrev_b32 v9, 3, v0"); e("v_mul_u32_u24 v9, 1280, v9"); e("v_and_b32 v10, 7, v1"); e("v_lshl_add_u32 v9, v10, 4, v9")
            ids = [e.vm(f"buffer_load_dwordx4 v[{W2R}:{W2R+3}], v9, {S(SW2)}, 0 offen {polw}")]
            e("v_and_b32 v9, 15, v1"); e("v_lshlrev_b32 v9, 3, v9"); e("v_bfe_u32 v10, v1, 4, 1"); e(f"v_lshl_add_u32 v{Q+7}, v10, 2, v9")
            e("s_lshl_b32 s80, s74, 7")
            ids.append(e.vm(f"buffer_load_dword v{B1R}, v{Q+7}, {S(SB1)}, s80 offen"))
            inflight[kind].append((n, 0, ids))
            e("v_lshrrev_b32 v9, 2, v0"); e("v_mul_u32_u24 v9, 2560, v9"); e("v_and_b32 v0, 3, v0"); e("v_lshl_add_u32 v0, v0, 4, v9")
        elif kind == "Q":
            e("s_lshl_b32 s80, s4, 12"); e("s_lshl_b32 s81, s5, 8"); e("s_add_u32 s80, s80, s81"); e(f"s_add_u32 s80, s80, {PX_OFF}")
            e("s_lshl_b32 s81, s3, 9"); e("s_cmp_lt_u32 s3, 3"); e("s_cselect_b32 s81, s81, 0"); e("s_add_u32 s80, s80, s81")
            e("s_sub_u32 s81, s3, 3"); e("s_lshl_b32 s82, s81, 8"); e("s_add_u32 s82, s82, s27")
            e("s_cmp_lt_u32 s74, 24"); e("s_cselect_b32 s81, s81, 9"); e("s_movk_i32 s83, 1536")
            e("s_cmp_lt_u32 s81, 2"); e("s_cselect_b32 s80, s82, s80"); e("s_cselect_b32 s83, 512, s83")
            e("v_bfe_u32 v9, v1, 4, 1"); e("v_mul_u32_u24 v9, s83, v9"); e("v_and_b32 v10, 15, v1"); e("v_lshl_add_u32 v9, v10, 4, v9")
            e(f"v_add_u32 v{Q+6}, s80, v9")
            stamp("qissue")
            inflight[kind].append((n, Q, q_loads(e)))
        elif kind == "M":
            assert state["vdone"] >= 8 and state["ex"] >= 8
            inflight[kind].append((n, SC, m_loads(e)))
        elif kind == "G":
            e("v_lshrrev_b32 v10, 2, v1"); e("v_cmp_gt_u32 vcc, 3, v10"); e("v_lshlrev_b32 v10, 9, v10")
            e("v_and_b32 v9, 3, v1"); e("v_lshl_add_u32 v10, v9, 4, v10"); e(f"v_mov_b32 v9, {OOB}"); e("v_cndmask_b32 v10, v9, v10, vcc")
            e("s_cmp_eq_u32 s100, 1"); e(f"s_cselect_b32 s82, 0, {OOB}")
            e("s_lshr_b32 s80, s43, 8"); e("s_mul_i32 s80, s80, 24"); e("s_mul_i32 s81, s3, 3"); e("s_add_u32 s80, s80, s81"); e("s_lshl_b32 s80, s80, 9")
            e("s_lshl_b32 s81, s42, 8"); e("s_add_u32 s80, s80, s81"); e("s_and_b32 s81, s43, 0xc0"); e("s_add_u32 s80, s80, s81")
            e("s_add_u32 s80, s80, s82"); e(f"s_add_u32 s80, s80, {G_OFF}")
            ids = [e.vm(f"buffer_load_dwordx4 v[{SC}:{SC+3}], v10, {S(SWS)}, s80 offen {SC1}")]
            srd(e, SB2, 34, 35, 1280); srd(e, SOUT, 36, 37, 2560)
            e("v_and_b32 v9, 15, v1"); e("v_lshlrev_b32 v9, 1, v9")
            e("s_lshr_b32 s80, s43, 1"); e("s_add_u32 s80, s80, s82"); e("s_mul_i32 s81, s42, 1280"); e("s_add_u32 s81, s81, s80")
            ids.append(e.vm(f"buffer_load_ushort v{B2V}, v9, {S(SB2)}, s80 offen"))
            ids.append(e.vm(f"buffer_load_ushort v{XV}, v9, {S(SX)}, s81 offen"))
            inflight[kind].append((n, SC, ids))
    def issue_next(n=1):
        for _ in range(n): issue(items.pop(0))

    def put_tag(E, r):
        for k in range(4): E(f"v_mov_b32_sdwa v{r+k}, s{TAG} dst_sel:BYTE_0 dst_unused:UNUSED_PRESERVE src0_sel:BYTE_{k}")
    def cmp_tag(E, r, t0, t1):
        E(f"v_perm_b32 v{t0}, v{r+1}, v{r}, s{SEL}"); E(f"v_perm_b32 v{t1}, v{r+3}, v{r+2}, s{SEL}")
        E(f"v_lshl_or_b32 v{t0}, v{t1}, 16, v{t0}"); E(f"v_cmp_ne_u32 vcc, s{TAG}, v{t0}")
    def tagcheck(name, cmp, loadfn, cond_consumer):
        if "s" in abl: return
        cmp(e)
        e(f"s_cbranch_scc1 L{name}_slow"); e.label(f"L{name}_ok"); e("s_nop 0")
        slow.label(f"L{name}_slow")
        if cond_consumer:
            slow("s_cmp_eq_u32 s100, 0"); slow(f"s_cbranch_scc1 L{name}_ok")
        slow(f"s_mov_b32 s101, {SPIN}")
        slow.label(f"L{name}_loop")
        slow("s_nop 4")
        loadfn(slow); slow("s_waitcnt vmcnt(0)")
        cmp(slow)
        slow(f"s_cbranch_scc0 L{name}_ok")
        slow("s_sub_u32 s101, s101, 1"); slow(f"s_cbranch_scc0 L{name}_loop"); slow(f"s_branch L{name}_ok")

    def layernorm():
        stamp("setup")
        e("s_cmp_ge_u32 s3, 2"); e("s_cbranch_scc1 Lln")
        sv = e.vmdone
        e.wait_vm(x1)
        stamp("xland")
        t = Q
        src = [12, 13, 14, 15, 8]
        for k in range(5):
            e(f"v_lshlrev_b32 v{t+2*k}, 16, v{src[k]}"); e(f"v_and_b32 v{t+2*k+1}, s13, v{src[k]}")
        e(f"v_add_f32 v9, v{t}, v{t+1}")
        for k in range(2, 10): e(f"v_add_f32 v9, v9, v{t+k}")
        allred8(e, "v_add_f32", [9]); e(f"v_add_f32_dpp v9, v9, v9 row_mirror {DPPF}"); allred_rows(e, "v_add_f32", 9, 10)
        e(f"v_mul_f32 v9, {f32(1/640)}, v9")
        e("v_mov_b32 v12, 0")
        for k in range(10):
            e(f"v_sub_f32 v13, v{t+k}, v9"); e("v_fmac_f32 v12, v13, v13")
        allred8(e, "v_add_f32", [12]); e(f"v_add_f32_dpp v12, v12, v12 row_mirror {DPPF}"); allred_rows(e, "v_add_f32", 12, 10)
        e(f"v_mul_f32 v12, {f32(1/640)}, v12")
        e("v_cvt_pk_bf16_f32 v9, v9, v12")
        e("v_and_b32 v12, s13, v9"); e("v_lshlrev_b32 v9, 16, v9")
        e(f"v_add_f32 v12, {f32(1e-5)}, v12"); e("v_cvt_pk_bf16_f32 v12, v12, v12"); e("v_and_b32 v12, s13, v12")
        e("v_sqrt_f32 v12, v12"); e("v_cvt_pk_bf16_f32 v12, v12, v12"); e("v_and_b32 v12, s13, v12")
        e("v_rcp_f32 v13, v12")
        for k in range(10): e(f"v_sub_f32 v{t+k}, v{t+k}, v9")
        for k in range(5):
            a, b = t + 2 * k, t + 2 * k + 1
            e(f"v_cvt_pk_bf16_f32 v{b}, v{a}, v{b}"); e(f"v_lshlrev_b32 v{a}, 16, v{b}"); e(f"v_and_b32 v{b}, s13, v{b}")
            for r in (a, b):
                e(f"v_mul_f32 v14, v{r}, v13"); e(f"v_fma_f32 v15, -v14, v12, v{r}"); e(f"v_fma_f32 v{r}, v15, v13, v14")
            e(f"v_cvt_pk_bf16_f32 v{a}, v{a}, v{b}")
            e(f"ds_write_b32 v11, v{a} offset:{XN+4*k}")
        e.label("Lln"); e.vmdone = sv
        stamp("ln")
        e("v_lshrrev_b32 v9, 3, v0"); e("v_add_u32 v9, s11, v9"); e("v_lshlrev_b32 v9, 1, v9")
        e("s_waitcnt lgkmcnt(0)"); e("s_barrier")
        for i in range(5):
            for b in range(2): e(f"ds_read_u16 v{Q+2*i+b}, v9 offset:{XN+1280*b+128*i}")
        e(f"s_and_b32 s80, s{TAG}, 0x7f7f7f7f"); e("s_add_u32 s80, s80, 0x01010101"); e(f"s_and_b32 s{TAG}, s{TAG}, 0x80808080"); e(f"s_xor_b32 s{TAG}, s{TAG}, s80")
        issue_next(P["pk1"])
        stamp("bar0")

    def tile_dots(r, m0, m1):
        for b, m in enumerate((m0, m1)):
            e(f"v_lshlrev_b32 v{9+b}, 16, v{m}")
        for b, m in enumerate((m0, m1)):
            for dw in range(4):
                e(f"v_dot2c_f32_bf16 v{ACC+8*b+2*dw}, v{r+dw}, v{m}")
                e(f"v_dot2c_f32_bf16 v{ACC+8*b+2*dw+1}, v{r+dw}, v{9+b}")
    def tile_reduce(base):
        e("v_and_b32 v11, 7, v1"); e("v_lshlrev_b32 v11, 5, v11"); e("s_lshl_b32 s80, s3, 9"); e("v_add_u32 v11, s80, v11")
        e("v_bfe_u32 v9, v1, 5, 1"); e("v_lshl_add_u32 v11, v9, 8, v11"); e("v_bfe_u32 v9, v1, 3, 2"); e("v_lshl_add_u32 v11, v9, 3, v11")
        swapred(e, 32, [(ACC + x, ACC + 8 + x) for x in range(8)])
        swapred(e, 16, [(ACC + x, ACC + 4 + x) for x in range(4)])
        for x in range(2): e(f"v_add_f32_dpp v{ACC+4+x}, v{ACC+x}, v{ACC+x} row_ror:8 row_mask:0xf bank_mask:0x3")
        for x in range(2): e(f"v_add_f32_dpp v{ACC+4+x}, v{ACC+2+x}, v{ACC+2+x} row_ror:8 row_mask:0xf bank_mask:0xc")
        e(f"ds_write_b64 v11, v[{ACC+4}:{ACC+5}] offset:{base}")
    def tile_publish(base, sreg, tag):
        e("v_and_b32 v10, 31, v1"); e("v_lshlrev_b32 v10, 4, v10"); e("v_bfe_u32 v9, v1, 5, 1"); e("v_lshl_add_u32 v9, v9, 11, v10")
        for w in range(4): e(f"ds_read_b128 v[{ACC+4*w}:{ACC+4*w+3}], v9 offset:{base+512*w}")
        e("s_waitcnt lgkmcnt(0)")
        for st in (8, 4):
            for k in range(st): e(f"v_add_f32 v{ACC+k}, v{ACC+k}, v{ACC+st+k}")
        for k in range(4): e(f"v_mov_b32 v{ACC+4+k}, v{ACC+k}")
        swapred(e, 32, [(ACC + k, ACC + 4 + k) for k in range(4)])
        if tag: put_tag(e, ACC)
        e("s_mov_b64 exec, 0xffffffff")
        stores.append(e.vm(f"buffer_store_dwordx4 v[{ACC}:{ACC+3}], v10, {S(SWS)}, {sreg} offen {SC1}"))
        e("s_mov_b64 exec, -1"); e("s_nop 0")

    def w_phase():
        e("s_waitcnt lgkmcnt(0)")
        for i in range(5):
            e.wait_vm(wid[i]); tile_dots(SC + 4 * i, Q + 2 * i, Q + 2 * i + 1)
        stamp("wdots")
        tile_reduce(TP)
        e("s_lshl_b32 s81, s7, 9"); e(f"s_add_u32 s81, s81, {PX_OFF}"); e(f"s_cmp_eq_u32 s3, {P['pubw']}"); e(f"s_cselect_b32 s81, s81, {OOB}")
        e("v_mov_b32 v8, 0")
        e("s_waitcnt lgkmcnt(0)"); e("s_barrier")
        stamp("bar1")
        tile_publish(TP, "s81", True)
        stamp("qpub")

    def q_final():
        inflight["Q"].pop(0)
        assert e.landed(inflight["F"][0][2][-1])
        stamp("qland")
        def cmp(E):
            cmp_tag(E, Q, 9, 10); E("s_cmp_lg_u64 vcc, 0")
        tagcheck("q", cmp, q_loads, False)
        stamp("qok")
        for k in range(4): e(f"v_and_b32 v{Q+k}, s{MSK}, v{Q+k}")
        swapred(e, 16, [(Q, Q + 2), (Q + 1, Q + 3)])
        a, b = Q, Q + 1
        e(f"v_cvt_pk_bf16_f32 v{b}, v{a}, v{b}")
        e("s_cmp_lt_u32 s3, 3"); e("s_cbranch_scc1 Lqh")
        e(f"v_lshlrev_b32 v{a}, 16, v{b}"); e(f"v_and_b32 v{b}, s13, v{b}")
        e(f"v_lshlrev_b32 v9, 16, v{B1R}"); e(f"v_and_b32 v10, s13, v{B1R}")
        e(f"v_add_f32 v{a}, v{a}, v9"); e(f"v_add_f32 v{b}, v{b}, v10")
        e(f"v_cvt_pk_bf16_f32 v{b}, v{a}, v{b}"); e(f"v_lshlrev_b32 v{a}, 16, v{b}"); e(f"v_and_b32 v{b}, s13, v{b}")
        e(f"v_max_f32 v{a}, 0, v{a}"); e(f"v_max_f32 v{b}, 0, v{b}")
        e(f"v_mul_f32 v{a}, v{a}, v{a}"); e(f"v_mul_f32 v{b}, v{b}, v{b}")
        e(f"v_cvt_pk_bf16_f32 v{b}, v{a}, v{b}")
        e.label("Lqh")
        e("s_lshl_b32 s80, s3, 7"); e(f"v_add_u32 v10, s80, v{Q+7}"); e("v_and_b32 v11, 7, v1"); e("v_lshlrev_b32 v11, 4, v11")
        e("s_cmp_ge_u32 s3, 5"); e("s_cbranch_scc1 Lqw")
        e(f"ds_write_b32 v10, v{b} offset:{QB}")
        e.label("Lqw")
        e("s_waitcnt lgkmcnt(0)"); e("s_barrier")
        for j in range(3): e(f"ds_read_b128 v[{Q+4*j}:{Q+4*j+3}], v11 offset:{QB+128*j}")
        e("s_waitcnt lgkmcnt(0)")
        state["q"] = True
        stamp("q")

    def post_ops(a, b):
        ops = []
        for m in ("quad_perm:[1,0,3,2]", "quad_perm:[2,3,0,1]", "row_half_mirror"):
            for r in (a, b): ops.append(f"v_add_f32_dpp v{r}, v{r}, v{r} {m} {DPPF}")
        ops += [f"v_cvt_pk_bf16_f32 v{b}, v{a}, v{b}", f"v_lshlrev_b32 v{a}, 16, v{b}", f"v_and_b32 v{b}, s13, v{b}",
                f"v_mul_f32 v{a}, s14, v{a}", f"v_mul_f32 v{b}, s14, v{b}",
                f"v_cvt_pk_bf16_f32 v{b}, v{a}, v{b}", f"v_lshlrev_b32 v{a}, 16, v{b}", f"v_and_b32 v{b}, s13, v{b}",
                f"v_max3_f32 v7, v7, v{a}, v{b}"]
        return ops
    def drain_pend(n):
        for _ in range(min(n, len(pend))): e(pend.pop(0))
    def k_part(ent):
        t, r, ids, j = ent
        a = SC + t
        assert t < 27 or state["f2"] >= 1
        if j == 0: e(f"v_mov_b32 v{a}, 0")
        for dw in range(4):
            e(f"v_dot2c_f32_bf16 v{a}, v{r+4*j+dw}, v{Q+4*j+dw}")
            if dw or j: drain_pend(1)
        ent[3] += 1
        if ent[3] == 3:
            free(r); state["kdone"] += 1
            if t % 2 == 1:
                drain_pend(99); pend.extend(post_ops(a - 1, a))
    def phi(t): return 14 if t < 32 - W else SC + 8 + t - (32 - W)
    def v_part(ent):
        n, r, ids, k = ent
        t, j = vl[3 * n + k]
        plo = SC + t
        assert state["ex"] > t
        if j == 0: e(f"v_lshlrev_b32 v{phi(t)}, 16, v{plo}")
        for dw in range(4):
            e(f"v_dot2c_f32_bf16 v{ACC+8*j+2*dw}, v{r+4*k+dw}, v{plo}")
            e(f"v_dot2c_f32_bf16 v{ACC+8*j+2*dw+1}, v{r+4*k+dw}, v{phi(t)}")
        ent[3] += 1; state["vcnt"][j] += 1
        if ent[3] == 3:
            free(r); state["vdone"] += 1
    Y = Q
    def step_A(j):
        assert state["fw"] and state["addr"]
        a = ACC + 8 * j
        swapred_pk(e, 32, a, a + 4, 4); swapred_pk(e, 16, a, a + 2, 2)
        e(f"v_add_f32_dpp v{a+2}, v{a}, v{a} row_ror:8 row_mask:0xf bank_mask:0x3")
        e(f"v_add_f32_dpp v{a+2}, v{a+1}, v{a+1} row_ror:8 row_mask:0xf bank_mask:0xc")
        e(f"v_mul_f32 v{a+2}, v{a+2}, v7"); e(f"ds_write_b32 v10, v{a+2} offset:{OP+256*j}")
        state["A"] = j + 1
    def step_B(j):
        a = ACC + 8 * j
        assert all((j, p_, 4) in LO for p_ in range(4)) and not pend
        e(f"ds_read_b32 v{a}, v11 offset:{OP+256*j}")
        e("s_waitcnt lgkmcnt(0)")
        allred8(e, "v_add_f32", [a])
        e(f"v_mov_b32_dpp v{a+1}, v{a} row_ror:8 {DPPF}"); e(f"v_cvt_pk_bf16_f32 v{a}, v{a}, v{a+1}")
        for p_ in range(4): e(f"v_readlane_b32 s{16+p_}, v{a}, {16*p_}")
        for p_ in range(4):
            for dw in range(5):
                pend.append(f"v_dot2c_f32_bf16 v{Y+2*dw}, s{16+p_}, v{LO[(j,p_,dw)]}")
                pend.append(f"v_dot2c_f32_bf16 v{Y+2*dw+1}, s{16+p_}, v{HI[(j,p_,dw)]}")
        state["B"] = j + 1
    def tail_addr():
        e("v_and_b32 v10, 7, v1"); e(f"v_mul_u32_u24 v11, {OST}, v10"); e("v_lshlrev_b32 v10, 5, v10")
        e("v_bfe_u32 v9, v1, 5, 1"); e("v_lshl_add_u32 v10, v9, 4, v10")
        e("v_bfe_u32 v9, v1, 3, 2"); e("v_lshl_add_u32 v10, v9, 2, v10")
        e(f"s_mul_i32 s80, s3, {OST}"); e("v_add_u32 v10, s80, v10")
        e("v_lshrrev_b32 v9, 3, v1"); e("v_lshl_add_u32 v11, v9, 2, v11")
        e("s_lshl_b32 s80, s3, 5"); e("v_add_u32 v11, s80, v11")
        e("v_and_b32 v12, 15, v1"); e("v_lshlrev_b32 v8, 5, v12"); e("v_lshlrev_b32 v3, 1, v12")
        e("s_mul_i32 s80, s3, 2560"); e("v_lshl_add_u32 v12, v1, 5, s80"); e("v_lshl_add_u32 v6, v1, 3, s80")
        e("s_mul_i32 s80, s3, 320"); e("v_lshl_add_u32 v13, v1, 4, s80")
        e("s_mul_i32 s11, s8, 2560"); e(f"s_add_u32 s11, s11, {Y_OFF}")
        e(f"s_mul_i32 s22, s42, {128*2560}"); e("s_add_u32 s22, s22, s43"); e(f"s_add_u32 s22, s22, {Y_OFF}")
        e("s_mul_i32 s23, s42, 1280"); e("s_lshr_b32 s80, s43, 1"); e("s_add_u32 s23, s23, s80")
        state["addr"] = True

    def f2a():
        inflight["F"].pop(0)
        e("v_lshrrev_b32 v9, 3, v1"); e("s_lshl_b32 s80, s3, 4"); e("v_lshl_add_u32 v9, v9, 1, s80")
        e(f"ds_read_u16 v12, v9 offset:{HB}"); e(f"ds_read_u16 v13, v9 offset:{HB+128}")
        for r in range(ACC, ACC + 16): e(f"v_mov_b32 v{r}, 0")
        e("s_waitcnt lgkmcnt(0)")
        tile_dots(W2R, 12, 13)
        tile_reduce(FP)
        e("s_waitcnt lgkmcnt(0)")
        state["f2"] = 1
        if not P["bar"]:
            e("s_barrier"); state["f2"] = 2
    def f2b():
        e(f"s_cmp_eq_u32 s3, {P['pubw']}"); e(f"s_cselect_b32 s81, s26, {OOB}")
        tile_publish(FP, "s81", False)
        for r in range(ACC + 23, ACC - 1, -1): e(f"v_mov_b32 v{r}, 0")
        e("v_and_b32 v15, 3, v1"); e("v_lshlrev_b32 v15, 7, v15"); e("v_bfe_u32 v9, v1, 5, 1"); e("v_lshl_add_u32 v15, v9, 6, v15")
        e("v_bfe_u32 v9, v1, 4, 1"); e("v_lshl_add_u32 v15, v9, 5, v15"); e("s_lshl_b32 s80, s3, 2"); e("v_add_u32 v15, s80, v15")
        state["f2"] = 3

    def exps(n):
        t0 = state["ex"]; ts = list(range(t0, min(32, t0 + n)))
        for t in ts: e(f"v_fma_f32 v{SC+t}, v{SC+t}, s15, -v3")
        for t in ts: e(f"v_exp_f32 v{SC+t}, v{SC+t}")
        for t in ts: e(f"v_add_f32 v8, v8, v{SC+t}")
        for t in ts: e(f"v_cvt_pk_bf16_f32 v{SC+t}, v{SC+t}, 0")
        state["ex"] += len(ts)

    def transition():
        assert state["f2"] == 3
        drain_pend(99)
        e(f"v_max_f32_dpp v7, v7, v7 row_ror:8 {DPPF}"); allred_rows(e, "v_max_f32", 7, 9)
        e("v_mul_f32 v3, s15, v7")
        exps(P["exn"])
        for r in range(Q, Q + 12): e(f"v_mov_b32 v{r}, 0")
        state["p"] = True
        stamp("trans")

    def ml_publish():
        for s_ in stores: assert e.landed(s_)
        e(f"v_add_f32_dpp v8, v8, v8 row_ror:8 {DPPF}"); allred_rows(e, "v_add_f32", 8, 9)
        e("s_lshl_b32 s80, s3, 3"); e("v_mov_b32 v10, s80"); e("v_mov_b32 v11, 1"); e("v_mov_b32 v12, 0")
        e("v_and_b32 v9, 7, v1"); e("v_lshlrev_b32 v9, 3, v9")
        e("s_mov_b64 exec, 1")
        e(f"ds_write_b32 v10, v7 offset:{MX}"); e(f"ds_write_b32 v10, v8 offset:{MX+4}")
        e(f"ds_add_rtn_u32 v10, v12, v11 offset:{CNT}")
        e("s_mov_b64 exec, -1")
        e(f"ds_read_b64 v[12:13], v9 offset:{MX}")
        e("s_waitcnt lgkmcnt(0)")
        e("v_readfirstlane_b32 s80, v10")
        e("v_mov_b32 v10, v12"); allred8(e, "v_max_f32", [10])
        e("v_sub_f32 v12, v12, v10"); e("v_mul_f32 v12, s15, v12"); e("v_exp_f32 v12, v12"); e("v_mul_f32 v12, v12, v13")
        allred8(e, "v_add_f32", [12])
        e(f"v_mov_b32 v11, s{TAG}"); e(f"v_mov_b32 v13, s{TAG}")
        e("s_lshl_b32 s81, s8, 4"); e(f"s_add_u32 s81, s81, {ML_OFF}"); e("s_cmp_eq_u32 s80, 7"); e(f"s_cselect_b32 s80, s81, {OOB}")
        e("s_mov_b64 exec, 1")
        e.vm(f"buffer_store_dwordx4 v[10:13], off, {S(SWS)}, s80 {SC1}")
        e("s_mov_b64 exec, -1"); e("s_nop 0")
        state["ml"] = True

    def fw_step():
        e("v_and_b32 v9, 7, v1"); e("v_lshlrev_b32 v9, 3, v9"); e("v_mov_b32 v10, 0")
        e(f"s_mov_b32 s101, {SPIN}")
        e.label("Lfw")
        e(f"ds_read_b32 v11, v10 offset:{CNT}"); e(f"ds_read_b32 v12, v9 offset:{MX}")
        e("s_waitcnt lgkmcnt(0)")
        e("v_readfirstlane_b32 s80, v11")
        e("s_cmp_eq_u32 s80, 8"); e("s_cbranch_scc1 Lfw_ok")
        e("s_sub_u32 s101, s101, 1"); e("s_cbranch_scc0 Lfw")
        e.label("Lfw_ok")
        allred8(e, "v_max_f32", [12])
        e("v_sub_f32 v7, v7, v12"); e("v_mul_f32 v7, s15, v7"); e("v_exp_f32 v7, v7")
        state["fw"] = True

    def m_step():
        inflight["M"].pop(0)
        def cmp(E):
            regs = [SC + 1, SC + 3, SC + 5, SC + 7]; pairs = ["s[80:81]", "s[82:83]"]
            E(f"v_cmp_ne_u32 vcc, s{TAG}, v{regs[0]}")
            for k, r in enumerate(regs[1:]):
                E(f"v_cmp_ne_u32 {pairs[k % 2]}, s{TAG}, v{r}"); E(f"s_or_b64 vcc, vcc, {pairs[k % 2]}")
        tagcheck("m", cmp, m_loads, True)
        m, l = SC, SC + 2
        e(f"v_max_f32_dpp v10, v{m}, v{m} row_ror:4 {DPPF}"); e(f"v_max_f32_dpp v10, v10, v10 row_ror:8 {DPPF}")
        e(f"v_sub_f32 v10, v{m}, v10"); e("v_mul_f32 v10, s15, v10"); e("v_exp_f32 v10, v10")
        e(f"v_mul_f32 v11, v10, v{l}")
        e(f"v_add_f32_dpp v11, v11, v11 row_ror:4 {DPPF}"); e(f"v_add_f32_dpp v11, v11, v11 row_ror:8 {DPPF}")
        e("v_rcp_f32 v11, v11"); e(f"v_mul_f32 v{COEF}, v10, v11")
        state["m"] = 1
        if not P["bar"]:
            e("s_barrier"); state["m"] = 2; items.insert(0, ("G", 0))

    def col_reduce(a, base):
        swapred(e, 32, [(a, a + 2), (a + 1, a + 3)])
        swapred(e, 16, [(a, a + 1)])
        e(f"v_add_f32_dpp v{a}, v{a}, v{a} row_ror:8 {DPPF}"); e(f"v_add_f32_dpp v{a}, v{a}, v{a} row_ror:4 {DPPF}")
        e(f"ds_write_b32 v15, v{a} offset:{base}")
    def g_step():
        inflight["G"].pop(0)
        col_reduce(SC, GP)
        state["g"] = True

    def operm(n, r):
        j_, p_ = n // 4, n % 4
        for dw in range(5):
            a, b = (r + dw, r + 4 + dw) if dw < 4 else (r + 8, r + 9)
            f = spare.pop()
            e(f"v_perm_b32 v{f}, v{b}, v{a}, s20"); e(f"v_perm_b32 v{b}, v{b}, v{a}, s21")
            LO[(j_, p_, dw)] = f; HI[(j_, p_, dw)] = b
            spare.append(a)

    def after_pv(n):
        if state["ex"] < 32:
            exps(P["exn"])
            if state["ex"] == 32: ml_publish()
        if n >= P["fw_at"] and not state["fw"]: fw_step()
        elif state["fw"] and state["g"] and state["ml"] and not state["addr"]: tail_addr()
    def run_ready():
        if inflight["Q"] and e.landed(inflight["Q"][0][2][-1]): q_final()
        np_ = 0
        while state["q"] and inflight["K"] and np_ < P["maxparts"]:
            ent = inflight["K"][0]
            if ent[3] >= len(ent[2]) or not e.landed(ent[2][ent[3]]): break
            k_part(ent); np_ += 1
            if ent[3] == 3: inflight["K"].pop(0)
        if state["q"] and state["f2"] == 0 and state["kdone"] >= P["f2_at"]: f2a()
        elif state["f2"] == 2: f2b()
        while inflight["O"] and e.landed(inflight["O"][0][2][-1]):
            n, r, ids = inflight["O"].pop(0); operm(n, r)
        if state["kdone"] == 32 and not state["p"]: transition()
        while state["p"] and inflight["V"]:
            ent = inflight["V"][0]
            if ent[3] >= len(ent[2]) or not e.landed(ent[2][ent[3]]): break
            v_part(ent)
            if ent[3] == 3:
                inflight["V"].pop(0); after_pv(ent[0])
        if state["p"]:
            if state["A"] < 2 and state["vcnt"][state["A"]] == 32: step_A(state["A"])
            elif pend: drain_pend(P["bdrain"])
            elif state["B"] < state["Abar"]: step_B(state["B"])
        if inflight["M"] and e.landed(inflight["M"][0][2][-1]): m_step()
        if inflight["G"] and e.landed(inflight["G"][0][2][-1]): g_step()

    late_setup()
    issue_next(P["pk0"])
    layernorm(); w_phase()
    pacing[0] = True
    items.insert(0, ("F", 0))
    items.insert(1 + P["qdelay"], ("Q", 0))
    while items:
        it = items.pop(0)
        issue(it)
        run_ready()
        if it[0] in "KV" and P["bar"] and state["q"]:
            pos = it[1] + (32 if it[0] == "V" else 0)
            if (pos % P["bar"] == P["bar"] - 1 and pos < P["barend"]) or state["A"] > state["Abar"]:
                if state["A"] > state["Abar"]: e("s_waitcnt lgkmcnt(0)"); state["Abar"] = state["A"]
                e("s_barrier")
                if state["f2"] == 1: state["f2"] = 2
                if state["m"] == 1: state["m"] = 2; items.insert(0, ("G", 0))
    assert state["fw"] and state["g"] and state["ml"] and state["addr"]
    e(f"s_mov_b32 s101, {SPIN}")
    assert not inflight["K"] and state["p"] and not inflight["O"]
    assert state["Abar"] == 2, state
    if state["B"] < 2:
        drain_pend(99); step_B(1)
    while inflight["V"]:
        v = inflight["V"][0]
        last = len(inflight["V"]) == 1 and v[3] == 2
        drain_pend(99 if last else P["bdrain"])
        e.wait_vm(v[2][v[3]]); v_part(v)
        if v[3] == 3: inflight["V"].pop(0)
    stamp("vdone")
    step_A(2)
    e("s_waitcnt lgkmcnt(0)"); e("s_barrier")
    stamp("tb1")
    step_B(2); drain_pend(99)
    stamp("tdots")
    e(f"ds_write_b128 v12, v[{Y}:{Y+3}] offset:{YP}"); e(f"ds_write_b128 v12, v[{Y+4}:{Y+7}] offset:{YP+16}")
    e(f"ds_write_b64 v6, v[{Y+8}:{Y+9}] offset:{YP+2048}")
    e("s_waitcnt lgkmcnt(0)"); e("s_barrier")
    stamp("tb2")
    e("s_mov_b64 exec, 0xfffff")
    for w in range(8): e(f"ds_read_b128 v[{BUF0+4*w}:{BUF0+4*w+3}], v13 offset:{YP+2560*w}")
    for w in range(1, 8):
        e(f"s_waitcnt lgkmcnt({7-w})")
        for k in (0, 2): e(f"v_pk_add_f32 v[{BUF0+k}:{BUF0+k+1}], v[{BUF0+k}:{BUF0+k+1}], v[{BUF0+4*w+k}:{BUF0+4*w+k+1}]")
    put_tag(e, BUF0)
    e.vm(f"buffer_store_dwordx4 v[{BUF0}:{BUF0+3}], v13, {S(SWS)}, s11 offen {SC1}")
    e("s_mov_b64 exec, -1")
    stamp("ystore")
    if stamps and "yack" in smap:
        e("s_waitcnt vmcnt(0)"); stamp("yack")
    e("s_cmp_eq_u32 s100, 0"); e("s_cbranch_scc1 LA_fin")
    B = BUF0 + 32
    NP = P["np"]
    PB = [B + 8 + 4 * i for i in range(NP)]
    def pload(i): e(f"buffer_load_dwordx4 v[{PB[i]}:{PB[i]+3}], v0, {S(SWS)}, s22 offen {SC1}")
    def pk(op, a, b, c): e(f"v_pk_{op}_f32 v[{a}:{a+1}], v[{b}:{b+1}], v[{c}:{c+1}]")
    def sum8(r):
        pk("add", r, r, r + 4); pk("add", r + 2, r + 2, r + 6); pk("add", r, r, r + 2); e(f"v_add_f32 v{r}, v{r}, v{r+1}")
    pload(0)
    g = ACC
    e(f"ds_read_b128 v[{g}:{g+3}], v8 offset:{GP}"); e(f"ds_read_b128 v[{g+4}:{g+7}], v8 offset:{GP+16}")
    e(f"v_lshlrev_b32 v{B2V}, 16, v{B2V}"); e(f"v_lshlrev_b32 v{XV}, 16, v{XV}")
    e(f"v_mov_b32 v{g+8}, v{COEF}"); e(f"v_mov_b32 v{g+9}, v{COEF}")
    e("s_waitcnt lgkmcnt(0)")
    sum8(g)
    bf16r(e, g); e(f"v_add_f32 v{g}, v{g}, v{B2V}"); bf16r(e, g)
    if NP >= 3: pload(1)
    e(f"v_mul_f32 v9, s15, v{g}"); e("v_exp_f32 v9, -v9"); e("v_add_f32 v9, 1.0, v9"); e("v_rcp_f32 v9, v9")
    e(f"v_mul_f32 v{g}, v{g}, v9"); bf16r(e, g)
    if NP >= 2: pload(NP - 1)
    e.label("Lpoll")
    for i in range(NP):
        e(f"s_waitcnt vmcnt({NP-1})")
        cmp_tag(e, PB[i], 9, 10)
        e("s_andn2_b64 exec, exec, vcc")
        for k in range(4): e(f"v_and_b32 v{B+k}, s{MSK}, v{PB[i]+k}")
        e("s_and_b64 exec, vcc, vcc"); e("s_cbranch_scc0 Lpoll_done")
        pload(i)
    e("s_sub_u32 s101, s101, 1"); e("s_cbranch_scc0 Lpoll")
    e.label("Lpoll_done")
    e("s_mov_b64 exec, -1")
    stamp("pdone")
    pk("mul", B, B, g + 8); pk("mul", B + 2, B + 2, g + 8)
    swapred_pk(e, 32, B, B + 2, 2)
    swapred(e, 16, [(B, B + 1)])
    e(f"v_add_f32_dpp v{B}, v{B}, v{B} row_ror:8 {DPPF}"); e(f"v_add_f32_dpp v{B}, v{B}, v{B} row_ror:4 {DPPF}")
    e(f"ds_write_b32 v15, v{B} offset:{SP}")
    e("s_cmp_lg_u32 s3, 0")
    e("s_waitcnt lgkmcnt(0)"); e("s_barrier")
    stamp("cbar")
    e("s_cbranch_scc1 LA_fin")
    e(f"ds_read_b128 v[{B}:{B+3}], v8 offset:{SP}"); e(f"ds_read_b128 v[{B+4}:{B+7}], v8 offset:{SP+16}")
    e("s_waitcnt lgkmcnt(0)")
    sum8(B)
    bf16r(e, B); e(f"v_mul_f32 v{B}, v{B}, v{g}"); bf16r(e, B); e(f"v_add_f32 v{B}, v{B}, v{XV}")
    e(f"v_cvt_pk_bf16_f32 v{B}, v{B}, v{B}")
    e("s_mov_b64 exec, 0xffff")
    e(f"buffer_store_short v{B}, v3, {S(SOUT)}, s23 offen {P['polout']}")
    stamp("ostore")
    e("s_cmp_lg_u32 s2, 0"); e("s_cbranch_scc1 LA_fin")
    e(f"v_mov_b32 v9, s{TAG}"); e("s_mov_b64 exec, 1")
    e(f"buffer_store_dword v9, off, {S(SWS)}, 0 offset:{EP_OFF} {SC1}")
    e.label("LA_fin")
    if P["fixend"]:
        e("s_cmp_lg_u32 s2, 0"); e("s_cbranch_scc1 LA_done"); e("s_cmp_lg_u32 s3, 0"); e("s_cbranch_scc1 LA_done")
        e("s_waitcnt vmcnt(0)"); e("s_memrealtime s[86:87]"); e("s_waitcnt lgkmcnt(0)"); e("s_sub_u32 s86, s86, s84")
        e("s_mov_b32 s40, s38"); e("s_mov_b32 s41, s39"); e("s_mov_b32 s42, 256"); e("s_mov_b32 s43, 0x20000")
        e("s_mov_b64 exec, 1"); e("v_mov_b32 v9, s86"); e("buffer_store_dword v9, off, s[40:43], 0")
        e.label("Lfix"); e("s_memrealtime s[86:87]"); e("s_waitcnt lgkmcnt(0)"); e("s_sub_u32 s86, s86, s84")
        e(f"s_cmp_lt_u32 s86, {P['fixend']}"); e("s_cbranch_scc1 Lfix")
    if stamps:
        e(f"s_cmp_lg_u32 s3, {P['sw']}"); e("s_cbranch_scc1 LA_done")
        e("s_mov_b64 exec, 1")
        e("s_waitcnt vmcnt(0)")
        stamp("end")
        e("s_add_u32 s40, s40, 0x10000000"); e("s_addc_u32 s41, s41, 0"); e("s_mov_b32 s42, 0x100000"); e("s_mov_b32 s43, 0x20000")
        e("s_getreg_b32 s85, hwreg(HW_REG_XCC_ID)")
        if "polls" in smap:
            k = 84 + 2 * int(smap["polls"])
            e(f"s_sub_u32 s{k}, {SPIN}, s101"); e(f"s_mul_i32 s{k}, s{k}, 100"); e(f"s_add_u32 s{k}, s{k}, s84")
        for k in range(16): e(f"v_mov_b32 v{16+k}, s{84+k}")
        e("s_lshl_b32 s80, s2, 6"); e("v_mov_b32 v1, s80")
        for k in range(4): e(f"buffer_store_dwordx4 v[{16+4*k}:{19+4*k}], v1, s[40:43], 0 offen offset:{16*k}")
    e.label("LA_done")
    e("s_endpgm")
    return e.text() + slow.text() + "    s_endpgm\n"

def desc(name, vgpr, sgpr):
    return f""".amdhsa_kernel {name}
  .amdhsa_next_free_vgpr {vgpr}
  .amdhsa_next_free_sgpr {sgpr}
  .amdhsa_accum_offset {vgpr}
  .amdhsa_group_segment_fixed_size 0
  .amdhsa_kernarg_size 104
  .amdhsa_user_sgpr_count 2
  .amdhsa_user_sgpr_kernarg_segment_ptr 1
  .amdhsa_system_sgpr_workgroup_id_x 1
  .amdhsa_float_denorm_mode_32 3
.end_amdhsa_kernel
"""

DEF = dict(abl="", sm="q:1,trans:2,vdone:3,qpub:4,ystore:5,polls:6,end:7", sw=0, bar=2, barend=62,
           T=16, DP=4, DK=3, DV=3, DE=3, de_at=999, W=6, bdrain=14, np=2, polout='', wo_start=18, wo_every=3, polw="nt", polo="", sc="sc1", maxparts=6,
           pk0=2, pk1=1, qdelay=3, f2_at=12, m_at=14, fw_at=20, exn=4, pubw=0, fixend=0)

def build(**kw):
    P = dict(DEF); P.update(kw)
    a = kernel(P)
    s = HEADER
    s += f"; @launch grid=(256,1,1) block=(512,1,1) lds={LDS_A}\n"
    s += '.amdgcn_target "amdgcn-amd-amdhsa--gfx950"\n.text\n'
    s += f".globl {KN}_kernel\n.p2align 8\n.type {KN}_kernel,@function\n{KN}_kernel:\n" + a
    s += '.section .rodata,"a"\n.p2align 6\n' + desc(KN + "_kernel", 256, 102)
    return s

if __name__ == "__main__":
    out = sys.argv[1]
    kw = {}
    for a in sys.argv[2:]:
        k, v = a.split("=", 1)
        kw[k] = int(v) if v.lstrip("-").isdigit() else v.replace("+", " ")
    open(out, "w").write(build(**kw))
```

```python
import sys, struct
from em import Em
KN = "recurrent_scan__gqa_block_cached__dense_activation_squared_relu__decode"
R = 8192 * 384
def f32(x): return "0x%08x" % struct.unpack("<I", struct.pack("<f", x))[0]
LOG2E = 1.4426950408889634
XN, TP, QB, MX, FP, YP, GP, SP, CO, OP = 0, 2560, 6656, 8960, 9216, 0, 40960, 41472, 41984, 42048
OST = 800
LDS_A = OP + 2 * 8 * OST
EP_OFF, ML_OFF, PX_OFF, G_OFF, Y_OFF, WS_SIZE = 0, 0x1000, 0x10000, 0x30000, 0x50000, 0x200000
KVTOT = 64 * R
SLAB = 245760
OOB = 0x40000000
DPPF = "row_mask:0xf bank_mask:0xf"
SPIN = 200000

HEADER = open("cdna_kernels/" + KN + ".s.ref").read().split("; Override launch")[0]

def allred8(e, op, rs):
    for m in ("quad_perm:[1,0,3,2]", "quad_perm:[2,3,0,1]", "row_half_mirror"):
        for r in rs: e(f"{op}_dpp v{r}, v{r}, v{r} {m} {DPPF}")
def allred_rows(e, op, r, t):
    for k in (16, 32):
        e(f"v_mov_b32 v{t}, v{r}"); e(f"v_permlane{k}_swap_b32 v{r}, v{t}"); e(f"{op} v{r}, v{r}, v{t}")
def swapred(e, kind, pairs):
    for a, b in pairs: e(f"v_permlane{kind}_swap_b32 v{a}, v{b}")
    for a, b in pairs: e(f"v_add_f32 v{a}, v{a}, v{b}")
def swapred_pk(e, kind, a, b, n):
    for x in range(n): e(f"v_permlane{kind}_swap_b32 v{a+x}, v{b+x}")
    for x in range(0, n, 2): e(f"v_pk_add_f32 v[{a+x}:{a+x+1}], v[{a+x}:{a+x+1}], v[{b+x}:{b+x+1}]")
def srd(e, d, lo, hi, size, addlo=None):
    if addlo is None:
        e(f"s_mov_b32 s{d}, s{lo}"); e(f"s_mov_b32 s{d+1}, s{hi}")
    else:
        e(f"s_add_u32 s{d}, s{lo}, {addlo}"); e(f"s_addc_u32 s{d+1}, s{hi}, 0")
    e(f"s_mov_b32 s{d+2}, {size}"); e(f"s_mov_b32 s{d+3}, 0x20000")
def bf16r(e, r):
    e(f"v_cvt_pk_bf16_f32 v{r}, v{r}, v{r}"); e(f"v_and_b32 v{r}, s13, v{r}")

def kernel(P):
    wo_start, wo_every = P["wo_start"], P["wo_every"]
    NR = P["NR"]; NH = NR // 2; G = 4 * NR; gpr = 32 // NR
    HB = QB + 768 * NH
    SF, SCO = [28, 29, 30, 31], [32, 33, 24, 25]
    polw, polo, SC1 = P["polw"], P["polo"], P["sc"]
    stamps = P.get("stamps", False)
    abl = P["abl"]
    e = Em(); slow = Em()
    ACC, Q, SC, BUF0, NBUF = 16, 40, 52, 84, 14
    SK, SV, SWQ, SWO, SX, SB1, SW2, SWS = 44, 48, 52, 56, 60, 64, 68, 76
    SB2, SOUT = SWQ, SB1
    TAG, SEL, MSK = 75, 72, 73
    XV, B2V = 254, 255
    def S(d): return f"s[{d}:{d+3}]"
    smap = dict(kv.split(":") for kv in P["sm"].split(","))
    def stamp(name):
        if stamps and name in smap:
            k = int(smap[name]); e(f"s_memrealtime s[{84+2*k}:{85+2*k}]"); e("s_waitcnt lgkmcnt(0)")
    e("s_cmp_ge_u32 s2, 256"); e("s_cbranch_scc1 LA_done")
    e("s_load_dwordx16 s[16:31], s[0:1], 0")
    e("s_load_dwordx8 s[32:39], s[0:1], 64")
    e("s_load_dwordx2 s[40:41], s[0:1], 96")
    if stamps or P["fixend"]: e("s_memrealtime s[84:85]")
    e("v_lshrrev_b32 v9, 6, v0"); e("v_and_b32 v1, 63, v0"); e("v_readfirstlane_b32 s3, v9")
    e("s_and_b32 s80, s2, 7"); e("s_lshr_b32 s81, s2, 3")
    e("s_lshr_b32 s82, s81, 3")
    if NH == 1: e("s_lshl2_add_u32 s4, s80, s82"); e("s_mov_b32 s5, s4")
    else:
        e("s_lshr_b32 s4, s81, 4"); e("s_lshl1_add_u32 s4, s80, s4"); e("s_and_b32 s5, s82, 1"); e("s_lshl4_add_u32 s5, s5, s4")
    e("s_and_b32 s83, s81, 7")
    e("s_cmp_ge_u32 s83, 3"); e("s_cselect_b32 s42, 1, 0"); e("s_mul_i32 s43, s42, 3"); e("s_sub_u32 s43, s83, s43")
    e("s_mul_i32 s100, s5, 3"); e("s_add_u32 s43, s43, s100")
    e("s_mul_i32 s100, s80, 3"); e("s_add_u32 s100, s100, s82")
    e("s_sub_u32 s101, s83, 6")
    e("s_cmp_eq_u32 s82, 3"); e(f"s_cselect_b32 s12, 0, {319*3072+128}")
    e("s_movk_i32 s10, 3072")
    e("s_cmp_lt_u32 s83, 6")
    e("s_cselect_b32 s42, s42, s101"); e("s_cselect_b32 s43, s43, s100"); e("s_cselect_b32 s10, 12288, s10")
    e(f"s_cselect_b32 s{SWQ+2}, {319*12288+128}, s12")
    e("s_mul_i32 s11, s42, 320"); e("s_mul_i32 s42, s11, s10"); e("s_mul_i32 s43, s43, 128")
    e("v_lshrrev_b32 v9, 3, v0"); e("v_and_b32 v10, 7, v1"); e("v_lshlrev_b32 v10, 4, v10")
    e("v_mul_u32_u24 v3, s10, v9"); e("v_add_u32 v3, v3, v10")
    e("s_mul_i32 s12, s3, 1280")
    e("v_mul_u32_u24 v11, 20, v1"); e("v_add_u32 v11, s12, v11")
    e("s_mul_i32 s10, s10, 64")
    e("s_waitcnt lgkmcnt(0)")
    e("s_cselect_b32 s100, s22, s28"); e("s_cselect_b32 s101, s23, s29")
    srd(e, SX, 16, 17, 2560)
    if stamps:
        for k in range(1, 8): e(f"s_mov_b32 s{84+2*k}, s84")
    x0 = e.vm(f"buffer_load_dwordx4 v[12:15], v11, {S(SX)}, 0 offen")
    x1 = e.vm(f"buffer_load_dword v8, v11, {S(SX)}, 0 offen offset:16")
    e("s_add_u32 s42, s42, s43")
    e(f"s_add_u32 s{SWQ}, s100, s42"); e(f"s_addc_u32 s{SWQ+1}, s101, 0"); e(f"s_mov_b32 s{SWQ+3}, 0x20000")
    if "w" in abl: e(f"s_mov_b32 s{SWQ+2}, 0")
    wid = []
    for i in range(5):
        if i >= 2: e(f"s_mul_i32 s12, s10, {i}")
        so = "0" if i == 0 else ("s10" if i == 1 else "s12")
        wid.append(e.vm(f"buffer_load_dwordx4 v[{SC+4*i}:{SC+4*i+3}], v3, {S(SWQ)}, {so} offen {polw}"))
    e(f"s_load_dword s{TAG}, s[40:41], {EP_OFF}")
    e(f"s_and_b32 s6, s81, {G-1}")
    e("s_lshl_b32 s7, s80, 5"); e("s_add_u32 s7, s7, s81")
    e(f"s_mul_i32 s8, s4, {R}")
    e("v_lshrrev_b32 v9, 3, v1"); e("v_mul_u32_u24 v2, 384, v9"); e("v_add_u32 v2, v2, v10")
    e("s_lshl3_add_u32 s9, s6, s3")
    if P["rotM"]:
        e(f"s_lshr_b32 s82, s4, {P['rotS']}"); e(f"s_mul_i32 s82, s82, {P['rotM']}"); e("s_add_u32 s9, s9, s82")
    e("s_mul_i32 s9, s9, 3072"); e("s_add_u32 s9, s9, s8"); e(f"s_add_u32 s8, s8, {R}")
    srd(e, SK, 18, 19, KVTOT)

    def late_setup():
        srd(e, SV, 20, 21, KVTOT)
        e("s_sub_u32 s81, 31, s81"); e("s_mul_i32 s82, s81, 26"); e("s_lshr_b32 s82, s82, 8")
        e("s_mul_i32 s83, s82, 10"); e("s_sub_u32 s83, s81, s83")
        e("s_mul_i32 s74, s80, 3"); e("s_add_u32 s74, s74, s82")
        e(f"s_mul_i32 s81, s74, {64*1280}"); e("s_lshl_b32 s100, s83, 7"); e("s_add_u32 s81, s81, s100")
        e("s_mul_i32 s26, s83, 24"); e("s_add_u32 s26, s26, s74"); e("s_lshl_b32 s26, s26, 9"); e(f"s_add_u32 s26, s26, {G_OFF}")
        e("s_lshl2_add_u32 s27, s80, s82"); e("s_lshl_b32 s27, s27, 12"); e(f"s_add_u32 s27, s27, {PX_OFF+6*512}")
        e("s_cmp_lt_u32 s82, 3")
        e("s_cselect_b32 s81, s81, 0"); e(f"s_cselect_b32 s100, {0 if 'w' in abl else 63*1280+128}, 0"); e(f"s_cselect_b32 s26, s26, {OOB}"); e("s_cselect_b32 s74, s74, 99")
        srd(e, SW2, 32, 33, "s100", "s81")
        e("s_mul_i32 s81, s4, 245760"); e("s_mul_i32 s12, s3, 10240")
        srd(e, SWO, 24, 25, 0 if "o" in abl else SLAB * (1 if NH == 1 else 17), "s81")
        srd(e, SB1, 30, 31, 3072)
        srd(e, SWS, 40, 41, 0 if "s" in abl else WS_SIZE)
        e("s_mov_b32 s13, 0xffff0000"); e(f"s_mov_b32 s14, {f32(192 ** -0.5)}"); e(f"s_mov_b32 s15, {f32(LOG2E)}")
        e(f"s_mov_b32 s{SEL}, 0x0c0c0400"); e(f"s_mov_b32 s{MSK}, 0xffffff00")
        e("s_cmp_lt_u32 s2, %d" % (0 if "c" in abl else 80)); e("s_cselect_b32 s100, 1, 0")
        e("s_cmp_ge_u32 s2, 40"); e("s_cselect_b32 s42, 1, 0"); e("s_mul_i32 s43, s42, 40"); e("s_sub_u32 s43, s2, s43"); e("s_lshl_b32 s43, s43, 6")
        e("v_lshlrev_b32 v4, 4, v1"); e("v_lshlrev_b32 v5, 2, v1")
        e("s_mov_b32 s20, 0x05040100"); e("s_mov_b32 s21, 0x07060302")
        e("v_mov_b32 v7, 0xff800000")
        for r in range(ACC, ACC + 16): e(f"v_mov_b32 v{r}, 0")

    items = []
    on = 0
    W = P["W"]; assert W % 3 == 0
    vl = [(t, j) for t in range(32 - W) for j in range(3)] + [(t, j) for j in range(3) for t in range(32 - W, 32)]
    for pos in range(64):
        items.append(("K", pos) if pos < 32 else ("V", pos - 32))
        if pos >= wo_start and (pos - wo_start) % wo_every == 0 and on < 12:
            items.append(("O", on)); on += 1
        if pos == 32 + P["m_at"]: items.append(("M", 0))
        if pos == 32 + P["g_at"]: items.append(("G", 0))
    assert on == 12, on
    if P["pf"] >= 0: items.insert(P["pf"], ("P", 0))
    pool = list(range(NBUF))
    def alloc(top=False):
        assert pool, "out of buffers"
        pool.sort(); return BUF0 + 12 * pool.pop(-1 if top else 0)
    def free(r): pool.append((r - BUF0) // 12)
    state = dict(addr=False, q=False, p=False, kdone=0, vdone=0, f2=0, st=0, ml=0, g=False, m=0, qreg=0, qwait=False, needbar=False, y0=False, y1z=False, o2=12)
    vcnt = {}; Adone = []; Abar = set(); Bq = []; Bdone = set(); Bfin = set()
    inflight = {k: [] for k in "KVOFQMG"}
    stores = []
    pend = []
    LO = {}; HI = {}
    cur_so = [None]
    taken = set()
    heavy = []
    pacing = [False]
    def soff(base, const):
        key = (base, const)
        if cur_so[0] != key:
            e(f"s_add_u32 s10, s{base}, {const}"); cur_so[0] = key
    def kv_soff(t):
        key = ("kv", t)
        if cur_so[0] == key: return
        cur_so[0] = key
        r, tl = divmod(t, gpr)
        o = tl * G * 64 * 384; rc = ((r & 1) * 32 + (r >> 1) * 16) * R
        if P["rotM"]:
            e(f"s_add_u32 s10, s9, {o}"); e("s_cmp_ge_u32 s10, s8")
            e(f"s_cselect_b32 s83, {R}, 0"); e("s_sub_u32 s10, s10, s83")
            if rc: e(f"s_add_u32 s10, s10, {rc}")
        else: e(f"s_add_u32 s10, s9, {o+rc}")
    def q_loads(E):
        return [E.vm(f"buffer_load_dwordx4 v[{Q}:{Q+3}], v{Q+6}, {S(SWS)}, 0 offen {SC1}")]
    MR, GR = SC, SC + 12
    def m_loads(E):
        return [E.vm(f"buffer_load_dwordx4 v[{MR}:{MR+3}], v{MR+4}, {S(SWS)}, 0 offen {SC1}")]
    def g_loads(E):
        return [E.vm(f"buffer_load_dwordx4 v[{GR}:{GR+3}], v{GR-1}, {S(SWS)}, 0 offen {SC1}")]
    def hload(t):
        if pacing[0]:
            D = P["DV"] if state["p"] else (P["DK"] if state["q"] else P["DP"])
            if len(heavy) >= P["de_at"]: D = P["DE"]
            if D >= 10: D = D // 10 + (1 if (len(heavy) * (D % 10)) % 10 < D % 10 else 0)
            i = len(heavy) - D
            if i >= 0: e.wait_vm(heavy[i])
        i = e.vm(t); heavy.append(i); return i
    W2R, B1R = SC + 28, SC + 27
    def issue(it):
        kind, n = it
        if kind in "KV":
            stamp("g%d" % (n + (32 if kind == "V" else 0)))
            r = alloc()
            s = SK if kind == "K" else SV
            ent = [n, r, [], 0]
            inflight[kind].append(ent)
            for k in range(3):
                t, j = (n, k) if kind == "K" else vl[3 * n + k]
                kv_soff(t)
                ent[2].append(hload(f"buffer_load_dwordx4 v[{r+4*k}:{r+4*k+3}], v2, {S(s)}, s10 offen offset:{128*j} nt"))
                if pacing[0]: run_ready()
        elif kind == "O":
            hs, n_ = divmod(n, 12)
            r = BUF0 + 12 * NBUF - 10 * (n_ + 1)
            for bi in {(r - BUF0) // 12, (r + 9 - BUF0) // 12}:
                if bi in pool: pool.remove(bi); taken.add(bi)
                assert bi in taken, "wo landing buffer busy"
            j_, p_ = n_ // 4, n_ % 4
            soff(12, (64 * j_ + 2 * p_) * 1280 + hs * 16 * SLAB)
            ids = []
            for h in range(2):
                ids.append(e.vm(f"buffer_load_dwordx4 v[{r+4*h}:{r+4*h+3}], v4, {S(SWO)}, s10 offen offset:{1280*h} {polo}"))
                ids.append(e.vm(f"buffer_load_dword v{r+8+h}, v5, {S(SWO)}, s10 offen offset:{1280*h+1024} {polo}"))
            inflight[kind].append((n, r, ids))
        elif kind == "P":
            e("s_and_b32 s80, s6, 7"); e("s_lshl3_add_u32 s80, s80, s3"); e("s_mul_i32 s80, s80, 3840")
            if NH == 2:
                e("s_lshr_b32 s81, s6, 3"); e(f"s_mul_i32 s81, s81, {16*SLAB}"); e("s_add_u32 s80, s80, s81")
            for k in range(4):
                if k == 3: e("s_mov_b32 exec_hi, 0xffff")
                hload(f"buffer_load_dwordx4 v[248:251], v4, {S(SWO)}, s80 offen offset:{1024*k} {P['polp']}")
            e("s_mov_b32 exec_hi, -1")
        elif kind == "F":
            e("v_lshrrev_b32 v9, 3, v0"); e("v_mul_u32_u24 v9, 1280, v9"); e("v_and_b32 v10, 7, v1"); e("v_lshl_add_u32 v9, v10, 4, v9")
            ids = [e.vm(f"buffer_load_dwordx4 v[{W2R}:{W2R+3}], v9, {S(SW2)}, 0 offen {polw}")]
            e("v_and_b32 v9, 15, v1"); e("v_lshlrev_b32 v9, 3, v9"); e("v_lshrrev_b32 v10, 5, v1"); e(f"v_lshl_add_u32 v{Q+7}, v10, 2, v9")
            e("s_lshl_b32 s80, s74, 7")
            ids.append(e.vm(f"buffer_load_dword v{B1R}, v{Q+7}, {S(SB1)}, s80 offen"))
            inflight[kind].append((n, 0, ids))
            e("v_lshrrev_b32 v9, 2, v0"); e("v_mul_u32_u24 v9, 5120, v9"); e("v_and_b32 v0, 3, v0"); e("v_lshl_add_u32 v0, v0, 4, v9")
        elif kind == "Q":
            e(f"s_andn2_b32 s80, s7, {G-1}"); e("s_cmp_ge_u32 s3, 3"); e("s_cselect_b32 s81, 5, 0"); e("s_add_u32 s81, s81, s3")
            e(f"s_cmp_lt_u32 s3, {3*NH}"); e("s_cselect_b32 s81, s81, 0"); e("s_add_u32 s80, s80, s81")
            e("s_lshl_b32 s80, s80, 9"); e(f"s_add_u32 s80, s80, {PX_OFF}")
            e("s_cmp_lt_u32 s74, 24"); e("s_cselect_b32 s81, s3, 99"); e("s_movk_i32 s83, 1536")
            e(f"s_cmp_eq_u32 s81, {3*NH}"); e("s_cselect_b32 s80, s27, s80"); e("s_cselect_b32 s83, 512, s83")
            e("v_lshrrev_b32 v9, 5, v1"); e("v_mul_u32_u24 v9, s83, v9"); e("v_and_b32 v10, 31, v1"); e("v_lshl_add_u32 v9, v10, 4, v9")
            e(f"v_add_u32 v{Q+6}, s80, v9")
            stamp("qissue")
            inflight[kind].append((n, Q, q_loads(e)))
        elif kind == "M":
            assert state["vdone"] >= 5 and state["ml"] == 2 and not state["y1z"]
            e(f"v_and_b32 v9, {G-1}, v1"); e("v_lshlrev_b32 v9, 6, v9"); e(f"v_bfe_u32 v{MR+4}, v1, 4, {NH}"); e(f"v_lshl_add_u32 v9, v{MR+4}, 4, v9")
            e(f"s_andn2_b32 s80, s7, {G-1}"); e("s_lshl_b32 s80, s80, 6"); e(f"s_add_u32 s80, s80, {ML_OFF}")
            e(f"s_cmp_eq_u32 s3, {P['mw']}"); e(f"s_cselect_b32 s80, s80, {OOB}"); e(f"v_add_u32 v{MR+4}, s80, v9")
            inflight[kind].append((n, MR, m_loads(e)))
        elif kind == "G":
            assert state["vdone"] >= 16
            a = GR - 1
            e(f"v_lshrrev_b32 v{a}, 2, v1"); e(f"v_cmp_gt_u32 vcc, 3, v{a}"); e(f"v_lshlrev_b32 v{a}, 9, v{a}")
            e("v_and_b32 v9, 3, v1"); e(f"v_lshl_add_u32 v{a}, v9, 4, v{a}"); e(f"v_mov_b32 v9, {OOB}"); e(f"v_cndmask_b32 v{a}, v9, v{a}, vcc")
            e("s_cmp_eq_u32 s100, 1"); e(f"s_cselect_b32 s82, 0, {OOB}")
            e("s_lshr_b32 s80, s43, 8"); e("s_mul_i32 s80, s80, 24"); e("s_mul_i32 s81, s3, 3"); e("s_add_u32 s80, s80, s81"); e("s_lshl_b32 s80, s80, 9")
            e("s_lshl_b32 s81, s42, 8"); e("s_add_u32 s80, s80, s81"); e("s_and_b32 s81, s43, 0xc0"); e("s_add_u32 s80, s80, s81")
            e("s_add_u32 s80, s80, s82"); e(f"s_add_u32 s80, s80, {G_OFF}"); e(f"v_add_u32 v{a}, s80, v{a}")
            ids = g_loads(e)
            srd(e, SB2, 34, 35, 1280); srd(e, SOUT, 36, 37, 2560)
            e("v_and_b32 v9, 15, v1"); e("v_lshlrev_b32 v9, 1, v9")
            e("s_lshr_b32 s80, s43, 1"); e("s_add_u32 s80, s80, s82"); e("s_mul_i32 s81, s42, 1280"); e("s_add_u32 s81, s81, s80")
            ids.append(e.vm(f"buffer_load_ushort v{B2V}, v9, {S(SB2)}, s80 offen"))
            ids.append(e.vm(f"buffer_load_ushort v{XV}, v9, {S(SX)}, s81 offen"))
            inflight[kind].append((n, GR, ids))
    def issue_next(n=1):
        for _ in range(n): issue(items.pop(0))

    def put_tag(E, r):
        for k in range(4): E(f"v_mov_b32_sdwa v{r+k}, s{TAG} dst_sel:BYTE_0 dst_unused:UNUSED_PRESERVE src0_sel:BYTE_{k}")
    def cmp_tag(E, r, t0, t1):
        E(f"v_perm_b32 v{t0}, v{r+1}, v{r}, s{SEL}"); E(f"v_perm_b32 v{t1}, v{r+3}, v{r+2}, s{SEL}")
        E(f"v_lshl_or_b32 v{t0}, v{t1}, 16, v{t0}"); E(f"v_cmp_ne_u32 vcc, s{TAG}, v{t0}")
    def tagcheck(name, cmp, loadfn, cond_consumer):
        if "s" in abl: return
        cmp(e)
        e(f"s_cbranch_scc1 L{name}_slow"); e.label(f"L{name}_ok"); e("s_nop 0")
        slow.label(f"L{name}_slow")
        if cond_consumer:
            slow("s_cmp_eq_u32 s100, 0"); slow(f"s_cbranch_scc1 L{name}_ok")
        slow(f"s_mov_b32 s101, {SPIN}")
        slow.label(f"L{name}_loop")
        slow("s_nop 4")
        loadfn(slow); slow("s_waitcnt vmcnt(0)")
        cmp(slow)
        slow(f"s_cbranch_scc0 L{name}_ok")
        slow("s_sub_u32 s101, s101, 1"); slow(f"s_cbranch_scc0 L{name}_loop"); slow(f"s_branch L{name}_ok")

    def layernorm():
        stamp("setup")
        e("s_cmp_ge_u32 s3, 2"); e("s_cbranch_scc1 Lln")
        sv = e.vmdone
        e.wait_vm(x1)
        stamp("xland")
        t = Q
        src = [12, 13, 14, 15, 8]
        for k in range(5):
            e(f"v_lshlrev_b32 v{t+2*k}, 16, v{src[k]}"); e(f"v_and_b32 v{t+2*k+1}, s13, v{src[k]}")
        e(f"v_add_f32 v9, v{t}, v{t+1}")
        for k in range(2, 10): e(f"v_add_f32 v9, v9, v{t+k}")
        allred8(e, "v_add_f32", [9]); e(f"v_add_f32_dpp v9, v9, v9 row_mirror {DPPF}"); allred_rows(e, "v_add_f32", 9, 10)
        e(f"v_mul_f32 v9, {f32(1/640)}, v9")
        e("v_mov_b32 v12, 0")
        for k in range(10):
            e(f"v_sub_f32 v13, v{t+k}, v9"); e("v_fmac_f32 v12, v13, v13")
        allred8(e, "v_add_f32", [12]); e(f"v_add_f32_dpp v12, v12, v12 row_mirror {DPPF}"); allred_rows(e, "v_add_f32", 12, 10)
        e(f"v_mul_f32 v12, {f32(1/640)}, v12")
        e("v_cvt_pk_bf16_f32 v9, v9, v12")
        e("v_and_b32 v12, s13, v9"); e("v_lshlrev_b32 v9, 16, v9")
        e(f"v_add_f32 v12, {f32(1e-5)}, v12"); e("v_cvt_pk_bf16_f32 v12, v12, v12"); e("v_and_b32 v12, s13, v12")
        e("v_sqrt_f32 v12, v12"); e("v_cvt_pk_bf16_f32 v12, v12, v12"); e("v_and_b32 v12, s13, v12")
        e("v_rcp_f32 v13, v12")
        for k in range(10): e(f"v_sub_f32 v{t+k}, v{t+k}, v9")
        for k in range(5):
            a, b = t + 2 * k, t + 2 * k + 1
            e(f"v_cvt_pk_bf16_f32 v{b}, v{a}, v{b}"); e(f"v_lshlrev_b32 v{a}, 16, v{b}"); e(f"v_and_b32 v{b}, s13, v{b}")
            for r in (a, b):
                e(f"v_mul_f32 v14, v{r}, v13"); e(f"v_fma_f32 v15, -v14, v12, v{r}"); e(f"v_fma_f32 v{r}, v15, v13, v14")
            e(f"v_cvt_pk_bf16_f32 v{a}, v{a}, v{b}")
            e(f"ds_write_b32 v11, v{a} offset:{XN+4*k}")
        e.label("Lln"); e.vmdone = sv
        stamp("ln")
        e("v_lshrrev_b32 v9, 3, v0"); e("v_add_u32 v9, s11, v9"); e("v_lshlrev_b32 v9, 1, v9")
        e("s_waitcnt lgkmcnt(0)"); e("s_barrier")
        for i in range(5):
            for b in range(2): e(f"ds_read_u16 v{Q+2*i+b}, v9 offset:{XN+1280*b+128*i}")
        e(f"s_and_b32 s80, s{TAG}, 0x7f7f7f7f"); e("s_add_u32 s80, s80, 0x01010101"); e(f"s_and_b32 s{TAG}, s{TAG}, 0x80808080"); e(f"s_xor_b32 s{TAG}, s{TAG}, s80")
        issue_next(P["pk1"])
        stamp("bar0")

    def tile_dots(r, m0, m1):
        for b, m in enumerate((m0, m1)):
            e(f"v_lshlrev_b32 v{9+b}, 16, v{m}")
        for b, m in enumerate((m0, m1)):
            for dw in range(4):
                e(f"v_dot2c_f32_bf16 v{ACC+8*b+2*dw}, v{r+dw}, v{m}")
                e(f"v_dot2c_f32_bf16 v{ACC+8*b+2*dw+1}, v{r+dw}, v{9+b}")
    def tile_reduce(base):
        e("v_and_b32 v11, 7, v1"); e("v_lshlrev_b32 v11, 5, v11"); e("s_lshl_b32 s80, s3, 9"); e("v_add_u32 v11, s80, v11")
        e("v_bfe_u32 v9, v1, 5, 1"); e("v_lshl_add_u32 v11, v9, 8, v11"); e("v_bfe_u32 v9, v1, 3, 2"); e("v_lshl_add_u32 v11, v9, 3, v11")
        swapred(e, 32, [(ACC + x, ACC + 8 + x) for x in range(8)])
        swapred(e, 16, [(ACC + x, ACC + 4 + x) for x in range(4)])
        for x in range(2): e(f"v_add_f32_dpp v{ACC+4+x}, v{ACC+x}, v{ACC+x} row_ror:8 row_mask:0xf bank_mask:0x3")
        for x in range(2): e(f"v_add_f32_dpp v{ACC+4+x}, v{ACC+2+x}, v{ACC+2+x} row_ror:8 row_mask:0xf bank_mask:0xc")
        e(f"ds_write_b64 v11, v[{ACC+4}:{ACC+5}] offset:{base}")
    def tile_publish(base, sreg, tag):
        e("v_and_b32 v10, 31, v1"); e("v_lshlrev_b32 v10, 4, v10"); e("v_bfe_u32 v9, v1, 5, 1"); e("v_lshl_add_u32 v9, v9, 11, v10")
        for w in range(4): e(f"ds_read_b128 v[{ACC+4*w}:{ACC+4*w+3}], v9 offset:{base+512*w}")
        e("s_waitcnt lgkmcnt(0)")
        for st in (8, 4):
            for k in range(st): e(f"v_add_f32 v{ACC+k}, v{ACC+k}, v{ACC+st+k}")
        for k in range(4): e(f"v_mov_b32 v{ACC+4+k}, v{ACC+k}")
        swapred(e, 32, [(ACC + k, ACC + 4 + k) for k in range(4)])
        if tag: put_tag(e, ACC)
        e("s_mov_b64 exec, 0xffffffff")
        stores.append(e.vm(f"buffer_store_dwordx4 v[{ACC}:{ACC+3}], v10, {S(SWS)}, {sreg} offen {SC1}"))
        e("s_mov_b64 exec, -1"); e("s_nop 0")

    def w_phase():
        e("s_waitcnt lgkmcnt(0)")
        for i in range(5):
            e.wait_vm(wid[i]); tile_dots(SC + 4 * i, Q + 2 * i, Q + 2 * i + 1)
        stamp("wdots")
        tile_reduce(TP)
        e("s_lshl_b32 s81, s7, 9"); e(f"s_add_u32 s81, s81, {PX_OFF}"); e(f"s_cmp_eq_u32 s3, {P['pubw']}"); e(f"s_cselect_b32 s81, s81, {OOB}")
        e("s_waitcnt lgkmcnt(0)"); e("s_barrier")
        stamp("bar1")
        tile_publish(TP, "s81", True)
        stamp("qpub")

    def q_read(r):
        for j in range(3): e(f"ds_read_b128 v[{Q+4*j}:{Q+4*j+3}], v6 offset:{QB+384*r+128*j}")
        state["qreg"] = r; state["qwait"] = True
    def q_final():
        inflight["Q"].pop(0)
        assert e.landed(inflight["F"][0][2][-1])
        stamp("qland")
        def cmp(E):
            cmp_tag(E, Q, 9, 10); E("s_cmp_lg_u64 vcc, 0")
        tagcheck("q", cmp, q_loads, False)
        stamp("qok")
        for k in range(4): e(f"v_and_b32 v{Q+k}, s{MSK}, v{Q+k}")
        swapred(e, 32, [(Q, Q + 2), (Q + 1, Q + 3)])
        a, b = Q, Q + 1
        e(f"v_cvt_pk_bf16_f32 v{b}, v{a}, v{b}")
        e(f"s_cmp_lt_u32 s3, {3*NH}"); e("s_cbranch_scc1 Lqh")
        e(f"v_lshlrev_b32 v{a}, 16, v{b}"); e(f"v_and_b32 v{b}, s13, v{b}")
        e(f"v_lshlrev_b32 v9, 16, v{B1R}"); e(f"v_and_b32 v10, s13, v{B1R}")
        e(f"v_add_f32 v{a}, v{a}, v9"); e(f"v_add_f32 v{b}, v{b}, v10")
        e(f"v_cvt_pk_bf16_f32 v{b}, v{a}, v{b}"); e(f"v_lshlrev_b32 v{a}, 16, v{b}"); e(f"v_and_b32 v{b}, s13, v{b}")
        e(f"v_max_f32 v{a}, 0, v{a}"); e(f"v_max_f32 v{b}, 0, v{b}")
        e(f"v_mul_f32 v{a}, v{a}, v{a}"); e(f"v_mul_f32 v{b}, v{b}, v{b}")
        e(f"v_cvt_pk_bf16_f32 v{b}, v{a}, v{b}")
        e.label("Lqh")
        e("s_mul_i32 s80, s3, 43"); e("s_lshr_b32 s80, s80, 7"); e("s_mul_i32 s80, s80, 3"); e("s_add_u32 s80, s80, s3"); e("s_lshl_b32 s80, s80, 7")
        e("v_bfe_u32 v9, v1, 4, 1"); e("v_mul_u32_u24 v9, 384, v9"); e(f"v_add3_u32 v10, s80, v9, v{Q+7}")
        e("v_and_b32 v6, 7, v1"); e("v_lshlrev_b32 v6, 4, v6")
        e(f"s_cmp_gt_u32 s3, {3*NH}"); e("s_cbranch_scc1 Lqw")
        e(f"ds_write_b32 v10, v{b} offset:{QB}")
        e.label("Lqw")
        e("s_waitcnt lgkmcnt(0)"); e("s_barrier")
        q_read(0)
        state["q"] = True
        stamp("q")

    def post_ops(a, b):
        ops = []
        for m in ("quad_perm:[1,0,3,2]", "quad_perm:[2,3,0,1]", "row_half_mirror"):
            for r in (a, b): ops.append(f"v_add_f32_dpp v{r}, v{r}, v{r} {m} {DPPF}")
        ops += [f"v_cvt_pk_bf16_f32 v{b}, v{a}, v{b}", f"v_lshlrev_b32 v{a}, 16, v{b}", f"v_and_b32 v{b}, s13, v{b}",
                f"v_mul_f32 v{a}, s14, v{a}", f"v_mul_f32 v{b}, s14, v{b}",
                f"v_cvt_pk_bf16_f32 v{b}, v{a}, v{b}", f"v_lshlrev_b32 v{a}, 16, v{b}", f"v_and_b32 v{b}, s13, v{b}",
                f"v_max3_f32 v7, v7, v{a}, v{b}"]
        return ops
    def drain_pend(n):
        for _ in range(min(n, len(pend))):
            x = pend.pop(0)
            if callable(x): x()
            else: e(x)
        while pend and callable(pend[0]): pend.pop(0)()
    def stat_ops(r):
        L = []; A = L.append
        A(f"v_max_f32_dpp v7, v7, v7 row_ror:8 {DPPF}"); allred_rows(A, "v_max_f32", 7, 14)
        A("v_mul_f32 v3, s15, v7")
        ts = list(range(r * gpr, (r + 1) * gpr))
        for c in range(0, gpr, 4):
            tc = ts[c:c + 4]
            for t in tc: A(f"v_fma_f32 v{SC+t}, v{SC+t}, s15, -v3")
            for t in tc: A(f"v_exp_f32 v{SC+t}, v{SC+t}")
            for t in tc: A(f"v_add_f32 v8, v8, v{SC+t}" if t != ts[0] else f"v_mov_b32 v8, v{SC+t}")
            for t in tc: A(f"v_cvt_pk_bf16_f32 v{SC+t}, v{SC+t}, 0")
        A(f"v_add_f32_dpp v8, v8, v8 row_ror:8 {DPPF}"); allred_rows(A, "v_add_f32", 8, 14)
        A("v_lshlrev_b32 v14, 3, s3" .replace("v_lshlrev_b32 v14, 3, s3", "v_lshlrev_b32_e64 v14, 3, s3"))
        A(f"ds_write_b32 v14, v7 offset:{MX+64*r}"); A(f"ds_write_b32 v14, v8 offset:{MX+64*r+4}")
        A("v_mov_b32 v7, 0xff800000")
        def done():
            state["st"] = r + 1
            if r == NR - 1: state["needbar"] = True
        A(done)
        return L
    def k_part(ent):
        t, r, ids, j = ent
        a = SC + t
        assert t < 27 or state["f2"] >= 1
        assert state["qreg"] == t // gpr
        if state["qwait"]: e("s_waitcnt lgkmcnt(0)"); state["qwait"] = False
        if j == 0: e(f"v_mov_b32 v{a}, 0")
        for dw in range(4):
            e(f"v_dot2c_f32_bf16 v{a}, v{r+4*j+dw}, v{Q+4*j+dw}")
            if dw or j: drain_pend(1 if len(pend) < 20 else 3)
        ent[3] += 1
        if ent[3] == 3:
            free(r); state["kdone"] += 1
            if t % 2 == 1: pend.extend(post_ops(a - 1, a))
            if t % gpr == gpr - 1:
                pend.extend(stat_ops(t // gpr))
                if t < 31: q_read(t // gpr + 1)
    def phi(t): return 253 if t < 32 - W else SC + 16 + t - (32 - W)
    def v_part(ent):
        n, r, ids, k = ent
        t, j = vl[3 * n + k]
        plo = SC + t
        rg = t // gpr
        assert state["st"] > rg
        assert rg == 0 or (rg - 1, j) in Adone
        if j == 0: e(f"v_lshlrev_b32 v{phi(t)}, 16, v{plo}")
        for dw in range(4):
            e(f"v_dot2c_f32_bf16 v{ACC+8*j+2*dw}, v{r+4*k+dw}, v{plo}")
            e(f"v_dot2c_f32_bf16 v{ACC+8*j+2*dw+1}, v{r+4*k+dw}, v{phi(t)}")
        ent[3] += 1; vcnt[(rg, j)] = vcnt.get((rg, j), 0) + 1
        if ent[3] == 3:
            free(r); state["vdone"] += 1
        if vcnt[(rg, j)] == gpr and (rg, j) != (NR - 1, 2): step_A(rg, j)
    YB = [Q, SC]
    def step_A(r, j):
        assert state["ml"] == 2 and state["addr"]
        assert r < 2 or (r - 2, j) in Bdone
        assert r < NR - 1 or state["m"] == 3
        a = ACC + 8 * j
        swapred_pk(e, 32, a, a + 4, 4); swapred_pk(e, 16, a, a + 2, 2)
        e(f"v_add_f32_dpp v{a+2}, v{a}, v{a} row_ror:8 row_mask:0xf bank_mask:0x3")
        e(f"v_add_f32_dpp v{a+2}, v{a+1}, v{a+1} row_ror:8 row_mask:0xf bank_mask:0xc")
        e(f"v_mul_f32 v9, s{SF[r]}, v{a+2}"); e(f"ds_write_b32 v10, v9 offset:{OP+8*OST*(r&1)+256*j}")
        if r < NR - 1:
            for x in range(0, 8, 2): e(f"v_mov_b64 v[{a+x}:{a+x+1}], 0")
        Adone.append((r, j)); Bq.append((r, j))
        if r == NR - 1 or j == 2: state["needbar"] = True
    def b_ready(r, j):
        return (r, j) in Abar and state["m"] == 3 and all((r >> 1, j, p_, 4) in LO for p_ in range(4)) and (state["y1z"] or not r & 1)
    def step_B(r, j):
        assert not pend and b_ready(r, j)
        Bq.remove((r, j)); Bdone.add((r, j))
        e(f"ds_read_b32 v9, v11 offset:{OP+8*OST*(r&1)+256*j}")
        e("s_waitcnt lgkmcnt(0)")
        allred8(e, "v_add_f32", [9])
        if r < NR - 1: e(f"v_mul_f32 v9, s{SCO[r]}, v9")
        e(f"v_mov_b32_dpp v14, v9 row_ror:8 {DPPF}"); e(f"v_cvt_pk_bf16_f32 v9, v9, v14")
        for p_ in range(4): e(f"v_readlane_b32 s{16+p_}, v9, {16*p_}")
        Y = YB[r & 1]; hs = r >> 1
        for p_ in range(4):
            for dw in range(5):
                pend.append(f"v_dot2c_f32_bf16 v{Y+2*dw}, s{16+p_}, v{LO[(hs,j,p_,dw)]}")
                pend.append(f"v_dot2c_f32_bf16 v{Y+2*dw+1}, s{16+p_}, v{HI[(hs,j,p_,dw)]}")
            pend.append(lambda p_=p_: Bfin.add((r, j, p_)))
    def y_write(b):
        Y = YB[b]
        e(f"ds_write_b128 v12, v[{Y}:{Y+3}] offset:{YP+2560*b}"); e(f"ds_write_b128 v12, v[{Y+4}:{Y+7}] offset:{YP+2560*b+16}")
        e(f"ds_write_b64 v6, v[{Y+8}:{Y+9}] offset:{YP+2560*b+2048}")
    def shadow():
        if pend: drain_pend(P["bdrain"]); return True
        for rj in Bq:
            if b_ready(*rj): step_B(*rj); return True
        if not state["y0"] and all((NR - 2, j, 3) in Bfin for j in range(3)):
            y_write(0); state["y0"] = True; return True
        return False
    def tail_addr():
        e("v_and_b32 v10, 7, v1"); e(f"v_mul_u32_u24 v11, {OST}, v10"); e("v_lshlrev_b32 v10, 5, v10")
        e("v_bfe_u32 v9, v1, 5, 1"); e("v_lshl_add_u32 v10, v9, 4, v10")
        e("v_bfe_u32 v9, v1, 3, 2"); e("v_lshl_add_u32 v10, v9, 2, v10")
        e(f"s_mul_i32 s80, s3, {OST}"); e("v_add_u32 v10, s80, v10")
        e("v_lshrrev_b32 v9, 3, v1"); e("v_lshl_add_u32 v11, v9, 2, v11")
        e("s_lshl_b32 s80, s3, 5"); e("v_add_u32 v11, s80, v11")
        e("v_and_b32 v12, 15, v1"); e("v_lshlrev_b32 v8, 5, v12"); e("v_lshlrev_b32 v3, 1, v12")
        e("s_mul_i32 s80, s3, 5120"); e("v_lshl_add_u32 v12, v1, 5, s80"); e("v_lshl_add_u32 v6, v1, 3, s80")
        e("s_mul_i32 s80, s3, 320"); e("v_lshl_add_u32 v13, v1, 4, s80")
        e("v_lshrrev_b32 v9, 5, v1"); e("v_lshl_add_u32 v13, v9, 11, v13")
        e("s_mul_i32 s11, s7, 5120"); e(f"s_add_u32 s11, s11, {Y_OFF}")
        e(f"s_mul_i32 s22, s42, 2560"); e("s_add_u32 s22, s22, s43"); e(f"s_add_u32 s22, s22, {Y_OFF}")
        e(f"s_add_u32 s5, s22, {128*5120}")
        e("s_mul_i32 s23, s42, 1280"); e("s_lshr_b32 s80, s43, 1"); e("s_add_u32 s23, s23, s80")
        state["addr"] = True

    def f2a():
        inflight["F"].pop(0)
        e("v_lshrrev_b32 v9, 3, v1"); e("s_lshl_b32 s80, s3, 4"); e("v_lshl_add_u32 v9, v9, 1, s80")
        e(f"ds_read_u16 v12, v9 offset:{HB}"); e(f"ds_read_u16 v13, v9 offset:{HB+384}")
        for r in range(ACC, ACC + 16): e(f"v_mov_b32 v{r}, 0")
        e("s_waitcnt lgkmcnt(0)")
        tile_dots(W2R, 12, 13)
        tile_reduce(FP)
        e("s_waitcnt lgkmcnt(0)")
        state["f2"] = 1
        if not P["bar"]:
            e("s_barrier"); state["f2"] = 2
    def f2b():
        e(f"s_cmp_eq_u32 s3, {P['pubw']}"); e(f"s_cselect_b32 s81, s26, {OOB}")
        tile_publish(FP, "s81", True)
        for r in range(ACC + 23, ACC - 1, -1): e(f"v_mov_b32 v{r}, 0")
        e("v_and_b32 v15, 3, v1"); e("v_lshlrev_b32 v15, 7, v15"); e("v_bfe_u32 v9, v1, 5, 1"); e("v_lshl_add_u32 v15, v9, 6, v15")
        e("v_bfe_u32 v9, v1, 4, 1"); e("v_lshl_add_u32 v15, v9, 5, v15"); e("s_lshl_b32 s80, s3, 2"); e("v_add_u32 v15, s80, v15")
        state["f2"] = 3

    def transition():
        assert state["f2"] == 3
        while state["st"] < 1: drain_pend(1)
        for r in range(Q, Q + 10, 2): e(f"v_mov_b64 v[{r}:{r+1}], 0")
        state["p"] = True
        stamp("trans")

    def ml_publish():
        e("v_and_b32 v9, 31, v1"); e("v_lshlrev_b32 v9, 3, v9")
        e(f"ds_read_b64 v[12:13], v9 offset:{MX}")
        e("s_lshl_b32 s81, s7, 6"); e(f"s_add_u32 s81, s81, {ML_OFF}"); e(f"s_cmp_eq_u32 s3, {P['pubw']}"); e(f"s_cselect_b32 s80, s81, {OOB}")
        e("v_lshrrev_b32 v9, 2, v9")
        for r in range(NR): e(f"s_add_u32 s{SF[r]}, s3, {8*r}")
        e("s_waitcnt lgkmcnt(0)")
        e("v_mov_b32 v10, v12"); allred8(e, "v_max_f32", [10])
        e("v_sub_f32 v12, v12, v10"); e("v_mul_f32 v12, s15, v12"); e("v_exp_f32 v11, v12"); e("v_mul_f32 v12, v11, v13")
        for r in range(NR): e(f"v_readlane_b32 s{SF[r]}, v11, s{SF[r]}")
        allred8(e, "v_add_f32", [12])
        e(f"v_mov_b32 v11, s{TAG}"); e(f"v_mov_b32 v13, s{TAG}")
        e(f"s_mov_b64 exec, {0x01010101 if NR == 4 else 0x0101}")
        e.vm(f"buffer_store_dwordx4 v[10:13], v9, {S(SWS)}, s80 offen {SC1}")
        e("s_mov_b64 exec, -1"); e("s_nop 0")
        state["ml"] = 2
        stamp("mlpub")

    def m_step():
        inflight["M"].pop(0)
        e(f"s_cmp_lg_u32 s3, {P['mw']}"); e("s_cbranch_scc1 Lm_skip")
        def cmp(E):
            E(f"v_cmp_ne_u32 vcc, s{TAG}, v{MR+1}"); E(f"v_cmp_ne_u32 s[80:81], s{TAG}, v{MR+3}"); E("s_or_b64 vcc, vcc, s[80:81]")
        tagcheck("m", cmp, m_loads, False)
        m, l, t0, t1 = MR, MR + 2, MR + 1, MR + 3
        steps = ["quad_perm:[1,0,3,2]", "quad_perm:[2,3,0,1]", "row_half_mirror"] + (["row_mirror"] if G == 16 else [])
        for i, md in enumerate(steps): e(f"v_max_f32_dpp v{t0}, v{t0 if i else m}, v{t0 if i else m} {md} {DPPF}")
        e(f"v_sub_f32 v{t0}, v{m}, v{t0}"); e(f"v_mul_f32 v{t0}, s15, v{t0}"); e(f"v_exp_f32 v{t0}, v{t0}")
        e(f"v_mul_f32 v{t1}, v{t0}, v{l}")
        for md in steps: e(f"v_add_f32_dpp v{t1}, v{t1}, v{t1} {md} {DPPF}")
        e(f"v_rcp_f32 v{t1}, v{t1}"); e(f"v_mul_f32 v{t0}, v{t0}, v{t1}")
        e(f"v_lshlrev_b32 v{t1}, 2, v1")
        e(f"ds_write_b32 v{t1}, v{t0} offset:{FP}")
        e.label("Lm_skip")
        state["m"] = 1; state["needbar"] = True
        stamp("mstep")
    def c_get():
        e("v_and_b32 v9, 3, v1"); e("v_lshlrev_b32 v9, 6, v9"); e("s_lshl_b32 s80, s6, 2"); e("v_add_u32 v9, s80, v9")
        e(f"ds_read_b32 v9, v9 offset:{FP}"); e("s_waitcnt lgkmcnt(0)")
        for r in range(NR - 1): e(f"v_readlane_b32 s{SCO[r]}, v9, {r}")
        e(f"v_mul_f32 v9, s{SF[NR-1]}, v9"); e(f"v_readlane_b32 s{SF[NR-1]}, v9, {NR-1}")
        state["m"] = 3

    def col_reduce(a, base):
        swapred(e, 32, [(a, a + 2), (a + 1, a + 3)])
        swapred(e, 16, [(a, a + 1)])
        e(f"v_add_f32_dpp v{a}, v{a}, v{a} row_ror:8 {DPPF}"); e(f"v_add_f32_dpp v{a}, v{a}, v{a} row_ror:4 {DPPF}")
        e(f"ds_write_b32 v15, v{a} offset:{base}")
    def g_step():
        inflight["G"].pop(0)
        def cmp(E):
            cmp_tag(E, GR, 9, 14); E("s_and_b64 vcc, vcc, 0xfff")
        tagcheck("g", cmp, g_loads, True)
        for k in range(4): e(f"v_and_b32 v{GR+k}, s{MSK}, v{GR+k}")
        col_reduce(GR, GP)
        state["g"] = True

    def operm(n, r):
        hs, n_ = divmod(n, 12)
        j_, p_ = n_ // 4, n_ % 4
        f = 252
        for dw in range(5):
            a, b = (r + dw, r + 4 + dw) if dw < 4 else (r + 8, r + 9)
            e(f"v_perm_b32 v{f}, v{b}, v{a}, s20"); e(f"v_perm_b32 v{b}, v{b}, v{a}, s21")
            LO[(hs, j_, p_, dw)] = f; HI[(hs, j_, p_, dw)] = b
            f = a
        e(f"v_mov_b32 v{f}, v252"); LO[(hs, j_, p_, 0)] = f

    def run_ready():
        if inflight["Q"] and e.landed(inflight["Q"][0][2][-1]): q_final()
        np_ = 0
        while state["q"] and inflight["K"] and np_ < P["maxparts"]:
            ent = inflight["K"][0]
            if ent[3] >= len(ent[2]) or not e.landed(ent[2][ent[3]]): break
            k_part(ent); np_ += 1
            if ent[3] == 3: inflight["K"].pop(0)
        if state["q"] and state["f2"] == 0 and state["kdone"] >= P["f2_at"]: f2a()
        elif state["f2"] == 2: f2b()
        while inflight["O"] and e.landed(inflight["O"][0][2][-1]):
            n, r, ids = inflight["O"].pop(0); operm(n, r)
        if state["kdone"] == 32 and not state["p"]: transition()
        while state["p"] and inflight["V"]:
            ent = inflight["V"][0]
            if ent[3] >= len(ent[2]) or not e.landed(ent[2][ent[3]]): break
            v_part(ent)
            if ent[3] == 3: inflight["V"].pop(0)
        if state["p"]:
            if state["ml"] == 1: ml_publish()
            elif state["ml"] == 2 and not state["addr"]: tail_addr()
            elif state["m"] == 2: c_get()
            elif state["m"] == 3 and state["vdone"] >= 10 and not state["y1z"]:
                for r in range(SC, SC + 10, 2): e(f"v_mov_b64 v[{r}:{r+1}], 0")
                state["y1z"] = True
            else: shadow()
        if inflight["M"] and e.landed(inflight["M"][0][2][-1]): m_step()
        if inflight["G"] and e.landed(inflight["G"][0][2][-1]): g_step()

    late_setup()
    issue_next(P["pk0"])
    layernorm(); w_phase()
    pacing[0] = True
    items.insert(0, ("F", 0))
    items.insert(1 + P["qdelay"], ("Q", 0))
    while items:
        it = items.pop(0)
        issue(it)
        run_ready()
        if it[0] in "KV" and P["bar"] and state["q"]:
            pos = it[1] + (32 if it[0] == "V" else 0)
            if (pos % P["bar"] == P["bar"] - 1 and pos < P["barend"]) or state["needbar"]:
                if state["needbar"]:
                    e("s_waitcnt lgkmcnt(0)"); Abar.update(Adone); state["needbar"] = False
                    if state["m"] == 1: state["m"] = 2
                    if state["st"] == NR and state["ml"] == 0: state["ml"] = 1
                e("s_barrier")
                if state["f2"] == 1: state["f2"] = 2
            if NH == 2:
                for k in range(P["o2n"]):
                    n_ = state["o2"] - 12
                    if n_ < 12 and all((r, n_ // 4, n_ % 4) in Bfin for r in (0, 1)):
                        items.insert(k, ("O", state["o2"])); state["o2"] += 1
    assert state["g"] and state["m"] == 3 and state["addr"]
    e(f"s_mov_b32 s101, {SPIN}")
    assert not inflight["K"] and state["p"] and not inflight["O"]
    assert (NR - 1, 1) in Abar, state
    while inflight["V"]:
        v = inflight["V"][0]
        last = len(inflight["V"]) == 1 and v[3] == 2
        shadow()
        if last:
            nb = len(e.L)
            while shadow(): pass
            print("leftover shadow lines before last V:", len(e.L) - nb, file=sys.stderr)
        e.wait_vm(v[2][v[3]]); v_part(v)
        if v[3] == 3: inflight["V"].pop(0)
    assert state["y0"] and not Bq and not pend
    stamp("vdone")
    step_A(NR - 1, 2); Abar.update(Adone)
    e("s_waitcnt lgkmcnt(0)"); e("s_barrier")
    stamp("tb1")
    step_B(NR - 1, 2); drain_pend(99)
    stamp("tdots")
    y_write(1)
    e("s_mov_b32 exec_lo, 0xfffff"); e("s_mov_b32 exec_hi, 0xfffff")
    e("s_waitcnt lgkmcnt(0)"); e("s_barrier")
    stamp("tb2")
    for w in range(8): e(f"ds_read_b128 v[{BUF0+4*w}:{BUF0+4*w+3}], v13 offset:{YP+5120*w}")
    for w in range(1, 8):
        e(f"s_waitcnt lgkmcnt({7-w})")
        for k in (0, 2): e(f"v_pk_add_f32 v[{BUF0+k}:{BUF0+k+1}], v[{BUF0+k}:{BUF0+k+1}], v[{BUF0+4*w+k}:{BUF0+4*w+k+1}]")
    put_tag(e, BUF0)
    e.vm(f"buffer_store_dwordx4 v[{BUF0}:{BUF0+3}], v13, {S(SWS)}, s11 offen {SC1}")
    e("s_mov_b64 exec, -1")
    stamp("ystore")
    if stamps and "yack" in smap:
        e("s_waitcnt vmcnt(0)"); stamp("yack")
    e("s_cmp_eq_u32 s100, 0"); e("s_cbranch_scc1 LA_fin")
    B = BUF0 + 32
    def pload():
        e(f"buffer_load_dwordx4 v[{B}:{B+3}], v0, {S(SWS)}, s22 offen {SC1}")
        e(f"buffer_load_dwordx4 v[{B+4}:{B+7}], v0, {S(SWS)}, s5 offen {SC1}")
    def pk(op, a, b, c): e(f"v_pk_{op}_f32 v[{a}:{a+1}], v[{b}:{b+1}], v[{c}:{c+1}]")
    def sum8(r):
        pk("add", r, r, r + 4); pk("add", r + 2, r + 2, r + 6); pk("add", r, r, r + 2); e(f"v_add_f32 v{r}, v{r}, v{r+1}")
    pload()
    g = ACC
    e(f"ds_read_b128 v[{g}:{g+3}], v8 offset:{GP}"); e(f"ds_read_b128 v[{g+4}:{g+7}], v8 offset:{GP+16}")
    e(f"v_lshlrev_b32 v{B2V}, 16, v{B2V}"); e(f"v_lshlrev_b32 v{XV}, 16, v{XV}")
    e("s_waitcnt lgkmcnt(0)")
    sum8(g)
    bf16r(e, g); e(f"v_add_f32 v{g}, v{g}, v{B2V}"); bf16r(e, g)
    e(f"v_mul_f32 v9, s15, v{g}"); e("v_exp_f32 v9, -v9"); e("v_add_f32 v9, 1.0, v9"); e("v_rcp_f32 v9, v9")
    e(f"v_mul_f32 v{g}, v{g}, v9"); bf16r(e, g)
    e.label("Lpoll")
    e("s_waitcnt vmcnt(1)")
    cmp_tag(e, B, 9, 10); e("s_mov_b64 s[80:81], vcc")
    e("s_waitcnt vmcnt(0)")
    cmp_tag(e, B + 4, 9, 10)
    e("s_or_b64 exec, vcc, s[80:81]"); e("s_cbranch_scc0 Lpoll_done")
    e("s_sub_u32 s101, s101, 1"); e("s_cbranch_scc1 Lpoll_done")
    pload()
    e("s_branch Lpoll")
    e.label("Lpoll_done")
    e("s_mov_b64 exec, -1")
    stamp("pdone")
    for k in range(8): e(f"v_and_b32 v{B+k}, s{MSK}, v{B+k}")
    pk("add", B, B, B + 4); pk("add", B + 2, B + 2, B + 6)
    swapred_pk(e, 32, B, B + 2, 2)
    swapred(e, 16, [(B, B + 1)])
    e(f"v_add_f32_dpp v{B}, v{B}, v{B} row_ror:8 {DPPF}"); e(f"v_add_f32_dpp v{B}, v{B}, v{B} row_ror:4 {DPPF}")
    e(f"ds_write_b32 v15, v{B} offset:{SP}")
    e("s_cmp_lg_u32 s3, 0")
    e("s_waitcnt lgkmcnt(0)"); e("s_barrier")
    stamp("cbar")
    e("s_cbranch_scc1 LA_fin")
    e(f"ds_read_b128 v[{B}:{B+3}], v8 offset:{SP}"); e(f"ds_read_b128 v[{B+4}:{B+7}], v8 offset:{SP+16}")
    e("s_waitcnt lgkmcnt(0)")
    sum8(B)
    bf16r(e, B); e(f"v_mul_f32 v{B}, v{B}, v{g}"); bf16r(e, B); e(f"v_add_f32 v{B}, v{B}, v{XV}")
    e(f"v_cvt_pk_bf16_f32 v{B}, v{B}, v{B}")
    e("s_mov_b64 exec, 0xffff")
    e(f"buffer_store_short v{B}, v3, {S(SOUT)}, s23 offen {P['polout']}")
    stamp("ostore")
    e("s_cmp_lg_u32 s2, 0"); e("s_cbranch_scc1 LA_fin")
    e(f"v_mov_b32 v9, s{TAG}"); e("s_mov_b64 exec, 1")
    e(f"buffer_store_dword v9, off, {S(SWS)}, 0 offset:{EP_OFF} {SC1}")
    e.label("LA_fin")
    if P["fixend"]:
        e("s_cmp_lg_u32 s2, 0"); e("s_cbranch_scc1 LA_done"); e("s_cmp_lg_u32 s3, 0"); e("s_cbranch_scc1 LA_done")
        e("s_waitcnt vmcnt(0)"); e("s_memrealtime s[86:87]"); e("s_waitcnt lgkmcnt(0)"); e("s_sub_u32 s86, s86, s84")
        e("s_mov_b32 s40, s38"); e("s_mov_b32 s41, s39"); e("s_mov_b32 s42, 256"); e("s_mov_b32 s43, 0x20000")
        e("s_mov_b64 exec, 1"); e("v_mov_b32 v9, s86"); e("buffer_store_dword v9, off, s[40:43], 0")
        e.label("Lfix"); e("s_memrealtime s[86:87]"); e("s_waitcnt lgkmcnt(0)"); e("s_sub_u32 s86, s86, s84")
        e(f"s_cmp_lt_u32 s86, {P['fixend']}"); e("s_cbranch_scc1 Lfix")
    if stamps:
        e(f"s_cmp_lg_u32 s3, {P['sw']}"); e("s_cbranch_scc1 LA_done")
        e("s_mov_b64 exec, 1")
        e("s_waitcnt vmcnt(0)")
        stamp("end")
        e("s_add_u32 s40, s40, 0x10000000"); e("s_addc_u32 s41, s41, 0"); e("s_mov_b32 s42, 0x100000"); e("s_mov_b32 s43, 0x20000")
        e("s_getreg_b32 s85, hwreg(HW_REG_XCC_ID)")
        if "polls" in smap:
            k = 84 + 2 * int(smap["polls"])
            e(f"s_sub_u32 s{k}, {SPIN}, s101"); e(f"s_mul_i32 s{k}, s{k}, 100"); e(f"s_add_u32 s{k}, s{k}, s84")
        for k in range(16): e(f"v_mov_b32 v{16+k}, s{84+k}")
        e("s_lshl_b32 s80, s2, 6"); e("v_mov_b32 v1, s80")
        for k in range(4): e(f"buffer_store_dwordx4 v[{16+4*k}:{19+4*k}], v1, s[40:43], 0 offen offset:{16*k}")
    e.label("LA_done")
    e("s_endpgm")
    return e.text() + slow.text() + "    s_endpgm\n"

def desc(name, vgpr, sgpr):
    return f""".amdhsa_kernel {name}
  .amdhsa_next_free_vgpr {vgpr}
  .amdhsa_next_free_sgpr {sgpr}
  .amdhsa_accum_offset {vgpr}
  .amdhsa_group_segment_fixed_size 0
  .amdhsa_kernarg_size 104
  .amdhsa_user_sgpr_count 2
  .amdhsa_user_sgpr_kernarg_segment_ptr 1
  .amdhsa_system_sgpr_workgroup_id_x 1
  .amdhsa_float_denorm_mode_32 3
.end_amdhsa_kernel
"""

DEF = dict(abl="", sm="q:1,trans:2,vdone:3,qpub:4,ystore:5,polls:6,end:7", sw=0, bar=2, barend=62,
           pf=-1, polp='', NR=4, rotS=2, rotM=85, mw=1, g_at=17, o2n=2, DP=4, DK=3, DV=3, DE=3, de_at=999, W=6, bdrain=16, polout='', wo_start=14, wo_every=2, polw="nt", polo="", sc="sc1", maxparts=6,
           pk0=2, pk1=1, qdelay=3, f2_at=12, m_at=6, pubw=0, fixend=0)

def build(**kw):
    P = dict(DEF); P.update(kw)
    a = kernel(P)
    s = HEADER
    s += f"; @launch grid=(256,1,1) block=(512,1,1) lds={LDS_A}\n"
    s += '.amdgcn_target "amdgcn-amd-amdhsa--gfx950"\n.text\n'
    s += f".globl {KN}_kernel\n.p2align 8\n.type {KN}_kernel,@function\n{KN}_kernel:\n" + a
    s += '.section .rodata,"a"\n.p2align 6\n' + desc(KN + "_kernel", 256, 102)
    return s

if __name__ == "__main__":
    out = sys.argv[1]
    kw = {}
    for a in sys.argv[2:]:
        k, v = a.split("=", 1)
        kw[k] = int(v) if v.lstrip("-").isdigit() else v.replace("+", " ")
    open(out, "w").write(build(**kw))
```

```python
import sys, struct
from em import Em
KN = "recurrent_scan__gqa_block_cached__dense_activation_squared_relu__decode"
R = 8192 * 384
def f32(x): return "0x%08x" % struct.unpack("<I", struct.pack("<f", x))[0]
LOG2E = 1.4426950408889634
XN, TP, QB, MX, FP, YP, GP, SP, CO, OP = 0, 2560, 6656, 8960, 9216, 0, 40960, 41472, 41984, 42048
OST = 800
LDS_A = OP + 2 * 8 * OST
EP_OFF, ML_OFF, PX_OFF, G_OFF, Y_OFF, X_OFF, WS_SIZE = 0, 0x1000, 0x10000, 0x30000, 0x50000, 0x190000, 0x200000
KVTOT = 64 * R
SLAB = 245760
OOB = 0x40000000
DPPF = "row_mask:0xf bank_mask:0xf"
SPIN = 200000

HEADER = open("cdna_kernels/" + KN + ".s.ref").read().split("; Override launch")[0]

def allred8(e, op, rs):
    for m in ("quad_perm:[1,0,3,2]", "quad_perm:[2,3,0,1]", "row_half_mirror"):
        for r in rs: e(f"{op}_dpp v{r}, v{r}, v{r} {m} {DPPF}")
def allred_rows(e, op, r, t):
    for k in (16, 32):
        e(f"v_mov_b32 v{t}, v{r}"); e(f"v_permlane{k}_swap_b32 v{r}, v{t}"); e(f"{op} v{r}, v{r}, v{t}")
def swapred(e, kind, pairs):
    for a, b in pairs: e(f"v_permlane{kind}_swap_b32 v{a}, v{b}")
    for a, b in pairs: e(f"v_add_f32 v{a}, v{a}, v{b}")
def swapred_pk(e, kind, a, b, n):
    for x in range(n): e(f"v_permlane{kind}_swap_b32 v{a+x}, v{b+x}")
    for x in range(0, n, 2): e(f"v_pk_add_f32 v[{a+x}:{a+x+1}], v[{a+x}:{a+x+1}], v[{b+x}:{b+x+1}]")
def srd(e, d, lo, hi, size, addlo=None):
    if addlo is None:
        e(f"s_mov_b32 s{d}, s{lo}"); e(f"s_mov_b32 s{d+1}, s{hi}")
    else:
        e(f"s_add_u32 s{d}, s{lo}, {addlo}"); e(f"s_addc_u32 s{d+1}, s{hi}, 0")
    e(f"s_mov_b32 s{d+2}, {size}"); e(f"s_mov_b32 s{d+3}, 0x20000")
def bf16r(e, r):
    e(f"v_cvt_pk_bf16_f32 v{r}, v{r}, v{r}"); e(f"v_and_b32 v{r}, s13, v{r}")

def kernel(P):
    wo_start, wo_every = P["wo_start"], P["wo_every"]
    NR = 2; NH = NR // 2; G = 4 * NR; gpr = 32 // NR
    HB = QB + 768 * NH
    SF, SCO = [28, 29, 30, 31], [32, 33, 24, 25]
    polw, polo, SC1 = P["polw"], P["polo"], P["sc"]
    stamps = P.get("stamps", False)
    abl = P["abl"]
    e = Em(); slow = Em()
    ACC, Q, SC, BUF0, NBUF = 16, 40, 52, 84, 14
    SK, SV, SWQ, SWO, SX, SB1, SW2, SWS = 44, 48, 52, 56, 60, 64, 68, 76
    SB2, SOUT = SWQ, SB1
    TAG, SEL, MSK = 75, 72, 73
    XV, B2V = 254, 255
    def S(d): return f"s[{d}:{d+3}]"
    smap = dict(kv.split(":") for kv in P["sm"].split(","))
    def stamp(name):
        if stamps and name in smap:
            k = int(smap[name]); e(f"s_memrealtime s[{84+2*k}:{85+2*k}]"); e("s_waitcnt lgkmcnt(0)")
    e("s_cmp_ge_u32 s2, 256"); e("s_cbranch_scc1 LA_done")
    e("s_load_dwordx16 s[16:31], s[0:1], 0")
    e("s_load_dwordx8 s[32:39], s[0:1], 64")
    e("s_load_dwordx2 s[40:41], s[0:1], 96")
    if stamps or P["fixend"]: e("s_memrealtime s[84:85]")
    e("v_lshrrev_b32 v9, 6, v0"); e("v_and_b32 v1, 63, v0"); e("v_readfirstlane_b32 s3, v9")
    e("s_and_b32 s80, s2, 7"); e("s_lshr_b32 s81, s2, 3")
    e("s_lshr_b32 s82, s81, 3")
    if NH == 1: e("s_lshl2_add_u32 s4, s80, s82"); e("s_mov_b32 s5, s4")
    else:
        e("s_lshr_b32 s4, s81, 4"); e("s_lshl1_add_u32 s4, s80, s4"); e("s_and_b32 s5, s82, 1"); e("s_lshl4_add_u32 s5, s5, s4")
    e("s_and_b32 s83, s81, 7")
    e("s_cmp_ge_u32 s83, 3"); e("s_cselect_b32 s42, 1, 0"); e("s_mul_i32 s43, s42, 3"); e("s_sub_u32 s43, s83, s43")
    e("s_mul_i32 s100, s5, 3"); e("s_add_u32 s43, s43, s100")
    e("s_mul_i32 s100, s80, 3"); e("s_add_u32 s100, s100, s82")
    e("s_sub_u32 s101, s83, 6")
    e("s_cmp_eq_u32 s82, 3"); e(f"s_cselect_b32 s12, 0, {319*3072+128}")
    e("s_movk_i32 s10, 3072")
    e("s_cmp_lt_u32 s83, 6")
    e("s_cselect_b32 s42, s42, s101"); e("s_cselect_b32 s43, s43, s100"); e("s_cselect_b32 s10, 12288, s10")
    e(f"s_cselect_b32 s{SWQ+2}, {319*12288+128}, s12")
    e("s_mul_i32 s11, s42, 320"); e("s_mul_i32 s42, s11, s10"); e("s_mul_i32 s43, s43, 128")
    if "l" in abl:
        e("s_mul_i32 s42, s11, 128"); e("s_mul_i32 s43, s43, 640"); e("s_movk_i32 s10, 128"); e(f"s_min_u32 s{SWQ+2}, s{SWQ+2}, 40960"); e("s_cmp_lt_u32 s83, 6")
    e("v_lshrrev_b32 v9, 3, v0"); e("v_and_b32 v10, 7, v1"); e("v_lshlrev_b32 v10, 4, v10")
    e("v_mul_u32_u24 v3, s10, v9"); e("v_add_u32 v3, v3, v10")
    e("s_mul_i32 s12, s3, 1280")
    e("v_mul_u32_u24 v11, 20, v1"); e("v_add_u32 v11, s12, v11")
    e("s_mul_i32 s10, s10, 64")
    e("s_waitcnt lgkmcnt(0)")
    e("s_cselect_b32 s100, s22, s28"); e("s_cselect_b32 s101, s23, s29")
    srd(e, SX, 16, 17, 2560)
    if stamps:
        for k in range(1, 8): e(f"s_mov_b32 s{84+2*k}, s84")
    x0 = e.vm(f"buffer_load_dwordx4 v[12:15], v11, {S(SX)}, 0 offen")
    x1 = e.vm(f"buffer_load_dword v8, v11, {S(SX)}, 0 offen offset:16")
    e("s_add_u32 s42, s42, s43")
    e(f"s_add_u32 s{SWQ}, s100, s42"); e(f"s_addc_u32 s{SWQ+1}, s101, 0"); e(f"s_mov_b32 s{SWQ+3}, 0x20000")
    if "w" in abl: e(f"s_mov_b32 s{SWQ+2}, 0")
    wid = []
    for i in range(5):
        if i >= 2: e(f"s_mul_i32 s12, s10, {i}")
        so = "0" if i == 0 else ("s10" if i == 1 else "s12")
        wid.append(e.vm(f"buffer_load_dwordx4 v[{SC+4*i}:{SC+4*i+3}], v3, {S(SWQ)}, {so} offen {polw}"))
    e(f"s_load_dword s{TAG}, s[40:41], {EP_OFF}")
    e(f"s_and_b32 s6, s81, {G-1}")
    e("s_lshl_b32 s7, s80, 5"); e("s_add_u32 s7, s7, s81")
    e(f"s_mul_i32 s8, s4, {R}")
    e("v_lshrrev_b32 v9, 3, v1"); e("v_mul_u32_u24 v2, 384, v9"); e("v_add_u32 v2, v2, v10")
    e("s_lshl3_add_u32 s9, s6, s3")
    if P["rotM"]:
        e(f"s_lshr_b32 s82, s4, {P['rotS']}"); e(f"s_mul_i32 s82, s82, {P['rotM']}"); e("s_add_u32 s9, s9, s82")
    e("s_mul_i32 s9, s9, 3072"); e("s_add_u32 s9, s9, s8"); e(f"s_add_u32 s8, s8, {R}")
    srd(e, SK, 18, 19, KVTOT)

    def late_setup():
        srd(e, SV, 20, 21, KVTOT)
        e("s_sub_u32 s81, 31, s81"); e("s_mul_i32 s82, s81, 26"); e("s_lshr_b32 s82, s82, 8")
        e("s_mul_i32 s83, s82, 10"); e("s_sub_u32 s83, s81, s83")
        e("s_mul_i32 s74, s80, 3"); e("s_add_u32 s74, s74, s82")
        e(f"s_mul_i32 s81, s74, {64*1280}"); e("s_lshl_b32 s100, s83, %d" % (13 if "m" in abl else 7)); e("s_add_u32 s81, s81, s100")
        e("s_mul_i32 s26, s83, 24"); e("s_add_u32 s26, s26, s74"); e("s_lshl_b32 s26, s26, 9"); e(f"s_add_u32 s26, s26, {G_OFF}")
        e("s_lshl2_add_u32 s27, s80, s82"); e("s_lshl_b32 s27, s27, 12"); e(f"s_add_u32 s27, s27, {PX_OFF+6*512}")
        e("s_cmp_lt_u32 s82, 3")
        e("s_cselect_b32 s81, s81, 0"); e(f"s_cselect_b32 s100, {0 if 'w' in abl else (8192 if 'm' in abl else 63*1280+128)}, 0"); e(f"s_cselect_b32 s26, s26, {OOB}"); e("s_cselect_b32 s74, s74, 99")
        srd(e, SW2, 32, 33, "s100", "s81")
        e("s_mul_i32 s81, s4, 245760"); e("s_mul_i32 s12, s3, 10240")
        srd(e, SWO, 24, 25, 0 if "o" in abl else SLAB * (1 if NH == 1 else 17), "s81")
        srd(e, SB1, 30, 31, 3072)
        srd(e, SWS, 40, 41, 0 if "s" in abl else WS_SIZE)
        e("s_mov_b32 s13, 0xffff0000"); e(f"s_mov_b32 s14, {f32(192 ** -0.5)}"); e(f"s_mov_b32 s15, {f32(LOG2E)}")
        e(f"s_mov_b32 s{SEL}, 0x0c0c0400"); e(f"s_mov_b32 s{MSK}, 0xffffff00")
        e("s_cmp_lt_u32 s2, %d" % (0 if "c" in abl else 80)); e("s_cselect_b32 s100, 1, 0")
        e("s_cmp_ge_u32 s2, 40"); e("s_cselect_b32 s42, 1, 0"); e("s_mul_i32 s43, s42, 40"); e("s_sub_u32 s43, s2, s43"); e("s_lshl_b32 s43, s43, 6")
        e("v_lshlrev_b32 v4, 4, v1"); e("v_lshlrev_b32 v5, 2, v1")
        e("s_mov_b32 s20, 0x05040100"); e("s_mov_b32 s21, 0x07060302")
        e("v_mov_b32 v7, 0xff800000"); e("s_mov_b32 s32, 1")
        for r in range(ACC, ACC + 16): e(f"v_mov_b32 v{r}, 0")

    items = []
    on = 0
    W = P["W"]; assert W % 3 == 0
    vl = [(t, j) for t in range(32 - W) for j in range(3)] + [(t, j) for j in range(3) for t in range(32 - W, 32)]
    for pos in range(64):
        items.append(("K", pos) if pos < 32 else ("V", pos - 32))
        if pos >= wo_start and (pos - wo_start) % wo_every == 0 and on < 12:
            items.append(("O", on)); on += 1
        if pos == 32 + P["m_at"]: items.append(("M", 0))
        if pos == 32 + P["g_at"]: items.append(("G", 0))
        if pos == 32 + P["x_at"]: items.append(("X", 0))
    assert on == 12, on
    if P["pf"] >= 0: items.insert(P["pf"], ("P", 0))
    pool = list(range(NBUF))
    def alloc(top=False):
        assert pool, "out of buffers"
        pool.sort(); return BUF0 + 12 * pool.pop(-1 if top else 0)
    def free(r): pool.append((r - BUF0) // 12)
    state = dict(addr=False, q=False, p=False, kdone=0, vdone=0, f2=0, st=0, ml=0, g=False, m=0, qreg=0, qwait=False, needbar=False, y0=0, x=0, o2=12)
    vcnt = {}; Adone = []; Abar = set(); Bq = []; Bdone = set(); Bfin = set()
    inflight = {k: [] for k in "KVOFQMGX"}
    stores = []
    pend = []
    LO = {}; HI = {}
    cur_so = [None]
    taken = set()
    heavy = []
    pacing = [False]
    def soff(base, const):
        key = (base, const)
        if cur_so[0] != key:
            e(f"s_add_u32 s10, s{base}, {const}"); cur_so[0] = key
    def kv_soff(t):
        key = ("kv", t)
        if cur_so[0] == key: return
        cur_so[0] = key
        r, tl = divmod(t, gpr)
        o = tl * G * 64 * 384; rc = ((r & 1) * 32 + (r >> 1) * 16) * R
        if P["rotM"]:
            e(f"s_add_u32 s10, s9, {o}"); e("s_cmp_ge_u32 s10, s8")
            e(f"s_cselect_b32 s83, {R}, 0"); e("s_sub_u32 s10, s10, s83")
            if rc: e(f"s_add_u32 s10, s10, {rc}")
        else: e(f"s_add_u32 s10, s9, {o+rc}")
    def q_loads(E):
        return [E.vm(f"buffer_load_dwordx4 v[{Q}:{Q+3}], v{Q+6}, {S(SWS)}, 0 offen {SC1}")]
    MR, GR, GA, XR = SC, SC + 4, SC + 8, SC
    def x_loads(E):
        E("s_mov_b32 exec_hi, 0xffff")
        i = E.vm(f"buffer_load_dwordx4 v[{XR}:{XR+3}], v4, {S(SWS)}, s27 offen {SC1}")
        E("s_mov_b32 exec_hi, -1")
        return [i]
    def m_loads(E):
        return [E.vm(f"buffer_load_dwordx4 v[{MR}:{MR+3}], v{MR+4}, {S(SWS)}, 0 offen {SC1}")]
    def g_loads(E):
        return [E.vm(f"buffer_load_dwordx4 v[{GR}:{GR+3}], v{GA}, {S(SWS)}, 0 offen {SC1}")]
    def hload(t):
        if pacing[0]:
            D = P["DV"] if state["p"] else (P["DK"] if state["q"] else P["DP"])
            if len(heavy) >= P["de_at"]: D = P["DE"]
            if D >= 10: D = D // 10 + (1 if (len(heavy) * (D % 10)) % 10 < D % 10 else 0)
            i = len(heavy) - D
            if i >= 0: e.wait_vm(heavy[i])
        i = e.vm(t); heavy.append(i); return i
    W2R, B1R = SC + 28, SC + 27
    def issue(it):
        kind, n = it
        if kind in "KV":
            stamp("g%d" % (n + (32 if kind == "V" else 0)))
            r = alloc()
            s = SK if kind == "K" else SV
            ent = [n, r, [], 0]
            inflight[kind].append(ent)
            for k in range(3):
                t, j = (n, k) if kind == "K" else vl[3 * n + k]
                kv_soff(t)
                ent[2].append(hload(f"buffer_load_dwordx4 v[{r+4*k}:{r+4*k+3}], v2, {S(s)}, s10 offen offset:{128*j} nt"))
                if pacing[0]: run_ready()
        elif kind == "O":
            hs, n_ = divmod(n, 12)
            r = BUF0 + 12 * NBUF - 10 * (n_ + 1)
            for bi in {(r - BUF0) // 12, (r + 9 - BUF0) // 12}:
                if bi in pool: pool.remove(bi); taken.add(bi)
                assert bi in taken, "wo landing buffer busy"
            j_, p_ = n_ // 4, n_ % 4
            soff(12, (64 * j_ + 2 * p_) * 1280 + hs * 16 * SLAB)
            ids = []
            for h in range(2):
                ids.append(e.vm(f"buffer_load_dwordx4 v[{r+4*h}:{r+4*h+3}], v4, {S(SWO)}, s10 offen offset:{1280*h} {polo}"))
                ids.append(e.vm(f"buffer_load_dword v{r+8+h}, v5, {S(SWO)}, s10 offen offset:{1280*h+1024} {polo}"))
            inflight[kind].append((n, r, ids))
        elif kind == "P":
            e("s_and_b32 s80, s6, 7"); e("s_lshl3_add_u32 s80, s80, s3"); e("s_mul_i32 s80, s80, 3840")
            if NH == 2:
                e("s_lshr_b32 s81, s6, 3"); e(f"s_mul_i32 s81, s81, {16*SLAB}"); e("s_add_u32 s80, s80, s81")
            for k in range(4):
                if k == 3: e("s_mov_b32 exec_hi, 0xffff")
                hload(f"buffer_load_dwordx4 v[248:251], v4, {S(SWO)}, s80 offen offset:{1024*k} {P['polp']}")
            e("s_mov_b32 exec_hi, -1")
        elif kind == "F":
            e("v_lshrrev_b32 v9, 3, v0"); e("v_mul_u32_u24 v9, %d, v9" % (128 if "m" in abl else 1280)); e("v_and_b32 v10, 7, v1"); e("v_lshl_add_u32 v9, v10, 4, v9")
            ids = [e.vm(f"buffer_load_dwordx4 v[{W2R}:{W2R+3}], v9, {S(SW2)}, 0 offen {polw}")]
            e("v_and_b32 v9, 15, v1"); e("v_lshlrev_b32 v9, 3, v9"); e("v_lshrrev_b32 v10, 5, v1"); e(f"v_lshl_add_u32 v{Q+7}, v10, 2, v9")
            e("s_lshl_b32 s80, s74, 7")
            ids.append(e.vm(f"buffer_load_dword v{B1R}, v{Q+7}, {S(SB1)}, s80 offen"))
            inflight[kind].append((n, 0, ids))
            e("s_cmp_eq_u32 s42, 0"); e("s_movk_i32 s80, 5120"); e("s_cselect_b32 s80, 40960, s80")
            e("v_lshrrev_b32 v9, 2, v0"); e("v_mul_u32_u24 v9, s80, v9"); e("v_and_b32 v0, 3, v0"); e("v_lshl_add_u32 v0, v0, 4, v9")
        elif kind == "Q":
            e(f"s_andn2_b32 s80, s7, {G-1}"); e("s_cmp_ge_u32 s3, 3"); e("s_cselect_b32 s81, 5, 0"); e("s_add_u32 s81, s81, s3")
            e(f"s_cmp_lt_u32 s3, {3*NH}"); e("s_cselect_b32 s81, s81, 0"); e("s_add_u32 s80, s80, s81")
            e("s_lshl_b32 s80, s80, 9"); e(f"s_add_u32 s80, s80, {PX_OFF}")
            e("s_cmp_lt_u32 s74, 24"); e("s_cselect_b32 s81, s3, 99"); e("s_movk_i32 s83, 1536")
            e(f"s_cmp_eq_u32 s81, {3*NH}"); e("s_cselect_b32 s80, s27, s80"); e("s_cselect_b32 s83, 512, s83")
            e("v_lshrrev_b32 v9, 5, v1"); e("v_mul_u32_u24 v9, s83, v9"); e("v_and_b32 v10, 31, v1"); e("v_lshl_add_u32 v9, v10, 4, v9")
            e(f"v_add_u32 v{Q+6}, s80, v9")
            stamp("qissue")
            inflight[kind].append((n, Q, q_loads(e)))
        elif kind == "M":
            assert state["vdone"] >= 5 and state["ml"] == 2
            e(f"v_and_b32 v9, {G-1}, v1"); e("v_lshlrev_b32 v9, 7, v9"); e(f"v_bfe_u32 v{MR+4}, v1, 4, {NH}"); e(f"v_lshl_add_u32 v9, v{MR+4}, 4, v9")
            e(f"s_andn2_b32 s80, s7, {G-1}"); e("s_lshl_b32 s80, s80, 7"); e(f"s_add_u32 s80, s80, {ML_OFF}")
            e(f"s_cmp_eq_u32 s3, {P['mw']}"); e(f"s_cselect_b32 s80, s80, {OOB}"); e(f"v_add_u32 v{MR+4}, s80, v9")
            inflight[kind].append((n, MR, m_loads(e)))
        elif kind == "G":
            assert state["vdone"] >= 9 and state["m"] >= 1 and state["x"] == 0
            a = GA
            e(f"v_lshrrev_b32 v{a}, 2, v1"); e(f"v_cmp_gt_u32 vcc, 3, v{a}"); e(f"v_lshlrev_b32 v{a}, 9, v{a}")
            e("v_and_b32 v9, 3, v1"); e(f"v_lshl_add_u32 v{a}, v9, 4, v{a}"); e(f"v_mov_b32 v9, {OOB}"); e(f"v_cndmask_b32 v{a}, v9, v{a}, vcc")
            e("s_cmp_eq_u32 s100, 1"); e(f"s_cselect_b32 s82, 0, {OOB}")
            e("s_lshr_b32 s80, s43, 8"); e("s_mul_i32 s80, s80, 24"); e("s_mul_i32 s81, s3, 3"); e("s_add_u32 s80, s80, s81"); e("s_lshl_b32 s80, s80, 9")
            e("s_lshl_b32 s81, s42, 8"); e("s_add_u32 s80, s80, s81"); e("s_and_b32 s81, s43, 0xc0"); e("s_add_u32 s80, s80, s81")
            e("s_add_u32 s80, s80, s82"); e(f"s_add_u32 s80, s80, {G_OFF}"); e(f"v_add_u32 v{a}, s80, v{a}")
            ids = g_loads(e)
            srd(e, SB2, 34, 35, 1280); srd(e, SOUT, 36, 37, 2560)
            e("v_and_b32 v9, 15, v1"); e("v_lshlrev_b32 v9, 1, v9")
            e("s_lshr_b32 s80, s43, 1"); e("s_add_u32 s80, s80, s82"); e("s_mul_i32 s81, s42, 1280"); e("s_add_u32 s81, s81, s80")
            ids.append(e.vm(f"buffer_load_ushort v{B2V}, v9, {S(SB2)}, s80 offen"))
            ids.append(e.vm(f"buffer_load_ushort v{XV}, v9, {S(SX)}, s81 offen"))
            inflight[kind].append((n, GR, ids))
        elif kind == "X":
            assert state["x"] == 2, state
            e("s_andn2_b32 s27, s7, 7"); e("s_add_u32 s27, s27, s3"); e("s_mul_i32 s27, s27, 768"); e(f"s_add_u32 s27, s27, {X_OFF}")
            inflight[kind].append((n, XR, x_loads(e)))
    def issue_next(n=1):
        for _ in range(n): issue(items.pop(0))

    def put_tag(E, r):
        for k in range(4): E(f"v_mov_b32_sdwa v{r+k}, s{TAG} dst_sel:BYTE_0 dst_unused:UNUSED_PRESERVE src0_sel:BYTE_{k}")
    def cmp_tag(E, r, t0, t1):
        E(f"v_perm_b32 v{t0}, v{r+1}, v{r}, s{SEL}"); E(f"v_perm_b32 v{t1}, v{r+3}, v{r+2}, s{SEL}")
        E(f"v_lshl_or_b32 v{t0}, v{t1}, 16, v{t0}"); E(f"v_cmp_ne_u32 vcc, s{TAG}, v{t0}")
    def dual_store(text, name):
        if not P["loc"]: return e.vm(f"{text} {SC1}")
        e(f"s_cbranch_scc0 L{name}_far")
        i = e.vm(text); e.label(f"L{name}_back")
        slow.label(f"L{name}_far"); slow(f"{text} {SC1}"); slow(f"s_branch L{name}_back")
        return i
    def tagcheck(name, cmp, loadfn, cond_consumer, wb=False):
        if "s" in abl: return
        cmp(e)
        e(f"s_cbranch_scc1 L{name}_slow"); e.label(f"L{name}_ok"); e("s_nop 0")
        slow.label(f"L{name}_slow")
        if cond_consumer:
            slow("s_cmp_eq_u32 s100, 0"); slow(f"s_cbranch_scc1 L{name}_ok")
        slow(f"s_mov_b32 s101, {SPIN}")
        slow.label(f"L{name}_loop")
        slow("s_nop 4")
        if wb and P["loc"]:
            slow("s_and_b32 s80, s101, 15"); slow("s_cmp_lg_u32 s80, 1"); slow(f"s_cbranch_scc1 L{name}_nowb")
            slow("buffer_wbl2 sc1"); slow("s_waitcnt vmcnt(0)")
            slow.label(f"L{name}_nowb")
        loadfn(slow); slow("s_waitcnt vmcnt(0)")
        cmp(slow)
        slow(f"s_cbranch_scc0 L{name}_ok")
        slow("s_sub_u32 s101, s101, 1"); slow(f"s_cbranch_scc0 L{name}_loop"); slow(f"s_branch L{name}_ok")

    def layernorm():
        stamp("setup")
        e("s_cmp_ge_u32 s3, 2"); e("s_cbranch_scc1 Lln")
        sv = e.vmdone
        e.wait_vm(x1)
        stamp("xland")
        t = Q
        src = [12, 13, 14, 15, 8]
        for k in range(5):
            e(f"v_lshlrev_b32 v{t+2*k}, 16, v{src[k]}"); e(f"v_and_b32 v{t+2*k+1}, s13, v{src[k]}")
        e(f"v_add_f32 v9, v{t}, v{t+1}")
        for k in range(2, 10): e(f"v_add_f32 v9, v9, v{t+k}")
        allred8(e, "v_add_f32", [9]); e(f"v_add_f32_dpp v9, v9, v9 row_mirror {DPPF}"); allred_rows(e, "v_add_f32", 9, 10)
        e(f"v_mul_f32 v9, {f32(1/640)}, v9")
        e("v_mov_b32 v12, 0")
        for k in range(10):
            e(f"v_sub_f32 v13, v{t+k}, v9"); e("v_fmac_f32 v12, v13, v13")
        allred8(e, "v_add_f32", [12]); e(f"v_add_f32_dpp v12, v12, v12 row_mirror {DPPF}"); allred_rows(e, "v_add_f32", 12, 10)
        e(f"v_mul_f32 v12, {f32(1/640)}, v12")
        e("v_cvt_pk_bf16_f32 v9, v9, v12")
        e("v_and_b32 v12, s13, v9"); e("v_lshlrev_b32 v9, 16, v9")
        e(f"v_add_f32 v12, {f32(1e-5)}, v12"); e("v_cvt_pk_bf16_f32 v12, v12, v12"); e("v_and_b32 v12, s13, v12")
        e("v_sqrt_f32 v12, v12"); e("v_cvt_pk_bf16_f32 v12, v12, v12"); e("v_and_b32 v12, s13, v12")
        e("v_rcp_f32 v13, v12")
        for k in range(10): e(f"v_sub_f32 v{t+k}, v{t+k}, v9")
        for k in range(5):
            a, b = t + 2 * k, t + 2 * k + 1
            e(f"v_cvt_pk_bf16_f32 v{b}, v{a}, v{b}"); e(f"v_lshlrev_b32 v{a}, 16, v{b}"); e(f"v_and_b32 v{b}, s13, v{b}")
            for r in (a, b):
                e(f"v_mul_f32 v14, v{r}, v13"); e(f"v_fma_f32 v15, -v14, v12, v{r}"); e(f"v_fma_f32 v{r}, v15, v13, v14")
            e(f"v_cvt_pk_bf16_f32 v{a}, v{a}, v{b}")
            e(f"ds_write_b32 v11, v{a} offset:{XN+4*k}")
        e.label("Lln"); e.vmdone = sv
        stamp("ln")
        e("v_lshrrev_b32 v9, 3, v0"); e("v_add_u32 v9, s11, v9"); e("v_lshlrev_b32 v9, 1, v9")
        e("s_waitcnt lgkmcnt(0)"); e("s_barrier")
        for i in range(5):
            for b in range(2): e(f"ds_read_u16 v{Q+2*i+b}, v9 offset:{XN+1280*b+128*i}")
        e(f"s_and_b32 s80, s{TAG}, 0x7f7f7f7f"); e("s_add_u32 s80, s80, 0x01010101"); e(f"s_and_b32 s{TAG}, s{TAG}, 0x80808080"); e(f"s_xor_b32 s{TAG}, s{TAG}, s80")
        issue_next(P["pk1"])
        stamp("bar0")

    def tile_dots(r, m0, m1):
        for b, m in enumerate((m0, m1)):
            e(f"v_lshlrev_b32 v{9+b}, 16, v{m}")
        for b, m in enumerate((m0, m1)):
            for dw in range(4):
                e(f"v_dot2c_f32_bf16 v{ACC+8*b+2*dw}, v{r+dw}, v{m}")
                e(f"v_dot2c_f32_bf16 v{ACC+8*b+2*dw+1}, v{r+dw}, v{9+b}")
    def tile_reduce(base):
        e("v_and_b32 v11, 7, v1"); e("v_lshlrev_b32 v11, 5, v11"); e("s_lshl_b32 s80, s3, 9"); e("v_add_u32 v11, s80, v11")
        e("v_bfe_u32 v9, v1, 5, 1"); e("v_lshl_add_u32 v11, v9, 8, v11"); e("v_bfe_u32 v9, v1, 3, 2"); e("v_lshl_add_u32 v11, v9, 3, v11")
        swapred(e, 32, [(ACC + x, ACC + 8 + x) for x in range(8)])
        swapred(e, 16, [(ACC + x, ACC + 4 + x) for x in range(4)])
        for x in range(2): e(f"v_add_f32_dpp v{ACC+4+x}, v{ACC+x}, v{ACC+x} row_ror:8 row_mask:0xf bank_mask:0x3")
        for x in range(2): e(f"v_add_f32_dpp v{ACC+4+x}, v{ACC+2+x}, v{ACC+2+x} row_ror:8 row_mask:0xf bank_mask:0xc")
        e(f"ds_write_b64 v11, v[{ACC+4}:{ACC+5}] offset:{base}")
    def tile_publish(base, sreg, tag, dual=False):
        e("v_and_b32 v10, 31, v1"); e("v_lshlrev_b32 v10, 4, v10"); e("v_bfe_u32 v9, v1, 5, 1"); e("v_lshl_add_u32 v9, v9, 11, v10")
        for w in range(4): e(f"ds_read_b128 v[{ACC+4*w}:{ACC+4*w+3}], v9 offset:{base+512*w}")
        e("s_waitcnt lgkmcnt(0)")
        for st in (8, 4):
            for k in range(st): e(f"v_add_f32 v{ACC+k}, v{ACC+k}, v{ACC+st+k}")
        for k in range(4): e(f"v_mov_b32 v{ACC+4+k}, v{ACC+k}")
        swapred(e, 32, [(ACC + k, ACC + 4 + k) for k in range(4)])
        if tag: put_tag(e, ACC)
        e("s_mov_b64 exec, 0xffffffff")
        t = f"buffer_store_dwordx4 v[{ACC}:{ACC+3}], v10, {S(SWS)}, {sreg} offen"
        if dual: e("s_cmp_lt_u32 s6, 6"); dual_store(t, "px")
        else: e.vm(f"{t} {SC1}")
        e("s_mov_b64 exec, -1"); e("s_nop 0")

    def w_phase():
        e("s_waitcnt lgkmcnt(0)")
        for i in range(5):
            e.wait_vm(wid[i]); tile_dots(SC + 4 * i, Q + 2 * i, Q + 2 * i + 1)
        stamp("wdots")
        tile_reduce(TP)
        e("s_lshl_b32 s81, s7, 9"); e(f"s_add_u32 s81, s81, {PX_OFF}"); e(f"s_cmp_eq_u32 s3, {P['pubw']}"); e(f"s_cselect_b32 s81, s81, {OOB}")
        e("s_waitcnt lgkmcnt(0)"); e("s_barrier")
        stamp("bar1")
        tile_publish(TP, "s81", True, True)
        stamp("qpub")

    def q_read(r):
        for j in range(3): e(f"ds_read_b128 v[{Q+4*j}:{Q+4*j+3}], v6 offset:{QB+384*r+128*j}")
        state["qreg"] = r; state["qwait"] = True
    def q_final():
        inflight["Q"].pop(0)
        assert e.landed(inflight["F"][0][2][-1])
        stamp("qland")
        def cmp(E):
            cmp_tag(E, Q, 9, 10); E("s_cmp_lg_u64 vcc, 0")
        tagcheck("q", cmp, q_loads, False, True)
        stamp("qok")
        for k in range(4): e(f"v_and_b32 v{Q+k}, s{MSK}, v{Q+k}")
        swapred(e, 32, [(Q, Q + 2), (Q + 1, Q + 3)])
        a, b = Q, Q + 1
        e(f"v_cvt_pk_bf16_f32 v{b}, v{a}, v{b}")
        e(f"s_cmp_lt_u32 s3, {3*NH}"); e("s_cbranch_scc1 Lqh")
        e(f"v_lshlrev_b32 v{a}, 16, v{b}"); e(f"v_and_b32 v{b}, s13, v{b}")
        e(f"v_lshlrev_b32 v9, 16, v{B1R}"); e(f"v_and_b32 v10, s13, v{B1R}")
        e(f"v_add_f32 v{a}, v{a}, v9"); e(f"v_add_f32 v{b}, v{b}, v10")
        e(f"v_cvt_pk_bf16_f32 v{b}, v{a}, v{b}"); e(f"v_lshlrev_b32 v{a}, 16, v{b}"); e(f"v_and_b32 v{b}, s13, v{b}")
        e(f"v_max_f32 v{a}, 0, v{a}"); e(f"v_max_f32 v{b}, 0, v{b}")
        e(f"v_mul_f32 v{a}, v{a}, v{a}"); e(f"v_mul_f32 v{b}, v{b}, v{b}")
        e(f"v_cvt_pk_bf16_f32 v{b}, v{a}, v{b}")
        e.label("Lqh")
        e("s_mul_i32 s80, s3, 43"); e("s_lshr_b32 s80, s80, 7"); e("s_mul_i32 s80, s80, 3"); e("s_add_u32 s80, s80, s3"); e("s_lshl_b32 s80, s80, 7")
        e("v_bfe_u32 v9, v1, 4, 1"); e("v_mul_u32_u24 v9, 384, v9"); e(f"v_add3_u32 v10, s80, v9, v{Q+7}")
        e("v_and_b32 v6, 7, v1"); e("v_lshlrev_b32 v6, 4, v6")
        e(f"s_cmp_gt_u32 s3, {3*NH}"); e("s_cbranch_scc1 Lqw")
        e(f"ds_write_b32 v10, v{b} offset:{QB}")
        e.label("Lqw")
        e("s_waitcnt lgkmcnt(0)"); e("s_barrier")
        q_read(0)
        state["q"] = True
        stamp("q")

    def post_ops(a, b):
        ops = []
        for m in ("quad_perm:[1,0,3,2]", "quad_perm:[2,3,0,1]", "row_half_mirror"):
            for r in (a, b): ops.append(f"v_add_f32_dpp v{r}, v{r}, v{r} {m} {DPPF}")
        ops += [f"v_cvt_pk_bf16_f32 v{b}, v{a}, v{b}", f"v_lshlrev_b32 v{a}, 16, v{b}", f"v_and_b32 v{b}, s13, v{b}",
                f"v_mul_f32 v{a}, s14, v{a}", f"v_mul_f32 v{b}, s14, v{b}",
                f"v_cvt_pk_bf16_f32 v{b}, v{a}, v{b}", f"v_lshlrev_b32 v{a}, 16, v{b}", f"v_and_b32 v{b}, s13, v{b}",
                f"v_max3_f32 v7, v7, v{a}, v{b}"]
        return ops
    def drain_pend(n):
        for _ in range(min(n, len(pend))):
            x = pend.pop(0)
            if callable(x): x()
            else: e(x)
        while pend and callable(pend[0]): pend.pop(0)()
    def stat_ops(r):
        L = []; A = L.append
        A(f"v_max_f32_dpp v7, v7, v7 row_ror:8 {DPPF}"); allred_rows(A, "v_max_f32", 7, 14)
        A("v_mul_f32 v3, s15, v7")
        ts = list(range(r * gpr, (r + 1) * gpr))
        for c in range(0, gpr, 4):
            tc = ts[c:c + 4]
            for t in tc: A(f"v_fma_f32 v{SC+t}, v{SC+t}, s15, -v3")
            for t in tc: A(f"v_exp_f32 v{SC+t}, v{SC+t}")
            for t in tc: A(f"v_add_f32 v8, v8, v{SC+t}" if t != ts[0] else f"v_mov_b32 v8, v{SC+t}")
            for t in tc: A(f"v_cvt_pk_bf16_f32 v{SC+t}, v{SC+t}, 0")
        A(f"v_add_f32_dpp v8, v8, v8 row_ror:8 {DPPF}"); allred_rows(A, "v_add_f32", 8, 14)
        A("v_lshlrev_b32 v14, 3, s3" .replace("v_lshlrev_b32 v14, 3, s3", "v_lshlrev_b32_e64 v14, 3, s3"))
        A(f"ds_write_b32 v14, v7 offset:{MX+64*r}"); A(f"ds_write_b32 v14, v8 offset:{MX+64*r+4}")
        A("v_mov_b32 v7, 0xff800000")
        def done():
            state["st"] = r + 1
            if r == NR - 1: state["needbar"] = True
        A(done)
        return L
    def k_part(ent):
        t, r, ids, j = ent
        a = SC + t
        assert t < 27 or state["f2"] >= 1
        assert state["qreg"] == t // gpr
        if state["qwait"]: e("s_waitcnt lgkmcnt(0)"); state["qwait"] = False
        if j == 0: e(f"v_mov_b32 v{a}, 0")
        for dw in range(4):
            e(f"v_dot2c_f32_bf16 v{a}, v{r+4*j+dw}, v{Q+4*j+dw}")
            if dw or j: drain_pend(1 if len(pend) < 20 else 3)
        ent[3] += 1
        if ent[3] == 3:
            free(r); state["kdone"] += 1
            if t % 2 == 1: pend.extend(post_ops(a - 1, a))
            if t % gpr == gpr - 1:
                pend.extend(stat_ops(t // gpr))
                if t < 31: q_read(t // gpr + 1)
    def phi(t): return 253 if t < 32 - W else SC + 16 + t - (32 - W)
    def v_part(ent):
        n, r, ids, k = ent
        t, j = vl[3 * n + k]
        plo = SC + t
        rg = t // gpr
        assert state["st"] > rg
        assert rg == 0 or (rg - 1, j) in Adone
        if j == 0: e(f"v_lshlrev_b32 v{phi(t)}, 16, v{plo}")
        for dw in range(4):
            e(f"v_dot2c_f32_bf16 v{ACC+8*j+2*dw}, v{r+4*k+dw}, v{plo}")
            e(f"v_dot2c_f32_bf16 v{ACC+8*j+2*dw+1}, v{r+4*k+dw}, v{phi(t)}")
        ent[3] += 1; vcnt[(rg, j)] = vcnt.get((rg, j), 0) + 1
        if ent[3] == 3:
            free(r); state["vdone"] += 1
        if vcnt[(rg, j)] == gpr and (rg, j) != (NR - 1, 2): step_A(rg, j)
    YB = [Q, SC]
    def step_A(r, j):
        assert state["ml"] == 2 and state["addr"]
        assert r < 2 or (r - 2, j) in Bdone
        assert state["m"] == 3
        a = ACC + 8 * j
        swapred_pk(e, 32, a, a + 4, 4); swapred_pk(e, 16, a, a + 2, 2)
        e(f"v_add_f32_dpp v{a+2}, v{a}, v{a} row_ror:8 row_mask:0xf bank_mask:0x3")
        e(f"v_add_f32_dpp v{a+2}, v{a+1}, v{a+1} row_ror:8 row_mask:0xf bank_mask:0xc")
        e(f"v_mul_f32 v9, s{SF[r]}, v{a+2}"); e(f"ds_write_b32 v10, v9 offset:{OP+8*OST*(r&1)+256*j}")
        if r < NR - 1:
            for x in range(0, 8, 2): e(f"v_mov_b64 v[{a+x}:{a+x+1}], 0")
        Adone.append((r, j)); Bq.append((r, j))
        if r == NR - 1 or j == 2: state["needbar"] = True
    def b_ready(r, j):
        return (r, j) in Abar and state["m"] == 3 and all((r >> 1, j, p_, 4) in LO for p_ in range(4)) and state["x"] == 4
    def step_B(r, j):
        assert not pend and b_ready(r, j)
        Bq.remove((r, j)); Bdone.add((r, j))
        e(f"ds_read_b32 v9, v11 offset:{OP+8*OST*(r&1)+256*j}")
        e("s_waitcnt lgkmcnt(0)")
        allred8(e, "v_add_f32", [9])
        e(f"v_mov_b32_dpp v14, v9 row_ror:8 {DPPF}"); e(f"v_cvt_pk_bf16_f32 v9, v9, v14")
        for p_ in range(4): e(f"v_readlane_b32 s{16+p_}, v9, {16*p_}")
        Y = YB[r & 1]; hs = r >> 1
        for p_ in range(4):
            for dw in range(5):
                pend.append(f"v_dot2c_f32_bf16 v{Y+2*dw}, s{16+p_}, v{LO[(hs,j,p_,dw)]}")
                pend.append(f"v_dot2c_f32_bf16 v{Y+2*dw+1}, s{16+p_}, v{HI[(hs,j,p_,dw)]}")
            pend.append(lambda p_=p_: Bfin.add((r, j, p_)))
    def y_write(b):
        Y = YB[b]
        e(f"ds_write_b128 v12, v[{Y}:{Y+3}] offset:{YP+2560*b}"); e(f"ds_write_b128 v12, v[{Y+4}:{Y+7}] offset:{YP+2560*b+16}")
        e(f"ds_write_b64 v6, v[{Y+8}:{Y+9}] offset:{YP+2560*b+2048}")
    def pka(a, b):
        for k in (0, 2): e(f"v_pk_add_f32 v[{a+k}:{a+k+1}], v[{a+k}:{a+k+1}], v[{b+k}:{b+k+1}]")
    def x_publish():
        assert state["g"] and state["vdone"] >= 16
        e("s_mul_i32 s81, s7, 768"); e(f"s_add_u32 s81, s81, {X_OFF}"); e(f"s_cmp_eq_u32 s3, {P['xw']}"); e(f"s_cselect_b32 s81, s81, {OOB}")
        e("s_mov_b32 exec_hi, 0xffff"); e("s_cbranch_scc0 Lxp")
        for w in range(7): e(f"ds_read_b128 v[{Q+4*w}:{Q+4*w+3}], v4 offset:{OP+OST*w}")
        e("s_waitcnt lgkmcnt(5)"); pka(Q, Q + 4)
        e(f"ds_read_b128 v[{Q+4}:{Q+7}], v4 offset:{OP+OST*7}")
        for w in range(2, 7): e(f"s_waitcnt lgkmcnt({7-w})"); pka(Q, Q + 4 * w)
        e("s_waitcnt lgkmcnt(0)"); pka(Q, Q + 4)
        put_tag(e, Q)
        e("s_nop 0"); e.label("Lxp")
        assert P["xw"] == P["mw"]
        e("s_cmp_eq_u32 s32, 1"); dual_store(f"buffer_store_dwordx4 v[{Q}:{Q+3}], v4, {S(SWS)}, s81 offen", "xs")
        e("s_mov_b32 exec_hi, -1")
        state["x"] = 1
        stamp("xpub")
    def x_step():
        inflight["X"].pop(0)
        def cmp(E):
            cmp_tag(E, XR, 9, 14); E("s_nop 0"); E("s_and_b32 vcc_hi, vcc_hi, 0xffff"); E("s_cmp_lg_u64 vcc, 0")
        stamp("xland")
        tagcheck("x", cmp, x_loads, False)
        for k in range(4): e(f"v_and_b32 v{XR+k}, s{MSK}, v{XR+k}")
        e(f"s_mul_i32 s80, s3, {OST}"); e("v_add_u32 v9, s80, v4")
        e("s_mov_b32 exec_hi, 0xffff"); e(f"ds_write_b128 v9, v[{XR}:{XR+3}] offset:{OP}"); e("s_mov_b32 exec_hi, -1")
        for r in range(Q, Q + 10, 2): e(f"v_mov_b64 v[{r}:{r+1}], 0")
        e("s_waitcnt lgkmcnt(0)")
        for r in range(SC, SC + 10, 2): e(f"v_mov_b64 v[{r}:{r+1}], 0")
        state["x"] = 3; state["needbar"] = True
        stamp("xstep")
    def y0_final():
        t = [Q, Q + 4, Q + 8, SC + 12]
        e("s_andn2_b32 s81, s7, 7"); e("s_mul_i32 s81, s81, 5120"); e("s_mul_i32 s80, s6, 320"); e("s_add_u32 s81, s81, s80"); e(f"s_add_u32 s81, s81, {Y_OFF}")
        e(f"s_cmp_eq_u32 s3, {P['yw']}"); e(f"s_cselect_b32 s26, s81, {OOB}"); e("s_cbranch_scc0 Ly0")
        e("v_lshrrev_b32 v9, 5, v1"); e(f"v_mul_u32_u24 v9, {4*5120-512}, v9"); e("v_add3_u32 v9, v9, s80, v4")
        for k in range(4): e(f"ds_read_b128 v[{t[k]}:{t[k]+3}], v9 offset:{YP+5120*k}")
        for k in range(1, 4): e(f"s_waitcnt lgkmcnt({3-k})"); pka(Q, t[k])
        for k in (0, 2): e(f"v_mov_b64 v[{Q+4+k}:{Q+5+k}], v[{Q+k}:{Q+k+1}]")
        swapred_pk(e, 32, Q, Q + 4, 4)
        put_tag(e, Q)
        e("s_nop 0"); e.label("Ly0")
        state["y0"] = 3
        if not P["y0late"]: y0_store()
    def y0_store():
        e("s_mov_b64 exec, 0xfffff")
        e.vm(f"buffer_store_dwordx4 v[{Q}:{Q+3}], v4, {S(SWS)}, s26 offen {SC1}")
        e("s_mov_b64 exec, -1")
        stamp("y0st")
    def shadow():
        if pend: drain_pend(P["bdrain"]); return True
        if state["x"] == 0 and (0, 2) in Abar: x_publish(); return True
        if state["y0"] == 0 and all((0, j, 3) in Bfin for j in range(3)):
            y_write(0); state["y0"] = 1; state["needbar"] = True; return True
        if state["y0"] == 2: y0_final(); return True
        for rj in Bq:
            if b_ready(*rj): step_B(*rj); return True
        return False
    def tail_addr():
        e("v_and_b32 v10, 7, v1"); e(f"v_mul_u32_u24 v11, {OST}, v10"); e("v_lshlrev_b32 v10, 5, v10")
        e("v_bfe_u32 v9, v1, 5, 1"); e("v_lshl_add_u32 v10, v9, 4, v10")
        e("v_bfe_u32 v9, v1, 3, 2"); e("v_lshl_add_u32 v10, v9, 2, v10")
        e(f"s_mul_i32 s80, s3, {OST}"); e("v_add_u32 v10, s80, v10")
        e("v_lshrrev_b32 v9, 3, v1"); e("v_lshl_add_u32 v11, v9, 2, v11")
        e("s_lshl_b32 s80, s3, 5"); e("v_add_u32 v11, s80, v11")
        e("v_and_b32 v12, 15, v1"); e("v_lshlrev_b32 v8, 5, v12"); e("v_lshlrev_b32 v3, 1, v12")
        e("s_mul_i32 s80, s3, 5120"); e("v_lshl_add_u32 v12, v1, 5, s80"); e("v_lshl_add_u32 v6, v1, 3, s80")
        e("s_mul_i32 s80, s3, 320"); e("v_lshl_add_u32 v13, v1, 4, s80")
        e("s_mul_i32 s11, s7, 5120"); e(f"s_add_u32 s11, s11, {Y_OFF}")
        e(f"s_mul_i32 s22, s42, 2560"); e("s_add_u32 s22, s22, s43"); e(f"s_add_u32 s22, s22, {Y_OFF}")
        e(f"s_add_u32 s5, s22, {128*5120}")
        e("s_cmp_eq_u32 s42, 1"); e(f"s_cselect_b32 s5, s5, {OOB}"); e("s_cselect_b64 s[30:31], -1, 0"); e("s_cselect_b32 s80, 0, s3")
        e("s_cmp_lt_u32 s80, 2"); e(f"s_cselect_b32 s22, s22, {OOB}"); e("s_cselect_b64 s[24:25], -1, 0")
        e("s_mul_i32 s23, s42, 1280"); e("s_lshr_b32 s80, s43, 1"); e("s_add_u32 s23, s23, s80")
        state["addr"] = True

    def f2a():
        inflight["F"].pop(0)
        e("v_lshrrev_b32 v9, 3, v1"); e("s_lshl_b32 s80, s3, 4"); e("v_lshl_add_u32 v9, v9, 1, s80")
        e(f"ds_read_u16 v12, v9 offset:{HB}"); e(f"ds_read_u16 v13, v9 offset:{HB+384}")
        for r in range(ACC, ACC + 16): e(f"v_mov_b32 v{r}, 0")
        e("s_waitcnt lgkmcnt(0)")
        tile_dots(W2R, 12, 13)
        tile_reduce(FP)
        e("s_waitcnt lgkmcnt(0)")
        state["f2"] = 1
        if not P["bar"]:
            e("s_barrier"); state["f2"] = 2
    def f2b():
        e(f"s_cmp_eq_u32 s3, {P['pubw']}"); e(f"s_cselect_b32 s81, s26, {OOB}")
        tile_publish(FP, "s81", True)
        for r in range(ACC + 23, ACC - 1, -1): e(f"v_mov_b32 v{r}, 0")
        e("v_and_b32 v15, 3, v1"); e("v_lshlrev_b32 v15, 7, v15"); e("v_bfe_u32 v9, v1, 5, 1"); e("v_lshl_add_u32 v15, v9, 6, v15")
        e("v_bfe_u32 v9, v1, 4, 1"); e("v_lshl_add_u32 v15, v9, 5, v15"); e("s_lshl_b32 s80, s3, 2"); e("v_add_u32 v15, s80, v15")
        state["f2"] = 3

    def transition():
        assert state["f2"] == 3
        while state["st"] < 1: drain_pend(1)
        state["p"] = True
        stamp("trans")

    def ml_publish():
        e("v_and_b32 v9, 31, v1"); e("v_lshlrev_b32 v9, 3, v9")
        e(f"ds_read_b64 v[12:13], v9 offset:{MX}")
        e("s_getreg_b32 s33, hwreg(HW_REG_XCC_ID, 0, 4)"); e(f"s_xor_b32 s33, s33, s{TAG}")
        e("s_lshl_b32 s81, s7, 7"); e(f"s_add_u32 s81, s81, {ML_OFF}"); e(f"s_cmp_eq_u32 s3, {P['pubw']}"); e(f"s_cselect_b32 s80, s81, {OOB}")
        e("v_lshrrev_b32 v9, 2, v9")
        for r in range(NR): e(f"s_add_u32 s{SF[r]}, s3, {8*r}")
        e("s_waitcnt lgkmcnt(0)")
        e("v_mov_b32 v10, v12"); allred8(e, "v_max_f32", [10])
        e("v_sub_f32 v12, v12, v10"); e("v_mul_f32 v12, s15, v12"); e("v_exp_f32 v11, v12"); e("v_mul_f32 v12, v11, v13")
        for r in range(NR): e(f"v_readlane_b32 s{SF[r]}, v11, s{SF[r]}")
        allred8(e, "v_add_f32", [12])
        e(f"v_mov_b32 v11, s{TAG}"); e(f"v_mov_b32 v13, s33")
        e(f"s_mov_b64 exec, {0x01010101 if NR == 4 else 0x0101}")
        e.vm(f"buffer_store_dwordx4 v[10:13], v9, {S(SWS)}, s80 offen {'' if P['loc'] else SC1}")
        e("s_mov_b64 exec, -1"); e("s_nop 0")
        state["ml"] = 2
        stamp("mlpub")

    def m_step():
        inflight["M"].pop(0)
        e(f"s_cmp_lg_u32 s3, {P['mw']}"); e("s_cbranch_scc1 Lm_skip")
        def cmp(E):
            E(f"v_xor_b32 v9, s{TAG}, v{MR+3}"); E(f"v_cmp_ne_u32 vcc, s{TAG}, v{MR+1}"); E(f"v_cmp_lt_u32 s[80:81], 15, v9"); E("s_or_b64 vcc, vcc, s[80:81]")
        tagcheck("m", cmp, m_loads, False, True)
        if P["loc"]:
            e(f"v_cmp_ne_u32 vcc, s33, v{MR+3}"); e("s_cmp_eq_u64 vcc, 0"); e(f"s_cselect_b32 s32, {0 if 'f' in abl else 1}, 0"); e("s_cbranch_scc0 Lm_far"); e.label("Lm_back")
            slow.label("Lm_far"); slow("buffer_wbl2 sc1"); slow("s_waitcnt vmcnt(0)"); slow("s_branch Lm_back")
        m, l, t0, t1 = MR, MR + 2, MR + 1, MR + 3
        steps = ["quad_perm:[1,0,3,2]", "quad_perm:[2,3,0,1]", "row_half_mirror"] + (["row_mirror"] if G == 16 else [])
        for i, md in enumerate(steps): e(f"v_max_f32_dpp v{t0}, v{t0 if i else m}, v{t0 if i else m} {md} {DPPF}")
        e(f"v_sub_f32 v{t0}, v{m}, v{t0}"); e(f"v_mul_f32 v{t0}, s15, v{t0}"); e(f"v_exp_f32 v{t0}, v{t0}")
        e(f"v_mul_f32 v{t1}, v{t0}, v{l}")
        for md in steps: e(f"v_add_f32_dpp v{t1}, v{t1}, v{t1} {md} {DPPF}")
        e(f"v_rcp_f32 v{t1}, v{t1}"); e(f"v_mul_f32 v{t0}, v{t0}, v{t1}")
        e(f"v_lshlrev_b32 v{t1}, 2, v1")
        e(f"ds_write_b32 v{t1}, v{t0} offset:{FP}")
        e.label("Lm_skip")
        state["m"] = 1; state["needbar"] = True
        stamp("mstep")
    def c_get():
        e("v_and_b32 v9, 3, v1"); e("v_lshlrev_b32 v9, 6, v9"); e("s_lshl_b32 s80, s6, 2"); e("v_add_u32 v9, s80, v9")
        e(f"ds_read_b32 v9, v9 offset:{FP}"); e("s_waitcnt lgkmcnt(0)")
        e(f"v_mul_f32 v14, s{SF[0]}, v9"); e(f"v_mul_f32 v9, s{SF[1]}, v9")
        e(f"v_readlane_b32 s{SF[0]}, v14, 0"); e(f"v_readlane_b32 s{SF[1]}, v9, 1")
        state["m"] = 3

    def col_reduce(a, base):
        swapred(e, 32, [(a, a + 2), (a + 1, a + 3)])
        swapred(e, 16, [(a, a + 1)])
        e(f"v_add_f32_dpp v{a}, v{a}, v{a} row_ror:8 {DPPF}"); e(f"v_add_f32_dpp v{a}, v{a}, v{a} row_ror:4 {DPPF}")
        e(f"ds_write_b32 v15, v{a} offset:{base}")
    def g_step():
        inflight["G"].pop(0)
        def cmp(E):
            cmp_tag(E, GR, 9, 14); E("s_and_b64 vcc, vcc, 0xfff")
        tagcheck("g", cmp, g_loads, True)
        for k in range(4): e(f"v_and_b32 v{GR+k}, s{MSK}, v{GR+k}")
        col_reduce(GR, GP)
        state["g"] = True

    def operm(n, r):
        hs, n_ = divmod(n, 12)
        j_, p_ = n_ // 4, n_ % 4
        f = 252
        for dw in range(5):
            a, b = (r + dw, r + 4 + dw) if dw < 4 else (r + 8, r + 9)
            e(f"v_perm_b32 v{f}, v{b}, v{a}, s20"); e(f"v_perm_b32 v{b}, v{b}, v{a}, s21")
            LO[(hs, j_, p_, dw)] = f; HI[(hs, j_, p_, dw)] = b
            f = a
        e(f"v_mov_b32 v{f}, v252"); LO[(hs, j_, p_, 0)] = f

    def run_ready():
        if inflight["Q"] and e.landed(inflight["Q"][0][2][-1]): q_final()
        np_ = 0
        while state["q"] and inflight["K"] and np_ < P["maxparts"]:
            ent = inflight["K"][0]
            if ent[3] >= len(ent[2]) or not e.landed(ent[2][ent[3]]): break
            k_part(ent); np_ += 1
            if ent[3] == 3: inflight["K"].pop(0)
        if state["q"] and state["f2"] == 0 and state["kdone"] >= P["f2_at"]: f2a()
        elif state["f2"] == 2: f2b()
        while inflight["O"] and e.landed(inflight["O"][0][2][-1]):
            n, r, ids = inflight["O"].pop(0); operm(n, r)
        if state["kdone"] == 32 and not state["p"]: transition()
        while state["p"] and inflight["V"]:
            ent = inflight["V"][0]
            if ent[3] >= len(ent[2]) or not e.landed(ent[2][ent[3]]): break
            v_part(ent)
            if ent[3] == 3: inflight["V"].pop(0)
        if state["p"]:
            if state["ml"] == 1: ml_publish()
            elif state["ml"] == 2 and not state["addr"]: tail_addr()
            elif state["m"] == 2: c_get()
            else: shadow()
        if inflight["M"] and e.landed(inflight["M"][0][2][-1]): m_step()
        if inflight["G"] and e.landed(inflight["G"][0][2][-1]): g_step()
        if inflight["X"] and e.landed(inflight["X"][0][2][-1]): x_step()

    late_setup()
    issue_next(P["pk0"])
    layernorm(); w_phase()
    pacing[0] = True
    items.insert(0, ("F", 0))
    items.insert(1 + P["qdelay"], ("Q", 0))
    while items:
        it = items.pop(0)
        issue(it)
        run_ready()
        if it[0] in "KV" and P["bar"] and state["q"]:
            pos = it[1] + (32 if it[0] == "V" else 0)
            if (pos % P["bar"] == P["bar"] - 1 and pos < P["barend"]) or state["needbar"]:
                if state["needbar"]:
                    e("s_waitcnt lgkmcnt(0)"); Abar.update(Adone); state["needbar"] = False
                    if state["m"] == 1: state["m"] = 2
                    if state["x"] == 3: state["x"] = 4; print("x bar at", pos, file=sys.stderr)
                    if state["y0"] == 1: state["y0"] = 2; print("y0 bar at", pos, file=sys.stderr)
                    if state["st"] == NR and state["ml"] == 0: state["ml"] = 1
                e("s_barrier")
                if state["f2"] == 1: state["f2"] = 2
                if state["x"] == 1: state["x"] = 2; print("xpub bar at", pos, file=sys.stderr)
            if NH == 2:
                for k in range(P["o2n"]):
                    n_ = state["o2"] - 12
                    if n_ < 12 and all((r, n_ // 4, n_ % 4) in Bfin for r in (0, 1)):
                        items.insert(k, ("O", state["o2"])); state["o2"] += 1
    assert state["g"] and state["m"] == 3 and state["addr"]
    e(f"s_mov_b32 s101, {SPIN}")
    assert not inflight["K"] and state["p"] and not inflight["O"]
    assert (NR - 1, 1) in Abar, state
    if P["y0late"] == 1: assert state["y0"] == 3; y0_store()
    while inflight["V"]:
        v = inflight["V"][0]
        last = len(inflight["V"]) == 1 and v[3] == 2
        shadow()
        if last:
            nb = len(e.L)
            while shadow(): pass
            print("leftover shadow lines before last V:", len(e.L) - nb, file=sys.stderr)
        e.wait_vm(v[2][v[3]]); v_part(v)
        if v[3] == 3: inflight["V"].pop(0)
    assert state["y0"] == 3 and not Bq and not pend
    stamp("vdone")
    step_A(NR - 1, 2); Abar.update(Adone)
    e("s_waitcnt lgkmcnt(0)"); e("s_barrier")
    stamp("tb1")
    step_B(NR - 1, 2); drain_pend(99)
    stamp("tdots")
    y_write(1)
    e("s_mov_b64 exec, 0xfffff")
    e("s_waitcnt lgkmcnt(0)"); e("s_barrier")
    stamp("tb2")
    for w in range(8): e(f"ds_read_b128 v[{BUF0+4*w}:{BUF0+4*w+3}], v13 offset:{YP+5120*w+2560}")
    for w in range(1, 8):
        e(f"s_waitcnt lgkmcnt({7-w})")
        for k in (0, 2): e(f"v_pk_add_f32 v[{BUF0+k}:{BUF0+k+1}], v[{BUF0+k}:{BUF0+k+1}], v[{BUF0+4*w+k}:{BUF0+4*w+k+1}]")
    put_tag(e, BUF0)
    e.vm(f"buffer_store_dwordx4 v[{BUF0}:{BUF0+3}], v13, {S(SWS)}, s11 offen offset:2560 {SC1}")
    e("s_mov_b64 exec, -1")
    if P["y0late"] == 2: y0_store()
    stamp("ystore")
    if stamps and "yack" in smap:
        e("s_waitcnt vmcnt(0)"); stamp("yack")
    e("s_cmp_eq_u32 s100, 0"); e("s_cbranch_scc1 LA_fin")
    B = BUF0 + 32
    def pload():
        e(f"buffer_load_dwordx4 v[{B}:{B+3}], v0, {S(SWS)}, s22 offen {SC1}")
        e(f"buffer_load_dwordx4 v[{B+4}:{B+7}], v0, {S(SWS)}, s5 offen {SC1}")
    def pk(op, a, b, c): e(f"v_pk_{op}_f32 v[{a}:{a+1}], v[{b}:{b+1}], v[{c}:{c+1}]")
    def sum8(r):
        pk("add", r, r, r + 4); pk("add", r + 2, r + 2, r + 6); pk("add", r, r, r + 2); e(f"v_add_f32 v{r}, v{r}, v{r+1}")
    pload()
    g = ACC
    e(f"ds_read_b128 v[{g}:{g+3}], v8 offset:{GP}"); e(f"ds_read_b128 v[{g+4}:{g+7}], v8 offset:{GP+16}")
    e(f"v_lshlrev_b32 v{B2V}, 16, v{B2V}"); e(f"v_lshlrev_b32 v{XV}, 16, v{XV}")
    e("s_waitcnt lgkmcnt(0)")
    sum8(g)
    bf16r(e, g); e(f"v_add_f32 v{g}, v{g}, v{B2V}"); bf16r(e, g)
    e(f"v_mul_f32 v9, s15, v{g}"); e("v_exp_f32 v9, -v9"); e("v_add_f32 v9, 1.0, v9"); e("v_rcp_f32 v9, v9")
    e(f"v_mul_f32 v{g}, v{g}, v9"); bf16r(e, g)
    e.label("Lpoll")
    e("s_waitcnt vmcnt(1)")
    cmp_tag(e, B, 9, 10); e("s_and_b64 s[80:81], vcc, s[24:25]")
    e("s_waitcnt vmcnt(0)")
    cmp_tag(e, B + 4, 9, 10); e("s_and_b64 vcc, vcc, s[30:31]")
    e("s_or_b64 exec, vcc, s[80:81]"); e("s_cbranch_scc0 Lpoll_done")
    e("s_sub_u32 s101, s101, 1"); e("s_cbranch_scc1 Lpoll_done")
    pload()
    e("s_branch Lpoll")
    e.label("Lpoll_done")
    e("s_mov_b64 exec, -1")
    stamp("pdone")
    for k in range(8): e(f"v_and_b32 v{B+k}, s{MSK}, v{B+k}")
    pk("add", B, B, B + 4); pk("add", B + 2, B + 2, B + 6)
    swapred_pk(e, 32, B, B + 2, 2)
    swapred(e, 16, [(B, B + 1)])
    e(f"v_add_f32_dpp v{B}, v{B}, v{B} row_ror:8 {DPPF}"); e(f"v_add_f32_dpp v{B}, v{B}, v{B} row_ror:4 {DPPF}")
    e(f"ds_write_b32 v15, v{B} offset:{SP}")
    e("s_cmp_lg_u32 s3, 0")
    e("s_waitcnt lgkmcnt(0)"); e("s_barrier")
    stamp("cbar")
    e("s_cbranch_scc1 LA_fin")
    e(f"ds_read_b128 v[{B}:{B+3}], v8 offset:{SP}"); e(f"ds_read_b128 v[{B+4}:{B+7}], v8 offset:{SP+16}")
    e("s_waitcnt lgkmcnt(0)")
    sum8(B)
    bf16r(e, B); e(f"v_mul_f32 v{B}, v{B}, v{g}"); bf16r(e, B); e(f"v_add_f32 v{B}, v{B}, v{XV}")
    e(f"v_cvt_pk_bf16_f32 v{B}, v{B}, v{B}")
    e("s_mov_b64 exec, 0xffff")
    e(f"buffer_store_short v{B}, v3, {S(SOUT)}, s23 offen {P['polout']}")
    stamp("ostore")
    e("s_cmp_lg_u32 s2, 0"); e("s_cbranch_scc1 LA_fin")
    e(f"v_mov_b32 v9, s{TAG}"); e("s_mov_b64 exec, 1")
    e(f"buffer_store_dword v9, off, {S(SWS)}, 0 offset:{EP_OFF} {SC1}")
    e.label("LA_fin")
    if P["fixend"]:
        e("s_cmp_lg_u32 s2, 0"); e("s_cbranch_scc1 LA_done"); e("s_cmp_lg_u32 s3, 0"); e("s_cbranch_scc1 LA_done")
        e("s_waitcnt vmcnt(0)"); e("s_memrealtime s[86:87]"); e("s_waitcnt lgkmcnt(0)"); e("s_sub_u32 s86, s86, s84")
        e("s_mov_b32 s40, s38"); e("s_mov_b32 s41, s39"); e("s_mov_b32 s42, 256"); e("s_mov_b32 s43, 0x20000")
        e("s_mov_b64 exec, 1"); e("v_mov_b32 v9, s86"); e("buffer_store_dword v9, off, s[40:43], 0")
        e.label("Lfix"); e("s_memrealtime s[86:87]"); e("s_waitcnt lgkmcnt(0)"); e("s_sub_u32 s86, s86, s84")
        e(f"s_cmp_lt_u32 s86, {P['fixend']}"); e("s_cbranch_scc1 Lfix")
    if stamps:
        e(f"s_cmp_lg_u32 s3, {P['sw']}"); e("s_cbranch_scc1 LA_done")
        e("s_mov_b64 exec, 1")
        e("s_waitcnt vmcnt(0)")
        stamp("end")
        e("s_add_u32 s40, s40, 0x10000000"); e("s_addc_u32 s41, s41, 0"); e("s_mov_b32 s42, 0x100000"); e("s_mov_b32 s43, 0x20000")
        e("s_getreg_b32 s85, hwreg(HW_REG_XCC_ID)")
        if "polls" in smap:
            k = 84 + 2 * int(smap["polls"])
            e(f"s_sub_u32 s{k}, {SPIN}, s101"); e(f"s_mul_i32 s{k}, s{k}, 100"); e(f"s_add_u32 s{k}, s{k}, s84")
        for k in range(16): e(f"v_mov_b32 v{16+k}, s{84+k}")
        e("s_lshl_b32 s80, s2, 6"); e("v_mov_b32 v1, s80")
        for k in range(4): e(f"buffer_store_dwordx4 v[{16+4*k}:{19+4*k}], v1, s[40:43], 0 offen offset:{16*k}")
    e.label("LA_done")
    e("s_endpgm")
    return e.text() + slow.text() + "    s_endpgm\n"

def desc(name, vgpr, sgpr):
    return f""".amdhsa_kernel {name}
  .amdhsa_next_free_vgpr {vgpr}
  .amdhsa_next_free_sgpr {sgpr}
  .amdhsa_accum_offset {vgpr}
  .amdhsa_group_segment_fixed_size 0
  .amdhsa_kernarg_size 104
  .amdhsa_user_sgpr_count 2
  .amdhsa_user_sgpr_kernarg_segment_ptr 1
  .amdhsa_system_sgpr_workgroup_id_x 1
  .amdhsa_float_denorm_mode_32 3
.end_amdhsa_kernel
"""

DEF = dict(abl="", sm="q:1,trans:2,vdone:3,qpub:4,ystore:5,polls:6,end:7", sw=0, bar=2, barend=62,
           pf=-1, polp='', rotS=3, rotM=85, mw=1, g_at=10, x_at=20, xw=1, yw=3, loc=1, y0late=1, o2n=2, DP=4, DK=3, DV=3, DE=3, de_at=999, W=6, bdrain=16, polout='', wo_start=18, wo_every=2, polw="nt", polo="", sc="sc1", maxparts=6,
           pk0=2, pk1=1, qdelay=3, f2_at=12, m_at=6, pubw=0, fixend=0)

def build(**kw):
    P = dict(DEF); P.update(kw)
    a = kernel(P)
    s = HEADER
    s += f"; @launch grid=(256,1,1) block=(512,1,1) lds={LDS_A}\n"
    s += '.amdgcn_target "amdgcn-amd-amdhsa--gfx950"\n.text\n'
    s += f".globl {KN}_kernel\n.p2align 8\n.type {KN}_kernel,@function\n{KN}_kernel:\n" + a
    s += '.section .rodata,"a"\n.p2align 6\n' + desc(KN + "_kernel", 256, 102)
    return s

if __name__ == "__main__":
    out = sys.argv[1]
    kw = {}
    for a in sys.argv[2:]:
        k, v = a.split("=", 1)
        kw[k] = int(v) if v.lstrip("-").isdigit() else v.replace("+", " ")
    open(out, "w").write(build(**kw))
```

```python
import sys, struct
from em import Em
KN = "recurrent_scan__gqa_block_cached__dense_activation_squared_relu__decode"
R = 8192 * 384
def f32(x): return "0x%08x" % struct.unpack("<I", struct.pack("<f", x))[0]
LOG2E = 1.4426950408889634
XN, TP, QB, MX, FP, YP, GP, SP, CO, OP = 0, 2560, 6656, 8960, 9216, 0, 40960, 41472, 41984, 42048
OST = 800
LDS_A = OP + 2 * 8 * OST
EP_OFF, ML_OFF, PX_OFF, G_OFF, Y_OFF, X_OFF, WS_SIZE = 0, 0x1000, 0x10000, 0x30000, 0x50000, 0x190000, 0x200000
KVTOT = 64 * R
SLAB = 245760
OOB = 0x40000000
DPPF = "row_mask:0xf bank_mask:0xf"
SPIN = 200000

HEADER = open("cdna_kernels/" + KN + ".s.ref").read().split("; Override launch")[0]

def allred8(e, op, rs):
    for m in ("quad_perm:[1,0,3,2]", "quad_perm:[2,3,0,1]", "row_half_mirror"):
        for r in rs: e(f"{op}_dpp v{r}, v{r}, v{r} {m} {DPPF}")
def allred_rows(e, op, r, t):
    for k in (16, 32):
        e(f"v_mov_b32 v{t}, v{r}"); e(f"v_permlane{k}_swap_b32 v{r}, v{t}"); e(f"{op} v{r}, v{r}, v{t}")
def swapred(e, kind, pairs):
    for a, b in pairs: e(f"v_permlane{kind}_swap_b32 v{a}, v{b}")
    for a, b in pairs: e(f"v_add_f32 v{a}, v{a}, v{b}")
def swapred_pk(e, kind, a, b, n):
    for x in range(n): e(f"v_permlane{kind}_swap_b32 v{a+x}, v{b+x}")
    for x in range(0, n, 2): e(f"v_pk_add_f32 v[{a+x}:{a+x+1}], v[{a+x}:{a+x+1}], v[{b+x}:{b+x+1}]")
def srd(e, d, lo, hi, size, addlo=None):
    if addlo is None:
        e(f"s_mov_b32 s{d}, s{lo}"); e(f"s_mov_b32 s{d+1}, s{hi}")
    else:
        e(f"s_add_u32 s{d}, s{lo}, {addlo}"); e(f"s_addc_u32 s{d+1}, s{hi}, 0")
    e(f"s_mov_b32 s{d+2}, {size}"); e(f"s_mov_b32 s{d+3}, 0x20000")
def bf16r(e, r):
    e(f"v_cvt_pk_bf16_f32 v{r}, v{r}, v{r}"); e(f"v_and_b32 v{r}, s13, v{r}")

def kernel(P):
    wo_start, wo_every = P["wo_start"], P["wo_every"]
    NR = 2; NH = NR // 2; G = 4 * NR; gpr = 32 // NR
    HB = QB + 768 * NH
    SF, SCO = [28, 29, 30, 31], [32, 33, 24, 25]
    polw, polo, SC1 = P["polw"], P["polo"], P["sc"]
    stamps = P.get("stamps", False)
    abl = P["abl"]
    e = Em(); slow = Em()
    ACC, Q, SC, BUF0, NBUF = 16, 40, 52, 84, 14
    SK, SV, SWQ, SWO, SX, SB1, SW2, SWS = 44, 48, 52, 56, 60, 64, 68, 76
    SB2, SOUT = SWQ, SB1
    TAG, SEL, MSK = 75, 72, 73
    XV, B2V = 254, 255
    def S(d): return f"s[{d}:{d+3}]"
    smap = dict(kv.split(":") for kv in P["sm"].split(","))
    def stamp(name):
        if stamps and name in smap:
            k = int(smap[name]); e(f"s_memrealtime s[{84+2*k}:{85+2*k}]"); e("s_waitcnt lgkmcnt(0)")
    e("s_cmp_ge_u32 s2, 256"); e("s_cbranch_scc1 LA_done")
    e("s_load_dwordx16 s[16:31], s[0:1], 0")
    e("s_load_dwordx8 s[32:39], s[0:1], 64")
    e("s_load_dwordx2 s[40:41], s[0:1], 96")
    if stamps or P["fixend"]: e("s_memrealtime s[84:85]")
    e("v_lshrrev_b32 v9, 6, v0"); e("v_and_b32 v1, 63, v0"); e("v_readfirstlane_b32 s3, v9")
    e("s_and_b32 s80, s2, 7"); e("s_lshr_b32 s81, s2, 3")
    e("s_lshr_b32 s82, s81, 3")
    if NH == 1: e("s_lshl2_add_u32 s4, s80, s82"); e("s_mov_b32 s5, s4")
    else:
        e("s_lshr_b32 s4, s81, 4"); e("s_lshl1_add_u32 s4, s80, s4"); e("s_and_b32 s5, s82, 1"); e("s_lshl4_add_u32 s5, s5, s4")
    e("s_and_b32 s83, s81, 7")
    e("s_cmp_ge_u32 s83, 3"); e("s_cselect_b32 s42, 1, 0"); e("s_mul_i32 s43, s42, 3"); e("s_sub_u32 s43, s83, s43")
    e("s_mul_i32 s100, s5, 3"); e("s_add_u32 s43, s43, s100")
    e("s_mul_i32 s100, s80, 3"); e("s_add_u32 s100, s100, s82")
    e("s_sub_u32 s101, s83, 6")
    e("s_cmp_eq_u32 s82, 3"); e(f"s_cselect_b32 s12, 0, {319*3072+128}")
    e("s_movk_i32 s10, 3072")
    e("s_cmp_lt_u32 s83, 6")
    e("s_cselect_b32 s42, s42, s101"); e("s_cselect_b32 s43, s43, s100"); e("s_cselect_b32 s10, 12288, s10")
    e(f"s_cselect_b32 s{SWQ+2}, {319*12288+128}, s12")
    e("s_mul_i32 s11, s42, 320"); e("s_mul_i32 s42, s11, s10"); e("s_mul_i32 s43, s43, 128")
    if "l" in abl:
        e("s_mul_i32 s42, s11, 128"); e("s_mul_i32 s43, s43, 640"); e("s_movk_i32 s10, 128"); e(f"s_min_u32 s{SWQ+2}, s{SWQ+2}, 40960"); e("s_cmp_lt_u32 s83, 6")
    e("v_lshrrev_b32 v9, 3, v0"); e("v_and_b32 v10, 7, v1"); e("v_lshlrev_b32 v10, 4, v10")
    e("v_mul_u32_u24 v3, s10, v9"); e("v_add_u32 v3, v3, v10")
    e("s_mul_i32 s12, s3, 1280")
    e("v_mul_u32_u24 v11, 20, v1"); e("v_add_u32 v11, s12, v11")
    e("s_mul_i32 s10, s10, 64")
    e("s_waitcnt lgkmcnt(0)")
    e("s_cselect_b32 s100, s22, s28"); e("s_cselect_b32 s101, s23, s29")
    srd(e, SX, 16, 17, 2560)
    if stamps:
        for k in range(1, 8): e(f"s_mov_b32 s{84+2*k}, s84")
    x0 = e.vm(f"buffer_load_dwordx4 v[12:15], v11, {S(SX)}, 0 offen")
    x1 = e.vm(f"buffer_load_dword v8, v11, {S(SX)}, 0 offen offset:16")
    e("s_add_u32 s42, s42, s43")
    e(f"s_add_u32 s{SWQ}, s100, s42"); e(f"s_addc_u32 s{SWQ+1}, s101, 0"); e(f"s_mov_b32 s{SWQ+3}, 0x20000")
    if "w" in abl: e(f"s_mov_b32 s{SWQ+2}, 0")
    wid = []
    for i in range(5):
        if i >= 2: e(f"s_mul_i32 s12, s10, {i}")
        so = "0" if i == 0 else ("s10" if i == 1 else "s12")
        wid.append(e.vm(f"buffer_load_dwordx4 v[{SC+4*i}:{SC+4*i+3}], v3, {S(SWQ)}, {so} offen {polw}"))
    e(f"s_load_dword s{TAG}, s[40:41], {EP_OFF}")
    e(f"s_and_b32 s6, s81, {G-1}")
    e("s_lshl_b32 s7, s80, 5"); e("s_add_u32 s7, s7, s81")
    e(f"s_mul_i32 s8, s4, {R}")
    e("v_lshrrev_b32 v9, 3, v1"); e("v_mul_u32_u24 v2, 384, v9"); e("v_add_u32 v2, v2, v10")
    e("s_lshl3_add_u32 s9, s6, s3")
    if P["rotM"]:
        e(f"s_lshr_b32 s82, s4, {P['rotS']}"); e(f"s_mul_i32 s82, s82, {P['rotM']}"); e("s_add_u32 s9, s9, s82")
    e("s_mul_i32 s9, s9, 3072"); e("s_add_u32 s9, s9, s8"); e(f"s_add_u32 s8, s8, {R}")
    srd(e, SK, 18, 19, KVTOT)

    def late_setup():
        srd(e, SV, 20, 21, KVTOT)
        e("s_sub_u32 s81, 31, s81"); e("s_mul_i32 s82, s81, 26"); e("s_lshr_b32 s82, s82, 8")
        e("s_mul_i32 s83, s82, 10"); e("s_sub_u32 s83, s81, s83")
        e("s_mul_i32 s74, s80, 3"); e("s_add_u32 s74, s74, s82")
        e(f"s_mul_i32 s81, s74, {64*1280}"); e("s_lshl_b32 s100, s83, %d" % (13 if "m" in abl else 7)); e("s_add_u32 s81, s81, s100")
        e("s_mul_i32 s26, s83, 24"); e("s_add_u32 s26, s26, s74"); e("s_lshl_b32 s26, s26, 9"); e(f"s_add_u32 s26, s26, {G_OFF}")
        e("s_lshl2_add_u32 s27, s80, s82"); e("s_lshl_b32 s27, s27, 12"); e(f"s_add_u32 s27, s27, {PX_OFF+6*512}")
        e("s_cmp_lt_u32 s82, 3")
        e("s_cselect_b32 s81, s81, 0"); e(f"s_cselect_b32 s100, {0 if 'w' in abl else (8192 if 'm' in abl else 63*1280+128)}, 0"); e(f"s_cselect_b32 s26, s26, {OOB}"); e("s_cselect_b32 s74, s74, 99")
        srd(e, SW2, 32, 33, "s100", "s81")
        e("s_mul_i32 s81, s4, 245760"); e("s_mul_i32 s12, s3, 10240")
        srd(e, SWO, 24, 25, 0 if "o" in abl else SLAB * (1 if NH == 1 else 17), "s81")
        srd(e, SB1, 30, 31, 3072)
        srd(e, SWS, 40, 41, 0 if "s" in abl else WS_SIZE)
        e("s_mov_b32 s13, 0xffff0000"); e(f"s_mov_b32 s14, {f32(192 ** -0.5)}"); e(f"s_mov_b32 s15, {f32(LOG2E)}")
        e(f"s_mov_b32 s{SEL}, 0x0c0c0400"); e(f"s_mov_b32 s{MSK}, 0xffffff00")
        e("s_cmp_lt_u32 s2, %d" % (0 if "c" in abl else 80)); e("s_cselect_b32 s100, 1, 0")
        e("s_cmp_ge_u32 s2, 40"); e("s_cselect_b32 s42, 1, 0"); e("s_mul_i32 s43, s42, 40"); e("s_sub_u32 s43, s2, s43"); e("s_lshl_b32 s43, s43, 6")
        e("v_lshlrev_b32 v4, 4, v1"); e("v_lshlrev_b32 v5, 2, v1")
        e("s_mov_b32 s20, 0x05040100"); e("s_mov_b32 s21, 0x07060302")
        e("v_mov_b32 v7, 0xff800000"); e("s_mov_b32 s32, 1")
        for r in range(ACC, ACC + 16): e(f"v_mov_b32 v{r}, 0")

    items = []
    on = 0
    W = P["W"]; assert W % 3 == 0
    vl = [(t, j) for t in range(32 - W) for j in range(3)] + [(t, j) for j in range(3) for t in range(32 - W, 32)]
    for pos in range(64):
        items.append(("K", pos) if pos < 32 else ("V", pos - 32))
        if pos >= wo_start and (pos - wo_start) % wo_every == 0 and on < 12:
            items.append(("O", on)); on += 1
        if pos == 32 + P["m_at"]: items.append(("M", 0))
        if pos == 32 + P["g_at"]: items.append(("G", 0))
        if pos == 32 + P["x_at"]: items.append(("X", 0))
    assert on == 12, on
    if P["pf"] >= 0: items.insert(P["pf"], ("P", 0))
    pool = list(range(NBUF))
    def alloc(top=False):
        assert pool, "out of buffers"
        pool.sort(); return BUF0 + 12 * pool.pop(-1 if top else 0)
    def free(r): pool.append((r - BUF0) // 12)
    state = dict(addr=False, q=False, p=False, kdone=0, vdone=0, f2=0, st=0, ml=0, g=False, m=0, qreg=0, qwait=False, needbar=False, y0=0, x=0, o2=12)
    vcnt = {}; Adone = []; Abar = set(); Bq = []; Bdone = set(); Bfin = set()
    inflight = {k: [] for k in "KVOFQMGX"}
    stores = []
    pend = []
    LO = {}; HI = {}
    cur_so = [None]
    taken = set()
    heavy = []
    pacing = [False]
    def soff(base, const):
        key = (base, const)
        if cur_so[0] != key:
            e(f"s_add_u32 s10, s{base}, {const}"); cur_so[0] = key
    def kv_soff(t):
        key = ("kv", t)
        if cur_so[0] == key: return
        cur_so[0] = key
        r, tl = divmod(t, gpr)
        o = tl * G * 64 * 384; rc = ((r & 1) * 32 + (r >> 1) * 16) * R
        if P["rotM"]:
            e(f"s_add_u32 s10, s9, {o}"); e("s_cmp_ge_u32 s10, s8")
            e(f"s_cselect_b32 s83, {R}, 0"); e("s_sub_u32 s10, s10, s83")
            if rc: e(f"s_add_u32 s10, s10, {rc}")
        else: e(f"s_add_u32 s10, s9, {o+rc}")
    def q_loads(E):
        return [E.vm(f"buffer_load_dwordx4 v[{Q}:{Q+3}], v{Q+6}, {S(SWS)}, 0 offen {SC1}")]
    MR, GR, GA, XR = SC, SC + 4, SC + 8, SC
    def x_loads(E):
        E("s_mov_b32 exec_hi, 0xffff")
        i = E.vm(f"buffer_load_dwordx4 v[{XR}:{XR+3}], v4, {S(SWS)}, s27 offen {SC1}")
        E("s_mov_b32 exec_hi, -1")
        return [i]
    def m_loads(E):
        return [E.vm(f"buffer_load_dwordx4 v[{MR}:{MR+3}], v{MR+4}, {S(SWS)}, 0 offen {SC1}")]
    def g_loads(E):
        return [E.vm(f"buffer_load_dwordx4 v[{GR}:{GR+3}], v{GA}, {S(SWS)}, 0 offen {SC1}")]
    def hload(t):
        if pacing[0]:
            D = P["DV"] if state["p"] else (P["DK"] if state["q"] else P["DP"])
            if len(heavy) >= P["de_at"]: D = P["DE"]
            if D >= 10: D = D // 10 + (1 if (len(heavy) * (D % 10)) % 10 < D % 10 else 0)
            i = len(heavy) - D
            if i >= 0: e.wait_vm(heavy[i])
        i = e.vm(t); heavy.append(i); return i
    W2R, B1R = SC + 28, SC + 27
    def issue(it):
        kind, n = it
        if kind in "KV":
            stamp("g%d" % (n + (32 if kind == "V" else 0)))
            r = alloc()
            s = SK if kind == "K" else SV
            ent = [n, r, [], 0]
            inflight[kind].append(ent)
            for k in range(3):
                t, j = (n, k) if kind == "K" else vl[3 * n + k]
                kv_soff(t)
                ent[2].append(hload(f"buffer_load_dwordx4 v[{r+4*k}:{r+4*k+3}], v2, {S(s)}, s10 offen offset:{128*j} nt"))
                if pacing[0]: run_ready()
        elif kind == "O":
            hs, n_ = divmod(n, 12)
            r = BUF0 + 12 * NBUF - 10 * (n_ + 1)
            for bi in {(r - BUF0) // 12, (r + 9 - BUF0) // 12}:
                if bi in pool: pool.remove(bi); taken.add(bi)
                assert bi in taken, "wo landing buffer busy"
            j_, p_ = n_ // 4, n_ % 4
            soff(12, (64 * j_ + 2 * p_) * 1280 + hs * 16 * SLAB)
            ids = []
            for h in range(2):
                ids.append(e.vm(f"buffer_load_dwordx4 v[{r+4*h}:{r+4*h+3}], v4, {S(SWO)}, s10 offen offset:{1280*h} {polo}"))
                ids.append(e.vm(f"buffer_load_dword v{r+8+h}, v5, {S(SWO)}, s10 offen offset:{1280*h+1024} {polo}"))
            inflight[kind].append((n, r, ids))
        elif kind == "P":
            e("s_and_b32 s80, s6, 7"); e("s_lshl3_add_u32 s80, s80, s3"); e("s_mul_i32 s80, s80, 3840")
            if NH == 2:
                e("s_lshr_b32 s81, s6, 3"); e(f"s_mul_i32 s81, s81, {16*SLAB}"); e("s_add_u32 s80, s80, s81")
            for k in range(4):
                if k == 3: e("s_mov_b32 exec_hi, 0xffff")
                hload(f"buffer_load_dwordx4 v[248:251], v4, {S(SWO)}, s80 offen offset:{1024*k} {P['polp']}")
            e("s_mov_b32 exec_hi, -1")
        elif kind == "F":
            e("v_lshrrev_b32 v9, 3, v0"); e("v_mul_u32_u24 v9, %d, v9" % (128 if "m" in abl else 1280)); e("v_and_b32 v10, 7, v1"); e("v_lshl_add_u32 v9, v10, 4, v9")
            ids = [e.vm(f"buffer_load_dwordx4 v[{W2R}:{W2R+3}], v9, {S(SW2)}, 0 offen {polw}")]
            e("v_and_b32 v9, 15, v1"); e("v_lshlrev_b32 v9, 3, v9"); e("v_lshrrev_b32 v10, 5, v1"); e(f"v_lshl_add_u32 v{Q+7}, v10, 2, v9")
            e("s_lshl_b32 s80, s74, 7")
            ids.append(e.vm(f"buffer_load_dword v{B1R}, v{Q+7}, {S(SB1)}, s80 offen"))
            inflight[kind].append((n, 0, ids))
            e("s_cmp_eq_u32 s42, 0"); e("s_movk_i32 s80, 5120"); e("s_cselect_b32 s80, 40960, s80")
            e("v_lshrrev_b32 v9, 2, v0"); e("v_mul_u32_u24 v9, s80, v9"); e("v_and_b32 v0, 3, v0"); e("v_lshl_add_u32 v0, v0, 4, v9")
        elif kind == "Q":
            e(f"s_andn2_b32 s80, s7, {G-1}"); e("s_cmp_ge_u32 s3, 3"); e("s_cselect_b32 s81, 5, 0"); e("s_add_u32 s81, s81, s3")
            e(f"s_cmp_lt_u32 s3, {3*NH}"); e("s_cselect_b32 s81, s81, 0"); e("s_add_u32 s80, s80, s81")
            e("s_lshl_b32 s80, s80, 9"); e(f"s_add_u32 s80, s80, {PX_OFF}")
            e("s_cmp_lt_u32 s74, 24"); e("s_cselect_b32 s81, s3, 99"); e("s_movk_i32 s83, 1536")
            e(f"s_cmp_eq_u32 s81, {3*NH}"); e("s_cselect_b32 s80, s27, s80"); e("s_cselect_b32 s83, 512, s83")
            e("v_lshrrev_b32 v9, 5, v1"); e("v_mul_u32_u24 v9, s83, v9"); e("v_and_b32 v10, 31, v1"); e("v_lshl_add_u32 v9, v10, 4, v9")
            e(f"v_add_u32 v{Q+6}, s80, v9")
            stamp("qissue")
            inflight[kind].append((n, Q, q_loads(e)))
        elif kind == "M":
            assert state["vdone"] >= 5 and state["ml"] == 2
            e(f"v_and_b32 v9, {G-1}, v1"); e("v_lshlrev_b32 v9, 7, v9"); e(f"v_bfe_u32 v{MR+4}, v1, 4, {NH}"); e(f"v_lshl_add_u32 v9, v{MR+4}, 4, v9")
            e(f"s_andn2_b32 s80, s7, {G-1}"); e("s_lshl_b32 s80, s80, 7"); e(f"s_add_u32 s80, s80, {ML_OFF}")
            e(f"s_cmp_eq_u32 s3, {P['mw']}"); e(f"s_cselect_b32 s80, s80, {OOB}"); e(f"v_add_u32 v{MR+4}, s80, v9")
            inflight[kind].append((n, MR, m_loads(e)))
        elif kind == "G":
            assert state["vdone"] >= 9 and state["m"] >= 1 and state["x"] == 0
            a = GA
            e(f"v_lshrrev_b32 v{a}, 2, v1"); e(f"v_cmp_gt_u32 vcc, 3, v{a}"); e(f"v_lshlrev_b32 v{a}, 9, v{a}")
            e("v_and_b32 v9, 3, v1"); e(f"v_lshl_add_u32 v{a}, v9, 4, v{a}"); e(f"v_mov_b32 v9, {OOB}"); e(f"v_cndmask_b32 v{a}, v9, v{a}, vcc")
            e("s_cmp_eq_u32 s100, 1"); e(f"s_cselect_b32 s82, 0, {OOB}")
            e("s_lshr_b32 s80, s43, 8"); e("s_mul_i32 s80, s80, 24"); e("s_mul_i32 s81, s3, 3"); e("s_add_u32 s80, s80, s81"); e("s_lshl_b32 s80, s80, 9")
            e("s_lshl_b32 s81, s42, 8"); e("s_add_u32 s80, s80, s81"); e("s_and_b32 s81, s43, 0xc0"); e("s_add_u32 s80, s80, s81")
            e("s_add_u32 s80, s80, s82"); e(f"s_add_u32 s80, s80, {G_OFF}"); e(f"v_add_u32 v{a}, s80, v{a}")
            ids = g_loads(e)
            srd(e, SB2, 34, 35, 1280); srd(e, SOUT, 36, 37, 2560)
            e("v_and_b32 v9, 15, v1"); e("v_lshlrev_b32 v9, 1, v9")
            e("s_lshr_b32 s80, s43, 1"); e("s_add_u32 s80, s80, s82"); e("s_mul_i32 s81, s42, 1280"); e("s_add_u32 s81, s81, s80")
            ids.append(e.vm(f"buffer_load_ushort v{B2V}, v9, {S(SB2)}, s80 offen"))
            ids.append(e.vm(f"buffer_load_ushort v{XV}, v9, {S(SX)}, s81 offen"))
            inflight[kind].append((n, GR, ids))
        elif kind == "X":
            assert state["x"] == 2, state
            e("s_andn2_b32 s27, s7, 7"); e("s_add_u32 s27, s27, s3"); e("s_mul_i32 s27, s27, 768"); e(f"s_add_u32 s27, s27, {X_OFF}")
            inflight[kind].append((n, XR, x_loads(e)))
    def issue_next(n=1):
        for _ in range(n): issue(items.pop(0))

    def put_tag(E, r):
        for k in range(4): E(f"v_mov_b32_sdwa v{r+k}, s{TAG} dst_sel:BYTE_0 dst_unused:UNUSED_PRESERVE src0_sel:BYTE_{k}")
    def cmp_tag(E, r, t0, t1):
        E(f"v_perm_b32 v{t0}, v{r+1}, v{r}, s{SEL}"); E(f"v_perm_b32 v{t1}, v{r+3}, v{r+2}, s{SEL}")
        E(f"v_lshl_or_b32 v{t0}, v{t1}, 16, v{t0}"); E(f"v_cmp_ne_u32 vcc, s{TAG}, v{t0}")
    def dual_store(text, name):
        if not P["loc"]: return e.vm(f"{text} {SC1}")
        e(f"s_cbranch_scc0 L{name}_far")
        i = e.vm(text); e.label(f"L{name}_back")
        slow.label(f"L{name}_far"); slow(f"{text} {SC1}"); slow(f"s_branch L{name}_back")
        return i
    def tagcheck(name, cmp, loadfn, cond_consumer, wb=False):
        if "s" in abl: return
        cmp(e)
        e(f"s_cbranch_scc1 L{name}_slow"); e.label(f"L{name}_ok"); e("s_nop 0")
        slow.label(f"L{name}_slow")
        if cond_consumer:
            slow("s_cmp_eq_u32 s100, 0"); slow(f"s_cbranch_scc1 L{name}_ok")
        slow(f"s_mov_b32 s101, {SPIN}")
        slow.label(f"L{name}_loop")
        slow("s_nop 4")
        if wb and P["loc"]:
            slow("s_and_b32 s80, s101, 15"); slow("s_cmp_lg_u32 s80, 1"); slow(f"s_cbranch_scc1 L{name}_nowb")
            slow("buffer_wbl2 sc1"); slow("s_waitcnt vmcnt(0)")
            slow.label(f"L{name}_nowb")
        loadfn(slow); slow("s_waitcnt vmcnt(0)")
        cmp(slow)
        slow(f"s_cbranch_scc0 L{name}_ok")
        slow("s_sub_u32 s101, s101, 1"); slow(f"s_cbranch_scc0 L{name}_loop"); slow(f"s_branch L{name}_ok")

    def layernorm():
        stamp("setup")
        e("s_cmp_ge_u32 s3, 2"); e("s_cbranch_scc1 Lln")
        sv = e.vmdone
        e.wait_vm(x1)
        stamp("xland")
        t = Q
        src = [12, 13, 14, 15, 8]
        for k in range(5):
            e(f"v_lshlrev_b32 v{t+2*k}, 16, v{src[k]}"); e(f"v_and_b32 v{t+2*k+1}, s13, v{src[k]}")
        e(f"v_add_f32 v9, v{t}, v{t+1}")
        for k in range(2, 10): e(f"v_add_f32 v9, v9, v{t+k}")
        allred8(e, "v_add_f32", [9]); e(f"v_add_f32_dpp v9, v9, v9 row_mirror {DPPF}"); allred_rows(e, "v_add_f32", 9, 10)
        e(f"v_mul_f32 v9, {f32(1/640)}, v9")
        e("v_mov_b32 v12, 0")
        for k in range(10):
            e(f"v_sub_f32 v13, v{t+k}, v9"); e("v_fmac_f32 v12, v13, v13")
        allred8(e, "v_add_f32", [12]); e(f"v_add_f32_dpp v12, v12, v12 row_mirror {DPPF}"); allred_rows(e, "v_add_f32", 12, 10)
        e(f"v_mul_f32 v12, {f32(1/640)}, v12")
        e("v_cvt_pk_bf16_f32 v9, v9, v12")
        e("v_and_b32 v12, s13, v9"); e("v_lshlrev_b32 v9, 16, v9")
        e(f"v_add_f32 v12, {f32(1e-5)}, v12"); e("v_cvt_pk_bf16_f32 v12, v12, v12"); e("v_and_b32 v12, s13, v12")
        e("v_sqrt_f32 v12, v12"); e("v_cvt_pk_bf16_f32 v12, v12, v12"); e("v_and_b32 v12, s13, v12")
        e("v_rcp_f32 v13, v12")
        for k in range(10): e(f"v_sub_f32 v{t+k}, v{t+k}, v9")
        for k in range(5):
            a, b = t + 2 * k, t + 2 * k + 1
            e(f"v_cvt_pk_bf16_f32 v{b}, v{a}, v{b}"); e(f"v_lshlrev_b32 v{a}, 16, v{b}"); e(f"v_and_b32 v{b}, s13, v{b}")
            for r in (a, b):
                e(f"v_mul_f32 v14, v{r}, v13"); e(f"v_fma_f32 v15, -v14, v12, v{r}"); e(f"v_fma_f32 v{r}, v15, v13, v14")
            e(f"v_cvt_pk_bf16_f32 v{a}, v{a}, v{b}")
            e(f"ds_write_b32 v11, v{a} offset:{XN+4*k}")
        e.label("Lln"); e.vmdone = sv
        stamp("ln")
        e("v_lshrrev_b32 v9, 3, v0"); e("v_add_u32 v9, s11, v9"); e("v_lshlrev_b32 v9, 1, v9")
        e("s_waitcnt lgkmcnt(0)"); e("s_barrier")
        for i in range(5):
            for b in range(2): e(f"ds_read_u16 v{Q+2*i+b}, v9 offset:{XN+1280*b+128*i}")
        e(f"s_and_b32 s80, s{TAG}, 0x7f7f7f7f"); e("s_add_u32 s80, s80, 0x01010101"); e(f"s_and_b32 s{TAG}, s{TAG}, 0x80808080"); e(f"s_xor_b32 s{TAG}, s{TAG}, s80")
        issue_next(P["pk1"])
        stamp("bar0")

    def tile_dots(r, m0, m1):
        for b, m in enumerate((m0, m1)):
            e(f"v_lshlrev_b32 v{9+b}, 16, v{m}")
        for b, m in enumerate((m0, m1)):
            for dw in range(4):
                e(f"v_dot2c_f32_bf16 v{ACC+8*b+2*dw}, v{r+dw}, v{m}")
                e(f"v_dot2c_f32_bf16 v{ACC+8*b+2*dw+1}, v{r+dw}, v{9+b}")
    def tile_reduce(base):
        e("v_and_b32 v11, 7, v1"); e("v_lshlrev_b32 v11, 5, v11"); e("s_lshl_b32 s80, s3, 9"); e("v_add_u32 v11, s80, v11")
        e("v_bfe_u32 v9, v1, 5, 1"); e("v_lshl_add_u32 v11, v9, 8, v11"); e("v_bfe_u32 v9, v1, 3, 2"); e("v_lshl_add_u32 v11, v9, 3, v11")
        swapred(e, 32, [(ACC + x, ACC + 8 + x) for x in range(8)])
        swapred(e, 16, [(ACC + x, ACC + 4 + x) for x in range(4)])
        for x in range(2): e(f"v_add_f32_dpp v{ACC+4+x}, v{ACC+x}, v{ACC+x} row_ror:8 row_mask:0xf bank_mask:0x3")
        for x in range(2): e(f"v_add_f32_dpp v{ACC+4+x}, v{ACC+2+x}, v{ACC+2+x} row_ror:8 row_mask:0xf bank_mask:0xc")
        e(f"ds_write_b64 v11, v[{ACC+4}:{ACC+5}] offset:{base}")
    def tile_publish(base, sreg, tag, dual=False):
        e("v_and_b32 v10, 31, v1"); e("v_lshlrev_b32 v10, 4, v10"); e("v_bfe_u32 v9, v1, 5, 1"); e("v_lshl_add_u32 v9, v9, 11, v10")
        for w in range(4): e(f"ds_read_b128 v[{ACC+4*w}:{ACC+4*w+3}], v9 offset:{base+512*w}")
        e("s_waitcnt lgkmcnt(0)")
        for st in (8, 4):
            for k in range(st): e(f"v_add_f32 v{ACC+k}, v{ACC+k}, v{ACC+st+k}")
        for k in range(4): e(f"v_mov_b32 v{ACC+4+k}, v{ACC+k}")
        swapred(e, 32, [(ACC + k, ACC + 4 + k) for k in range(4)])
        if tag: put_tag(e, ACC)
        e("s_mov_b64 exec, 0xffffffff")
        t = f"buffer_store_dwordx4 v[{ACC}:{ACC+3}], v10, {S(SWS)}, {sreg} offen"
        if dual: e("s_cmp_lt_u32 s6, 6"); dual_store(t, "px")
        else: e.vm(f"{t} {SC1}")
        e("s_mov_b64 exec, -1"); e("s_nop 0")

    def w_phase():
        e("s_waitcnt lgkmcnt(0)")
        for i in range(5):
            e.wait_vm(wid[i]); tile_dots(SC + 4 * i, Q + 2 * i, Q + 2 * i + 1)
        stamp("wdots")
        tile_reduce(TP)
        e("s_lshl_b32 s81, s7, 9"); e(f"s_add_u32 s81, s81, {PX_OFF}"); e(f"s_cmp_eq_u32 s3, {P['pubw']}"); e(f"s_cselect_b32 s81, s81, {OOB}")
        e("s_waitcnt lgkmcnt(0)"); e("s_barrier")
        stamp("bar1")
        tile_publish(TP, "s81", True, True)
        stamp("qpub")

    def q_read(r):
        for j in range(3): e(f"ds_read_b128 v[{Q+4*j}:{Q+4*j+3}], v6 offset:{QB+384*r+128*j}")
        state["qreg"] = r; state["qwait"] = True
    def q_final():
        inflight["Q"].pop(0)
        assert e.landed(inflight["F"][0][2][-1])
        stamp("qland")
        def cmp(E):
            cmp_tag(E, Q, 9, 10); E("s_cmp_lg_u64 vcc, 0")
        tagcheck("q", cmp, q_loads, False, True)
        stamp("qok")
        for k in range(4): e(f"v_and_b32 v{Q+k}, s{MSK}, v{Q+k}")
        swapred(e, 32, [(Q, Q + 2), (Q + 1, Q + 3)])
        a, b = Q, Q + 1
        e(f"v_cvt_pk_bf16_f32 v{b}, v{a}, v{b}")
        e(f"s_cmp_lt_u32 s3, {3*NH}"); e("s_cbranch_scc1 Lqh")
        e(f"v_lshlrev_b32 v{a}, 16, v{b}"); e(f"v_and_b32 v{b}, s13, v{b}")
        e(f"v_lshlrev_b32 v9, 16, v{B1R}"); e(f"v_and_b32 v10, s13, v{B1R}")
        e(f"v_add_f32 v{a}, v{a}, v9"); e(f"v_add_f32 v{b}, v{b}, v10")
        e(f"v_cvt_pk_bf16_f32 v{b}, v{a}, v{b}"); e(f"v_lshlrev_b32 v{a}, 16, v{b}"); e(f"v_and_b32 v{b}, s13, v{b}")
        e(f"v_max_f32 v{a}, 0, v{a}"); e(f"v_max_f32 v{b}, 0, v{b}")
        e(f"v_mul_f32 v{a}, v{a}, v{a}"); e(f"v_mul_f32 v{b}, v{b}, v{b}")
        e(f"v_cvt_pk_bf16_f32 v{b}, v{a}, v{b}")
        e.label("Lqh")
        e("s_mul_i32 s80, s3, 43"); e("s_lshr_b32 s80, s80, 7"); e("s_mul_i32 s80, s80, 3"); e("s_add_u32 s80, s80, s3"); e("s_lshl_b32 s80, s80, 7")
        e("v_bfe_u32 v9, v1, 4, 1"); e("v_mul_u32_u24 v9, 384, v9"); e(f"v_add3_u32 v10, s80, v9, v{Q+7}")
        e("v_and_b32 v6, 7, v1"); e("v_lshlrev_b32 v6, 4, v6")
        e(f"s_cmp_gt_u32 s3, {3*NH}"); e("s_cbranch_scc1 Lqw")
        e(f"ds_write_b32 v10, v{b} offset:{QB}")
        e.label("Lqw")
        e("s_waitcnt lgkmcnt(0)"); e("s_barrier")
        q_read(0)
        state["q"] = True
        stamp("q")

    def post_ops(a, b):
        ops = []
        for m in ("quad_perm:[1,0,3,2]", "quad_perm:[2,3,0,1]", "row_half_mirror"):
            for r in (a, b): ops.append(f"v_add_f32_dpp v{r}, v{r}, v{r} {m} {DPPF}")
        ops += [f"v_cvt_pk_bf16_f32 v{b}, v{a}, v{b}", f"v_lshlrev_b32 v{a}, 16, v{b}", f"v_and_b32 v{b}, s13, v{b}",
                f"v_mul_f32 v{a}, s14, v{a}", f"v_mul_f32 v{b}, s14, v{b}",
                f"v_cvt_pk_bf16_f32 v{b}, v{a}, v{b}", f"v_lshlrev_b32 v{a}, 16, v{b}", f"v_and_b32 v{b}, s13, v{b}",
                f"v_max3_f32 v7, v7, v{a}, v{b}"]
        return ops
    def drain_pend(n):
        for _ in range(min(n, len(pend))):
            x = pend.pop(0)
            if callable(x): x()
            else: e(x)
        while pend and callable(pend[0]): pend.pop(0)()
    def stat_ops(r):
        L = []; A = L.append
        A(f"v_max_f32_dpp v7, v7, v7 row_ror:8 {DPPF}"); allred_rows(A, "v_max_f32", 7, 14)
        A("v_mul_f32 v3, s15, v7")
        ts = list(range(r * gpr, (r + 1) * gpr))
        for c in range(0, gpr, 4):
            tc = ts[c:c + 4]
            for t in tc: A(f"v_fma_f32 v{SC+t}, v{SC+t}, s15, -v3")
            for t in tc: A(f"v_exp_f32 v{SC+t}, v{SC+t}")
            for t in tc: A(f"v_add_f32 v8, v8, v{SC+t}" if t != ts[0] else f"v_mov_b32 v8, v{SC+t}")
            for t in tc: A(f"v_cvt_pk_bf16_f32 v{SC+t}, v{SC+t}, 0")
        A(f"v_add_f32_dpp v8, v8, v8 row_ror:8 {DPPF}"); allred_rows(A, "v_add_f32", 8, 14)
        A("v_lshlrev_b32 v14, 3, s3" .replace("v_lshlrev_b32 v14, 3, s3", "v_lshlrev_b32_e64 v14, 3, s3"))
        A(f"ds_write_b32 v14, v7 offset:{MX+64*r}"); A(f"ds_write_b32 v14, v8 offset:{MX+64*r+4}")
        A("v_mov_b32 v7, 0xff800000")
        def done():
            state["st"] = r + 1
            if r == NR - 1: state["needbar"] = True
        A(done)
        return L
    def k_part(ent):
        t, r, ids, j = ent
        a = SC + t
        assert t < 27 or state["f2"] >= 1
        assert state["qreg"] == t // gpr
        if state["qwait"]: e("s_waitcnt lgkmcnt(0)"); state["qwait"] = False
        if j == 0: e(f"v_mov_b32 v{a}, 0")
        for dw in range(4):
            e(f"v_dot2c_f32_bf16 v{a}, v{r+4*j+dw}, v{Q+4*j+dw}")
            if dw or j: drain_pend(1 if len(pend) < 20 else 3)
        ent[3] += 1
        if ent[3] == 3:
            free(r); state["kdone"] += 1
            if t % 2 == 1: pend.extend(post_ops(a - 1, a))
            if t % gpr == gpr - 1:
                pend.extend(stat_ops(t // gpr))
                if t < 31: q_read(t // gpr + 1)
    def phi(t): return 253 if t < 32 - W else SC + 16 + t - (32 - W)
    def v_part(ent):
        n, r, ids, k = ent
        t, j = vl[3 * n + k]
        plo = SC + t
        rg = t // gpr
        assert state["st"] > rg
        assert rg == 0 or (rg - 1, j) in Adone
        if j == 0: e(f"v_lshlrev_b32 v{phi(t)}, 16, v{plo}")
        for dw in range(4):
            e(f"v_dot2c_f32_bf16 v{ACC+8*j+2*dw}, v{r+4*k+dw}, v{plo}")
            e(f"v_dot2c_f32_bf16 v{ACC+8*j+2*dw+1}, v{r+4*k+dw}, v{phi(t)}")
        ent[3] += 1; vcnt[(rg, j)] = vcnt.get((rg, j), 0) + 1
        if ent[3] == 3:
            free(r); state["vdone"] += 1
        if vcnt[(rg, j)] == gpr and (rg, j) != (NR - 1, 2): step_A(rg, j)
    YB = [Q, SC]
    def step_A(r, j):
        assert state["ml"] == 2 and state["addr"]
        assert r < 2 or (r - 2, j) in Bdone
        assert state["m"] == 3
        a = ACC + 8 * j
        swapred_pk(e, 32, a, a + 4, 4); swapred_pk(e, 16, a, a + 2, 2)
        e(f"v_add_f32_dpp v{a+2}, v{a}, v{a} row_ror:8 row_mask:0xf bank_mask:0x3")
        e(f"v_add_f32_dpp v{a+2}, v{a+1}, v{a+1} row_ror:8 row_mask:0xf bank_mask:0xc")
        e(f"v_mul_f32 v9, s{SF[r]}, v{a+2}"); e(f"ds_write_b32 v10, v9 offset:{OP+8*OST*(r&1)+256*j}")
        if r < NR - 1:
            for x in range(0, 8, 2): e(f"v_mov_b64 v[{a+x}:{a+x+1}], 0")
        Adone.append((r, j)); Bq.append((r, j))
        if r == NR - 1 or j == 2: state["needbar"] = True
    def b_ready(r, j):
        return (r, j) in Abar and state["m"] == 3 and all((r >> 1, j, p_, 4) in LO for p_ in range(4)) and state["x"] == 4
    def step_B(r, j):
        assert not pend and b_ready(r, j)
        Bq.remove((r, j)); Bdone.add((r, j))
        e(f"ds_read_b32 v9, v11 offset:{OP+8*OST*(r&1)+256*j}")
        e("s_waitcnt lgkmcnt(0)")
        allred8(e, "v_add_f32", [9])
        e(f"v_mov_b32_dpp v14, v9 row_ror:8 {DPPF}"); e(f"v_cvt_pk_bf16_f32 v9, v9, v14")
        for p_ in range(4): e(f"v_readlane_b32 s{16+p_}, v9, {16*p_}")
        Y = YB[r & 1]; hs = r >> 1
        for p_ in range(4):
            for dw in range(5):
                pend.append(f"v_dot2c_f32_bf16 v{Y+2*dw}, s{16+p_}, v{LO[(hs,j,p_,dw)]}")
                pend.append(f"v_dot2c_f32_bf16 v{Y+2*dw+1}, s{16+p_}, v{HI[(hs,j,p_,dw)]}")
            pend.append(lambda p_=p_: Bfin.add((r, j, p_)))
    def y_write(b):
        Y = YB[b]
        e(f"ds_write_b128 v12, v[{Y}:{Y+3}] offset:{YP+2560*b}"); e(f"ds_write_b128 v12, v[{Y+4}:{Y+7}] offset:{YP+2560*b+16}")
        e(f"ds_write_b64 v6, v[{Y+8}:{Y+9}] offset:{YP+2560*b+2048}")
    def pka(a, b):
        for k in (0, 2): e(f"v_pk_add_f32 v[{a+k}:{a+k+1}], v[{a+k}:{a+k+1}], v[{b+k}:{b+k+1}]")
    def x_publish():
        assert state["g"] and state["vdone"] >= 16
        e("s_mul_i32 s81, s7, 768"); e(f"s_add_u32 s81, s81, {X_OFF}"); e(f"s_cmp_eq_u32 s3, {P['xw']}"); e(f"s_cselect_b32 s81, s81, {OOB}")
        e("s_mov_b32 exec_hi, 0xffff"); e("s_cbranch_scc0 Lxp")
        for w in range(7): e(f"ds_read_b128 v[{Q+4*w}:{Q+4*w+3}], v4 offset:{OP+OST*w}")
        e("s_waitcnt lgkmcnt(5)"); pka(Q, Q + 4)
        e(f"ds_read_b128 v[{Q+4}:{Q+7}], v4 offset:{OP+OST*7}")
        for w in range(2, 7): e(f"s_waitcnt lgkmcnt({7-w})"); pka(Q, Q + 4 * w)
        e("s_waitcnt lgkmcnt(0)"); pka(Q, Q + 4)
        put_tag(e, Q)
        e("s_nop 0"); e.label("Lxp")
        assert P["xw"] == P["mw"]
        e("s_cmp_eq_u32 s32, 1"); dual_store(f"buffer_store_dwordx4 v[{Q}:{Q+3}], v4, {S(SWS)}, s81 offen", "xs")
        e("s_mov_b32 exec_hi, -1")
        state["x"] = 1
        stamp("xpub")
    def x_step():
        inflight["X"].pop(0)
        def cmp(E):
            cmp_tag(E, XR, 9, 14); E("s_nop 0"); E("s_and_b32 vcc_hi, vcc_hi, 0xffff"); E("s_cmp_lg_u64 vcc, 0")
        stamp("xland")
        tagcheck("x", cmp, x_loads, False)
        for k in range(4): e(f"v_and_b32 v{XR+k}, s{MSK}, v{XR+k}")
        e(f"s_mul_i32 s80, s3, {OST}"); e("v_add_u32 v9, s80, v4")
        e("s_mov_b32 exec_hi, 0xffff"); e(f"ds_write_b128 v9, v[{XR}:{XR+3}] offset:{OP}"); e("s_mov_b32 exec_hi, -1")
        for r in range(Q, Q + 10, 2): e(f"v_mov_b64 v[{r}:{r+1}], 0")
        e("s_waitcnt lgkmcnt(0)")
        for r in range(SC, SC + 10, 2): e(f"v_mov_b64 v[{r}:{r+1}], 0")
        state["x"] = 3; state["needbar"] = True
        stamp("xstep")
    def y0_final():
        t = [Q, Q + 4, Q + 8, SC + 12]
        e("s_andn2_b32 s81, s7, 7"); e("s_mul_i32 s81, s81, 5120"); e("s_mul_i32 s80, s6, 320"); e("s_add_u32 s81, s81, s80"); e(f"s_add_u32 s81, s81, {Y_OFF}")
        e(f"s_cmp_eq_u32 s3, {P['yw']}"); e(f"s_cselect_b32 s26, s81, {OOB}"); e("s_cbranch_scc0 Ly0")
        e("v_lshrrev_b32 v9, 5, v1"); e(f"v_mul_u32_u24 v9, {4*5120-512}, v9"); e("v_add3_u32 v9, v9, s80, v4")
        for k in range(4): e(f"ds_read_b128 v[{t[k]}:{t[k]+3}], v9 offset:{YP+5120*k}")
        for k in range(1, 4): e(f"s_waitcnt lgkmcnt({3-k})"); pka(Q, t[k])
        for k in (0, 2): e(f"v_mov_b64 v[{Q+4+k}:{Q+5+k}], v[{Q+k}:{Q+k+1}]")
        swapred_pk(e, 32, Q, Q + 4, 4)
        put_tag(e, Q)
        e("s_nop 0"); e.label("Ly0")
        state["y0"] = 3
        if not P["y0late"]: y0_store()
    def y0_store():
        e("s_mov_b64 exec, 0xfffff")
        e.vm(f"buffer_store_dwordx4 v[{Q}:{Q+3}], v4, {S(SWS)}, s26 offen {SC1}")
        e("s_mov_b64 exec, -1")
        stamp("y0st")
    def shadow():
        if pend: drain_pend(P["bdrain"]); return True
        if state["x"] == 0 and (0, 2) in Abar: x_publish(); return True
        if state["y0"] == 0 and all((0, j, 3) in Bfin for j in range(3)):
            y_write(0); state["y0"] = 1; state["needbar"] = True; return True
        if state["y0"] == 2: y0_final(); return True
        for rj in Bq:
            if b_ready(*rj): step_B(*rj); return True
        return False
    def tail_addr():
        e("v_and_b32 v10, 7, v1"); e(f"v_mul_u32_u24 v11, {OST}, v10"); e("v_lshlrev_b32 v10, 5, v10")
        e("v_bfe_u32 v9, v1, 5, 1"); e("v_lshl_add_u32 v10, v9, 4, v10")
        e("v_bfe_u32 v9, v1, 3, 2"); e("v_lshl_add_u32 v10, v9, 2, v10")
        e(f"s_mul_i32 s80, s3, {OST}"); e("v_add_u32 v10, s80, v10")
        e("v_lshrrev_b32 v9, 3, v1"); e("v_lshl_add_u32 v11, v9, 2, v11")
        e("s_lshl_b32 s80, s3, 5"); e("v_add_u32 v11, s80, v11")
        e("v_and_b32 v12, 15, v1"); e("v_lshlrev_b32 v8, 5, v12"); e("v_lshlrev_b32 v3, 1, v12")
        e("s_mul_i32 s80, s3, 5120"); e("v_lshl_add_u32 v12, v1, 5, s80"); e("v_lshl_add_u32 v6, v1, 3, s80")
        e("s_mul_i32 s80, s3, 320"); e("v_lshl_add_u32 v13, v1, 4, s80")
        e("s_mul_i32 s11, s7, 5120"); e(f"s_add_u32 s11, s11, {Y_OFF}")
        e(f"s_mul_i32 s22, s42, 2560"); e("s_add_u32 s22, s22, s43"); e(f"s_add_u32 s22, s22, {Y_OFF}")
        e(f"s_add_u32 s5, s22, {128*5120}")
        e("s_cmp_eq_u32 s42, 1"); e(f"s_cselect_b32 s5, s5, {OOB}"); e("s_cselect_b64 s[30:31], -1, 0"); e("s_cselect_b32 s80, 0, s3")
        e("s_cmp_lt_u32 s80, 2"); e(f"s_cselect_b32 s22, s22, {OOB}"); e("s_cselect_b64 s[24:25], -1, 0")
        e("s_mul_i32 s23, s42, 1280"); e("s_lshr_b32 s80, s43, 1"); e("s_add_u32 s23, s23, s80")
        state["addr"] = True

    def f2a():
        inflight["F"].pop(0)
        e("v_lshrrev_b32 v9, 3, v1"); e("s_lshl_b32 s80, s3, 4"); e("v_lshl_add_u32 v9, v9, 1, s80")
        e(f"ds_read_u16 v12, v9 offset:{HB}"); e(f"ds_read_u16 v13, v9 offset:{HB+384}")
        for r in range(ACC, ACC + 16): e(f"v_mov_b32 v{r}, 0")
        e("s_waitcnt lgkmcnt(0)")
        tile_dots(W2R, 12, 13)
        tile_reduce(FP)
        e("s_waitcnt lgkmcnt(0)")
        state["f2"] = 1
        if not P["bar"]:
            e("s_barrier"); state["f2"] = 2
    def f2b():
        e(f"s_cmp_eq_u32 s3, {P['pubw']}"); e(f"s_cselect_b32 s81, s26, {OOB}")
        tile_publish(FP, "s81", True)
        for r in range(ACC + 23, ACC - 1, -1): e(f"v_mov_b32 v{r}, 0")
        e("v_and_b32 v15, 3, v1"); e("v_lshlrev_b32 v15, 7, v15"); e("v_bfe_u32 v9, v1, 5, 1"); e("v_lshl_add_u32 v15, v9, 6, v15")
        e("v_bfe_u32 v9, v1, 4, 1"); e("v_lshl_add_u32 v15, v9, 5, v15"); e("s_lshl_b32 s80, s3, 2"); e("v_add_u32 v15, s80, v15")
        state["f2"] = 3

    def transition():
        assert state["f2"] == 3
        while state["st"] < 1: drain_pend(1)
        state["p"] = True
        stamp("trans")

    def ml_publish():
        e("v_and_b32 v9, 31, v1"); e("v_lshlrev_b32 v9, 3, v9")
        e(f"ds_read_b64 v[12:13], v9 offset:{MX}")
        e("s_getreg_b32 s33, hwreg(HW_REG_XCC_ID, 0, 4)"); e(f"s_xor_b32 s33, s33, s{TAG}")
        e("s_lshl_b32 s81, s7, 7"); e(f"s_add_u32 s81, s81, {ML_OFF}"); e(f"s_cmp_eq_u32 s3, {P['pubw']}"); e(f"s_cselect_b32 s80, s81, {OOB}")
        e("v_lshrrev_b32 v9, 2, v9")
        for r in range(NR): e(f"s_add_u32 s{SF[r]}, s3, {8*r}")
        e("s_waitcnt lgkmcnt(0)")
        e("v_mov_b32 v10, v12"); allred8(e, "v_max_f32", [10])
        e("v_sub_f32 v12, v12, v10"); e("v_mul_f32 v12, s15, v12"); e("v_exp_f32 v11, v12"); e("v_mul_f32 v12, v11, v13")
        for r in range(NR): e(f"v_readlane_b32 s{SF[r]}, v11, s{SF[r]}")
        allred8(e, "v_add_f32", [12])
        e(f"v_mov_b32 v11, s{TAG}"); e(f"v_mov_b32 v13, s33")
        e(f"s_mov_b64 exec, {0x01010101 if NR == 4 else 0x0101}")
        e.vm(f"buffer_store_dwordx4 v[10:13], v9, {S(SWS)}, s80 offen {'' if P['loc'] else SC1}")
        e("s_mov_b64 exec, -1"); e("s_nop 0")
        state["ml"] = 2
        stamp("mlpub")

    def m_step():
        inflight["M"].pop(0)
        e(f"s_cmp_lg_u32 s3, {P['mw']}"); e("s_cbranch_scc1 Lm_skip")
        def cmp(E):
            E(f"v_xor_b32 v9, s{TAG}, v{MR+3}"); E(f"v_cmp_ne_u32 vcc, s{TAG}, v{MR+1}"); E(f"v_cmp_lt_u32 s[80:81], 15, v9"); E("s_or_b64 vcc, vcc, s[80:81]")
        tagcheck("m", cmp, m_loads, False, True)
        if P["loc"]:
            e(f"v_cmp_ne_u32 vcc, s33, v{MR+3}"); e("s_cmp_eq_u64 vcc, 0"); e(f"s_cselect_b32 s32, {0 if 'f' in abl else 1}, 0"); e("s_cbranch_scc0 Lm_far"); e.label("Lm_back")
            slow.label("Lm_far"); slow("buffer_wbl2 sc1"); slow("s_waitcnt vmcnt(0)"); slow("s_branch Lm_back")
        m, l, t0, t1 = MR, MR + 2, MR + 1, MR + 3
        steps = ["quad_perm:[1,0,3,2]", "quad_perm:[2,3,0,1]", "row_half_mirror"] + (["row_mirror"] if G == 16 else [])
        for i, md in enumerate(steps): e(f"v_max_f32_dpp v{t0}, v{t0 if i else m}, v{t0 if i else m} {md} {DPPF}")
        e(f"v_sub_f32 v{t0}, v{m}, v{t0}"); e(f"v_mul_f32 v{t0}, s15, v{t0}"); e(f"v_exp_f32 v{t0}, v{t0}")
        e(f"v_mul_f32 v{t1}, v{t0}, v{l}")
        for md in steps: e(f"v_add_f32_dpp v{t1}, v{t1}, v{t1} {md} {DPPF}")
        e(f"v_rcp_f32 v{t1}, v{t1}"); e(f"v_mul_f32 v{t0}, v{t0}, v{t1}")
        e(f"v_lshlrev_b32 v{t1}, 2, v1")
        e(f"ds_write_b32 v{t1}, v{t0} offset:{FP}")
        e.label("Lm_skip")
        state["m"] = 1; state["needbar"] = True
        stamp("mstep")
    def c_get():
        e("v_and_b32 v9, 3, v1"); e("v_lshlrev_b32 v9, 6, v9"); e("s_lshl_b32 s80, s6, 2"); e("v_add_u32 v9, s80, v9")
        e(f"ds_read_b32 v9, v9 offset:{FP}"); e("s_waitcnt lgkmcnt(0)")
        e(f"v_mul_f32 v14, s{SF[0]}, v9"); e(f"v_mul_f32 v9, s{SF[1]}, v9")
        e(f"v_readlane_b32 s{SF[0]}, v14, 0"); e(f"v_readlane_b32 s{SF[1]}, v9, 1")
        state["m"] = 3

    def col_reduce(a, base):
        swapred(e, 32, [(a, a + 2), (a + 1, a + 3)])
        swapred(e, 16, [(a, a + 1)])
        e(f"v_add_f32_dpp v{a}, v{a}, v{a} row_ror:8 {DPPF}"); e(f"v_add_f32_dpp v{a}, v{a}, v{a} row_ror:4 {DPPF}")
        e(f"ds_write_b32 v15, v{a} offset:{base}")
    def g_step():
        inflight["G"].pop(0)
        def cmp(E):
            cmp_tag(E, GR, 9, 14); E("s_and_b64 vcc, vcc, 0xfff")
        tagcheck("g", cmp, g_loads, True)
        for k in range(4): e(f"v_and_b32 v{GR+k}, s{MSK}, v{GR+k}")
        col_reduce(GR, GP)
        state["g"] = True

    def operm(n, r):
        hs, n_ = divmod(n, 12)
        j_, p_ = n_ // 4, n_ % 4
        f = 252
        for dw in range(5):
            a, b = (r + dw, r + 4 + dw) if dw < 4 else (r + 8, r + 9)
            e(f"v_perm_b32 v{f}, v{b}, v{a}, s20"); e(f"v_perm_b32 v{b}, v{b}, v{a}, s21")
            LO[(hs, j_, p_, dw)] = f; HI[(hs, j_, p_, dw)] = b
            f = a
        e(f"v_mov_b32 v{f}, v252"); LO[(hs, j_, p_, 0)] = f

    def run_ready():
        if inflight["Q"] and e.landed(inflight["Q"][0][2][-1]): q_final()
        np_ = 0
        while state["q"] and inflight["K"] and np_ < P["maxparts"]:
            ent = inflight["K"][0]
            if ent[3] >= len(ent[2]) or not e.landed(ent[2][ent[3]]): break
            k_part(ent); np_ += 1
            if ent[3] == 3: inflight["K"].pop(0)
        if state["q"] and state["f2"] == 0 and state["kdone"] >= P["f2_at"]: f2a()
        elif state["f2"] == 2: f2b()
        while inflight["O"] and e.landed(inflight["O"][0][2][-1]):
            n, r, ids = inflight["O"].pop(0); operm(n, r)
        if state["kdone"] == 32 and not state["p"]: transition()
        while state["p"] and inflight["V"]:
            ent = inflight["V"][0]
            if ent[3] >= len(ent[2]) or not e.landed(ent[2][ent[3]]): break
            v_part(ent)
            if ent[3] == 3: inflight["V"].pop(0)
        if state["p"]:
            if state["ml"] == 1: ml_publish()
            elif state["ml"] == 2 and not state["addr"]: tail_addr()
            elif state["m"] == 2: c_get()
            else: shadow()
        if inflight["M"] and e.landed(inflight["M"][0][2][-1]): m_step()
        if inflight["G"] and e.landed(inflight["G"][0][2][-1]): g_step()
        if inflight["X"] and e.landed(inflight["X"][0][2][-1]): x_step()

    late_setup()
    def tlbpf():
        e("v_lshlrev_b32 v253, 12, v1"); e.vm(f"buffer_load_dword v252, v253, {S(SWO)}, 0 offen")
        if P["tlb"] & 4: e.vm(f"buffer_load_dword v252, v253, {S(SW2)}, 0 offen")
    if P["tlb"] & 1: tlbpf()
    issue_next(P["pk0"])
    layernorm(); w_phase()
    pacing[0] = True
    items.insert(0, ("F", 0))
    items.insert(1 + P["qdelay"], ("Q", 0))
    while items:
        it = items.pop(0)
        if P["tlb"] & 2 and it == ("K", P["tlb_at"]): tlbpf()
        issue(it)
        run_ready()
        if it[0] in "KV" and P["bar"] and state["q"]:
            pos = it[1] + (32 if it[0] == "V" else 0)
            if (pos % P["bar"] == P["bar"] - 1 and pos < P["barend"]) or state["needbar"]:
                if state["needbar"]:
                    e("s_waitcnt lgkmcnt(0)"); Abar.update(Adone); state["needbar"] = False
                    if state["m"] == 1: state["m"] = 2
                    if state["x"] == 3: state["x"] = 4; print("x bar at", pos, file=sys.stderr)
                    if state["y0"] == 1: state["y0"] = 2; print("y0 bar at", pos, file=sys.stderr)
                    if state["st"] == NR and state["ml"] == 0: state["ml"] = 1
                e("s_barrier")
                if state["f2"] == 1: state["f2"] = 2
                if state["x"] == 1: state["x"] = 2; print("xpub bar at", pos, file=sys.stderr)
            if NH == 2:
                for k in range(P["o2n"]):
                    n_ = state["o2"] - 12
                    if n_ < 12 and all((r, n_ // 4, n_ % 4) in Bfin for r in (0, 1)):
                        items.insert(k, ("O", state["o2"])); state["o2"] += 1
    assert state["g"] and state["m"] == 3 and state["addr"]
    e(f"s_mov_b32 s101, {SPIN}")
    assert not inflight["K"] and state["p"] and not inflight["O"]
    assert (NR - 1, 1) in Abar, state
    if P["y0late"] == 1: assert state["y0"] == 3; y0_store()
    while inflight["V"]:
        v = inflight["V"][0]
        last = len(inflight["V"]) == 1 and v[3] == 2
        shadow()
        if last:
            nb = len(e.L)
            while shadow(): pass
            print("leftover shadow lines before last V:", len(e.L) - nb, file=sys.stderr)
        e.wait_vm(v[2][v[3]]); v_part(v)
        if v[3] == 3: inflight["V"].pop(0)
    assert state["y0"] == 3 and not Bq and not pend
    stamp("vdone")
    step_A(NR - 1, 2); Abar.update(Adone)
    e("s_waitcnt lgkmcnt(0)"); e("s_barrier")
    stamp("tb1")
    step_B(NR - 1, 2); drain_pend(99)
    stamp("tdots")
    y_write(1)
    e("s_mov_b64 exec, 0xfffff")
    e("s_waitcnt lgkmcnt(0)"); e("s_barrier")
    stamp("tb2")
    for w in range(8): e(f"ds_read_b128 v[{BUF0+4*w}:{BUF0+4*w+3}], v13 offset:{YP+5120*w+2560}")
    for w in range(1, 8):
        e(f"s_waitcnt lgkmcnt({7-w})")
        for k in (0, 2): e(f"v_pk_add_f32 v[{BUF0+k}:{BUF0+k+1}], v[{BUF0+k}:{BUF0+k+1}], v[{BUF0+4*w+k}:{BUF0+4*w+k+1}]")
    put_tag(e, BUF0)
    e.vm(f"buffer_store_dwordx4 v[{BUF0}:{BUF0+3}], v13, {S(SWS)}, s11 offen offset:2560 {SC1}")
    e("s_mov_b64 exec, -1")
    if P["y0late"] == 2: y0_store()
    stamp("ystore")
    if stamps and "yack" in smap:
        e("s_waitcnt vmcnt(0)"); stamp("yack")
    e("s_cmp_eq_u32 s100, 0"); e("s_cbranch_scc1 LA_fin")
    B = BUF0 + 32
    def pload():
        e(f"buffer_load_dwordx4 v[{B}:{B+3}], v0, {S(SWS)}, s22 offen {SC1}")
        e(f"buffer_load_dwordx4 v[{B+4}:{B+7}], v0, {S(SWS)}, s5 offen {SC1}")
    def pk(op, a, b, c): e(f"v_pk_{op}_f32 v[{a}:{a+1}], v[{b}:{b+1}], v[{c}:{c+1}]")
    def sum8(r):
        pk("add", r, r, r + 4); pk("add", r + 2, r + 2, r + 6); pk("add", r, r, r + 2); e(f"v_add_f32 v{r}, v{r}, v{r+1}")
    pload()
    g = ACC
    e(f"ds_read_b128 v[{g}:{g+3}], v8 offset:{GP}"); e(f"ds_read_b128 v[{g+4}:{g+7}], v8 offset:{GP+16}")
    e(f"v_lshlrev_b32 v{B2V}, 16, v{B2V}"); e(f"v_lshlrev_b32 v{XV}, 16, v{XV}")
    e("s_waitcnt lgkmcnt(0)")
    sum8(g)
    bf16r(e, g); e(f"v_add_f32 v{g}, v{g}, v{B2V}"); bf16r(e, g)
    e(f"v_mul_f32 v9, s15, v{g}"); e("v_exp_f32 v9, -v9"); e("v_add_f32 v9, 1.0, v9"); e("v_rcp_f32 v9, v9")
    e(f"v_mul_f32 v{g}, v{g}, v9"); bf16r(e, g)
    e.label("Lpoll")
    e("s_waitcnt vmcnt(1)")
    cmp_tag(e, B, 9, 10); e("s_and_b64 s[80:81], vcc, s[24:25]")
    e("s_waitcnt vmcnt(0)")
    cmp_tag(e, B + 4, 9, 10); e("s_and_b64 vcc, vcc, s[30:31]")
    e("s_or_b64 exec, vcc, s[80:81]"); e("s_cbranch_scc0 Lpoll_done")
    e("s_sub_u32 s101, s101, 1"); e("s_cbranch_scc1 Lpoll_done")
    pload()
    e("s_branch Lpoll")
    e.label("Lpoll_done")
    e("s_mov_b64 exec, -1")
    stamp("pdone")
    for k in range(8): e(f"v_and_b32 v{B+k}, s{MSK}, v{B+k}")
    pk("add", B, B, B + 4); pk("add", B + 2, B + 2, B + 6)
    swapred_pk(e, 32, B, B + 2, 2)
    swapred(e, 16, [(B, B + 1)])
    e(f"v_add_f32_dpp v{B}, v{B}, v{B} row_ror:8 {DPPF}"); e(f"v_add_f32_dpp v{B}, v{B}, v{B} row_ror:4 {DPPF}")
    e(f"ds_write_b32 v15, v{B} offset:{SP}")
    e("s_cmp_lg_u32 s3, 0")
    e("s_waitcnt lgkmcnt(0)"); e("s_barrier")
    stamp("cbar")
    e("s_cbranch_scc1 LA_fin")
    e(f"ds_read_b128 v[{B}:{B+3}], v8 offset:{SP}"); e(f"ds_read_b128 v[{B+4}:{B+7}], v8 offset:{SP+16}")
    e("s_waitcnt lgkmcnt(0)")
    sum8(B)
    bf16r(e, B); e(f"v_mul_f32 v{B}, v{B}, v{g}"); bf16r(e, B); e(f"v_add_f32 v{B}, v{B}, v{XV}")
    e(f"v_cvt_pk_bf16_f32 v{B}, v{B}, v{B}")
    e("s_mov_b64 exec, 0xffff")
    e(f"buffer_store_short v{B}, v3, {S(SOUT)}, s23 offen {P['polout']}")
    stamp("ostore")
    e("s_cmp_lg_u32 s2, 0"); e("s_cbranch_scc1 LA_fin")
    e(f"v_mov_b32 v9, s{TAG}"); e("s_mov_b64 exec, 1")
    e(f"buffer_store_dword v9, off, {S(SWS)}, 0 offset:{EP_OFF} {SC1}")
    e.label("LA_fin")
    if P["fixend"]:
        e("s_cmp_lg_u32 s2, 0"); e("s_cbranch_scc1 LA_done"); e("s_cmp_lg_u32 s3, 0"); e("s_cbranch_scc1 LA_done")
        e("s_waitcnt vmcnt(0)"); e("s_memrealtime s[86:87]"); e("s_waitcnt lgkmcnt(0)"); e("s_sub_u32 s86, s86, s84")
        e("s_mov_b32 s40, s38"); e("s_mov_b32 s41, s39"); e("s_mov_b32 s42, 256"); e("s_mov_b32 s43, 0x20000")
        e("s_mov_b64 exec, 1"); e("v_mov_b32 v9, s86"); e("buffer_store_dword v9, off, s[40:43], 0")
        e.label("Lfix"); e("s_memrealtime s[86:87]"); e("s_waitcnt lgkmcnt(0)"); e("s_sub_u32 s86, s86, s84")
        e(f"s_cmp_lt_u32 s86, {P['fixend']}"); e("s_cbranch_scc1 Lfix")
    if stamps:
        e(f"s_cmp_lg_u32 s3, {P['sw']}"); e("s_cbranch_scc1 LA_done")
        e("s_mov_b64 exec, 1")
        e("s_waitcnt vmcnt(0)")
        stamp("end")
        e("s_add_u32 s40, s40, 0x10000000"); e("s_addc_u32 s41, s41, 0"); e("s_mov_b32 s42, 0x100000"); e("s_mov_b32 s43, 0x20000")
        e("s_getreg_b32 s85, hwreg(HW_REG_XCC_ID)")
        if "polls" in smap:
            k = 84 + 2 * int(smap["polls"])
            e(f"s_sub_u32 s{k}, {SPIN}, s101"); e(f"s_mul_i32 s{k}, s{k}, 100"); e(f"s_add_u32 s{k}, s{k}, s84")
        for k in range(16): e(f"v_mov_b32 v{16+k}, s{84+k}")
        e("s_lshl_b32 s80, s2, 6"); e("v_mov_b32 v1, s80")
        for k in range(4): e(f"buffer_store_dwordx4 v[{16+4*k}:{19+4*k}], v1, s[40:43], 0 offen offset:{16*k}")
    e.label("LA_done")
    e("s_endpgm")
    return e.text() + slow.text() + "    s_endpgm\n"

def desc(name, vgpr, sgpr):
    return f""".amdhsa_kernel {name}
  .amdhsa_next_free_vgpr {vgpr}
  .amdhsa_next_free_sgpr {sgpr}
  .amdhsa_accum_offset {vgpr}
  .amdhsa_group_segment_fixed_size 0
  .amdhsa_kernarg_size 104
  .amdhsa_user_sgpr_count 2
  .amdhsa_user_sgpr_kernarg_segment_ptr 1
  .amdhsa_system_sgpr_workgroup_id_x 1
  .amdhsa_float_denorm_mode_32 3
.end_amdhsa_kernel
"""

DEF = dict(abl="", sm="q:1,trans:2,vdone:3,qpub:4,ystore:5,polls:6,end:7", sw=0, bar=2, barend=62,
           pf=-1, polp='', rotS=3, rotM=85, mw=1, g_at=10, x_at=21, xw=1, yw=3, loc=1, tlb=0, tlb_at=14, y0late=1, o2n=2, DP=4, DK=3, DV=3, DE=3, de_at=999, W=3, bdrain=20, polout='', wo_start=18, wo_every=2, polw="nt", polo="", sc="sc1", maxparts=6,
           pk0=2, pk1=1, qdelay=3, f2_at=12, m_at=6, pubw=0, fixend=0)

def build(**kw):
    P = dict(DEF); P.update(kw)
    a = kernel(P)
    s = HEADER
    s += f"; @launch grid=(256,1,1) block=(512,1,1) lds={LDS_A}\n"
    s += '.amdgcn_target "amdgcn-amd-amdhsa--gfx950"\n.text\n'
    s += f".globl {KN}_kernel\n.p2align 8\n.type {KN}_kernel,@function\n{KN}_kernel:\n" + a
    s += '.section .rodata,"a"\n.p2align 6\n' + desc(KN + "_kernel", 256, 102)
    return s

if __name__ == "__main__":
    out = sys.argv[1]
    kw = {}
    for a in sys.argv[2:]:
        k, v = a.split("=", 1)
        kw[k] = int(v) if v.lstrip("-").isdigit() else v.replace("+", " ")
    open(out, "w").write(build(**kw))
```

```python
import sys, struct
from em import Em
KN = "recurrent_scan__gqa_block_cached__dense_activation_squared_relu__decode"
R = 8192 * 384
def f32(x): return "0x%08x" % struct.unpack("<I", struct.pack("<f", x))[0]
LOG2E = 1.4426950408889634
XN, TP, QB, MX, FP, YP, GP, SP, CO, OP = 0, 2560, 6656, 8960, 9216, 0, 40960, 41472, 41984, 42048
OST = 800
LDS_A = OP + 2 * 8 * OST
EP_OFF, ML_OFF, PX_OFF, G_OFF, Y_OFF, X_OFF, WS_SIZE = 0, 0x1000, 0x10000, 0x30000, 0x50000, 0x190000, 0x200000
KVTOT = 64 * R
SLAB = 245760
OOB = 0x40000000
DPPF = "row_mask:0xf bank_mask:0xf"
SPIN = 200000

HEADER = open("cdna_kernels/" + KN + ".s.ref").read().split("; Override launch")[0]

def allred8(e, op, rs):
    for m in ("quad_perm:[1,0,3,2]", "quad_perm:[2,3,0,1]", "row_half_mirror"):
        for r in rs: e(f"{op}_dpp v{r}, v{r}, v{r} {m} {DPPF}")
def allred_rows(e, op, r, t):
    for k in (16, 32):
        e(f"v_mov_b32 v{t}, v{r}"); e(f"v_permlane{k}_swap_b32 v{r}, v{t}"); e(f"{op} v{r}, v{r}, v{t}")
def swapred(e, kind, pairs):
    for a, b in pairs: e(f"v_permlane{kind}_swap_b32 v{a}, v{b}")
    for a, b in pairs: e(f"v_add_f32 v{a}, v{a}, v{b}")
def swapred_pk(e, kind, a, b, n):
    for x in range(n): e(f"v_permlane{kind}_swap_b32 v{a+x}, v{b+x}")
    for x in range(0, n, 2): e(f"v_pk_add_f32 v[{a+x}:{a+x+1}], v[{a+x}:{a+x+1}], v[{b+x}:{b+x+1}]")
def srd(e, d, lo, hi, size, addlo=None):
    if addlo is None:
        e(f"s_mov_b32 s{d}, s{lo}"); e(f"s_mov_b32 s{d+1}, s{hi}")
    else:
        e(f"s_add_u32 s{d}, s{lo}, {addlo}"); e(f"s_addc_u32 s{d+1}, s{hi}, 0")
    e(f"s_mov_b32 s{d+2}, {size}"); e(f"s_mov_b32 s{d+3}, 0x20000")
def bf16r(e, r):
    e(f"v_cvt_pk_bf16_f32 v{r}, v{r}, v{r}"); e(f"v_and_b32 v{r}, s13, v{r}")

def kernel(P):
    wo_start, wo_every = P["wo_start"], P["wo_every"]
    NR = 2; NH = NR // 2; G = 4 * NR; gpr = 32 // NR
    HB = QB + 768 * NH
    SF, SCO = [28, 29, 30, 31], [32, 33, 24, 25]
    polw, polo, SC1 = P["polw"], P["polo"], P["sc"]
    stamps = P.get("stamps", False)
    abl = P["abl"]
    e = Em(); slow = Em()
    ACC, Q, SC, BUF0, NBUF = 16, 40, 52, 84, 14
    SK, SV, SWQ, SWO, SX, SB1, SW2, SWS = 44, 48, 52, 56, 60, 64, 68, 76
    SB2, SOUT = SWQ, SB1
    TAG, SEL, MSK = 75, 72, 73
    XV, B2V = 254, 255
    def S(d): return f"s[{d}:{d+3}]"
    smap = dict(kv.split(":") for kv in P["sm"].split(","))
    def stamp(name):
        if stamps and name in smap:
            k = int(smap[name]); e(f"s_memrealtime s[{84+2*k}:{85+2*k}]"); e("s_waitcnt lgkmcnt(0)")
    e("s_cmp_ge_u32 s2, 256"); e("s_cbranch_scc1 LA_done")
    e("s_load_dwordx16 s[16:31], s[0:1], 0")
    e("s_load_dwordx8 s[32:39], s[0:1], 64")
    e("s_load_dwordx2 s[40:41], s[0:1], 96")
    if stamps or P["fixend"]: e("s_memrealtime s[84:85]")
    e("v_lshrrev_b32 v9, 6, v0"); e("v_and_b32 v1, 63, v0"); e("v_readfirstlane_b32 s3, v9")
    e("s_and_b32 s80, s2, 7"); e("s_lshr_b32 s81, s2, 3")
    e("s_lshr_b32 s82, s81, 3")
    if NH == 1: e("s_lshl2_add_u32 s4, s80, s82"); e("s_mov_b32 s5, s4")
    else:
        e("s_lshr_b32 s4, s81, 4"); e("s_lshl1_add_u32 s4, s80, s4"); e("s_and_b32 s5, s82, 1"); e("s_lshl4_add_u32 s5, s5, s4")
    e("s_and_b32 s83, s81, 7")
    e("s_cmp_ge_u32 s83, 3"); e("s_cselect_b32 s42, 1, 0"); e("s_mul_i32 s43, s42, 3"); e("s_sub_u32 s43, s83, s43")
    e("s_mul_i32 s100, s5, 3"); e("s_add_u32 s43, s43, s100")
    e("s_mul_i32 s100, s80, 3"); e("s_add_u32 s100, s100, s82")
    e("s_sub_u32 s101, s83, 6")
    e("s_cmp_eq_u32 s82, 3"); e(f"s_cselect_b32 s12, 0, {319*3072+128}")
    e("s_movk_i32 s10, 3072")
    e("s_cmp_lt_u32 s83, 6")
    e("s_cselect_b32 s42, s42, s101"); e("s_cselect_b32 s43, s43, s100"); e("s_cselect_b32 s10, 12288, s10")
    e(f"s_cselect_b32 s{SWQ+2}, {319*12288+128}, s12")
    e("s_mul_i32 s11, s42, 320"); e("s_mul_i32 s42, s11, s10"); e("s_mul_i32 s43, s43, 128")
    if "l" in abl:
        e("s_mul_i32 s42, s11, 128"); e("s_mul_i32 s43, s43, 640"); e("s_movk_i32 s10, 128"); e(f"s_min_u32 s{SWQ+2}, s{SWQ+2}, 40960"); e("s_cmp_lt_u32 s83, 6")
    e("v_lshrrev_b32 v9, 3, v0"); e("v_and_b32 v10, 7, v1"); e("v_lshlrev_b32 v10, 4, v10")
    e("v_mul_u32_u24 v3, s10, v9"); e("v_add_u32 v3, v3, v10")
    e("s_mul_i32 s12, s3, 1280")
    e("v_mul_u32_u24 v11, 20, v1"); e("v_add_u32 v11, s12, v11")
    e("s_mul_i32 s10, s10, 64")
    e("s_waitcnt lgkmcnt(0)")
    e("s_cselect_b32 s100, s22, s28"); e("s_cselect_b32 s101, s23, s29")
    srd(e, SX, 16, 17, 2560)
    if stamps:
        for k in range(1, 8): e(f"s_mov_b32 s{84+2*k}, s84")
    x0 = e.vm(f"buffer_load_dwordx4 v[12:15], v11, {S(SX)}, 0 offen")
    x1 = e.vm(f"buffer_load_dword v8, v11, {S(SX)}, 0 offen offset:16")
    e("s_add_u32 s42, s42, s43")
    e(f"s_add_u32 s{SWQ}, s100, s42"); e(f"s_addc_u32 s{SWQ+1}, s101, 0"); e(f"s_mov_b32 s{SWQ+3}, 0x20000")
    if "w" in abl: e(f"s_mov_b32 s{SWQ+2}, 0")
    wid = []
    for i in range(5):
        if i >= 2: e(f"s_mul_i32 s12, s10, {i}")
        so = "0" if i == 0 else ("s10" if i == 1 else "s12")
        wid.append(e.vm(f"buffer_load_dwordx4 v[{SC+4*i}:{SC+4*i+3}], v3, {S(SWQ)}, {so} offen {polw}"))
    e(f"s_load_dword s{TAG}, s[40:41], {EP_OFF}")
    e(f"s_and_b32 s6, s81, {G-1}")
    e("s_lshl_b32 s7, s80, 5"); e("s_add_u32 s7, s7, s81")
    e(f"s_mul_i32 s8, s4, {R}")
    e("v_lshrrev_b32 v9, 3, v1"); e("v_mul_u32_u24 v2, 384, v9"); e("v_add_u32 v2, v2, v10")
    e("s_lshl3_add_u32 s9, s6, s3")
    if P["rotM"]:
        e(f"s_lshr_b32 s82, s4, {P['rotS']}"); e(f"s_mul_i32 s82, s82, {P['rotM']}"); e("s_add_u32 s9, s9, s82")
    e("s_mul_i32 s9, s9, 3072"); e("s_add_u32 s9, s9, s8"); e(f"s_add_u32 s8, s8, {R}")
    srd(e, SK, 18, 19, KVTOT)

    def late_setup():
        srd(e, SV, 20, 21, KVTOT)
        e("s_sub_u32 s81, 31, s81"); e("s_mul_i32 s82, s81, 26"); e("s_lshr_b32 s82, s82, 8")
        e("s_mul_i32 s83, s82, 10"); e("s_sub_u32 s83, s81, s83")
        e("s_mul_i32 s74, s80, 3"); e("s_add_u32 s74, s74, s82")
        e(f"s_mul_i32 s81, s74, {64*1280}"); e("s_lshl_b32 s100, s83, %d" % (13 if "m" in abl else 7)); e("s_add_u32 s81, s81, s100")
        e("s_mul_i32 s26, s83, 24"); e("s_add_u32 s26, s26, s74"); e("s_lshl_b32 s26, s26, 9"); e(f"s_add_u32 s26, s26, {G_OFF}")
        e("s_lshl2_add_u32 s27, s80, s82"); e("s_lshl_b32 s27, s27, 12"); e(f"s_add_u32 s27, s27, {PX_OFF+6*512}")
        e("s_cmp_lt_u32 s82, 3")
        e("s_cselect_b32 s81, s81, 0"); e(f"s_cselect_b32 s100, {0 if 'w' in abl else (8192 if 'm' in abl else 63*1280+128)}, 0"); e(f"s_cselect_b32 s26, s26, {OOB}"); e("s_cselect_b32 s74, s74, 99")
        srd(e, SW2, 32, 33, "s100", "s81")
        e("s_mul_i32 s81, s4, 245760"); e("s_mul_i32 s12, s3, 10240")
        srd(e, SWO, 24, 25, 0 if "o" in abl else SLAB * (1 if NH == 1 else 17), "s81")
        srd(e, SB1, 30, 31, 3072)
        srd(e, SWS, 40, 41, 0 if "s" in abl else WS_SIZE)
        e("s_mov_b32 s13, 0xffff0000"); e(f"s_mov_b32 s14, {f32(192 ** -0.5)}"); e(f"s_mov_b32 s15, {f32(LOG2E)}")
        e(f"s_mov_b32 s{SEL}, 0x0c0c0400"); e(f"s_mov_b32 s{MSK}, 0xffffff00")
        e("s_cmp_lt_u32 s2, %d" % (0 if "c" in abl else 80)); e("s_cselect_b32 s100, 1, 0")
        e("s_cmp_ge_u32 s2, 40"); e("s_cselect_b32 s42, 1, 0"); e("s_mul_i32 s43, s42, 40"); e("s_sub_u32 s43, s2, s43"); e("s_lshl_b32 s43, s43, 6")
        e("v_lshlrev_b32 v4, 4, v1"); e("v_lshlrev_b32 v5, 2, v1")
        e("s_mov_b32 s20, 0x05040100"); e("s_mov_b32 s21, 0x07060302")
        e("v_mov_b32 v7, 0xff800000"); e("s_mov_b32 s32, 1")
        for r in range(ACC, ACC + 16): e(f"v_mov_b32 v{r}, 0")

    items = []
    on = 0
    W = P["W"]; assert W % 3 == 0
    vl = [(t, j) for t in range(32 - W) for j in range(3)] + [(t, j) for j in range(3) for t in range(32 - W, 32)]
    for pos in range(64):
        items.append(("K", pos) if pos < 32 else ("V", pos - 32))
        if pos >= wo_start and (pos - wo_start) % wo_every == 0 and on < 12:
            items.append(("O", on)); on += 1
        if pos == 32 + P["m_at"]: items.append(("M", 0))
        if pos == 32 + P["g_at"]: items.append(("G", 0))
        if pos == 32 + P["x_at"]: items.append(("X", 0))
    assert on == 12, on
    if P["pf"] >= 0: items.insert(P["pf"], ("P", 0))
    pool = list(range(NBUF))
    def alloc(top=False):
        assert pool, "out of buffers"
        pool.sort(); return BUF0 + 12 * pool.pop(-1 if top else 0)
    def free(r): pool.append((r - BUF0) // 12)
    state = dict(addr=False, q=False, p=False, kdone=0, vdone=0, f2=0, st=0, ml=0, g=False, m=0, qreg=0, qwait=False, needbar=False, y0=0, x=0, o2=12)
    vcnt = {}; Adone = []; Abar = set(); Bq = []; Bdone = set(); Bfin = set()
    inflight = {k: [] for k in "KVOFQMGX"}
    stores = []
    pend = []
    LO = {}; HI = {}
    cur_so = [None]
    taken = set()
    heavy = []
    pacing = [False]
    def soff(base, const):
        key = (base, const)
        if cur_so[0] != key:
            e(f"s_add_u32 s10, s{base}, {const}"); cur_so[0] = key
    def kv_soff(t):
        key = ("kv", t)
        if cur_so[0] == key: return
        cur_so[0] = key
        r, tl = divmod(t, gpr)
        o = tl * G * 64 * 384; rc = ((r & 1) * 32 + (r >> 1) * 16) * R
        if P["rotM"]:
            e(f"s_add_u32 s10, s9, {o}"); e("s_cmp_ge_u32 s10, s8")
            e(f"s_cselect_b32 s83, {R}, 0"); e("s_sub_u32 s10, s10, s83")
            if rc: e(f"s_add_u32 s10, s10, {rc}")
        else: e(f"s_add_u32 s10, s9, {o+rc}")
    def q_loads(E):
        return [E.vm(f"buffer_load_dwordx4 v[{Q}:{Q+3}], v{Q+6}, {S(SWS)}, 0 offen {SC1}")]
    MR, GR, GA, XR = SC, SC + 4, SC + 8, SC
    def x_loads(E):
        E("s_mov_b32 exec_hi, 0xffff")
        i = E.vm(f"buffer_load_dwordx4 v[{XR}:{XR+3}], v4, {S(SWS)}, s27 offen {SC1}")
        E("s_mov_b32 exec_hi, -1")
        return [i]
    def m_loads(E):
        return [E.vm(f"buffer_load_dwordx4 v[{MR}:{MR+3}], v{MR+4}, {S(SWS)}, 0 offen {SC1}")]
    def g_loads(E):
        return [E.vm(f"buffer_load_dwordx4 v[{GR}:{GR+3}], v{GA}, {S(SWS)}, 0 offen {SC1}")]
    def hload(t):
        if pacing[0]:
            D = P["DV"] if state["p"] else (P["DK"] if state["q"] else P["DP"])
            if len(heavy) >= P["de_at"]: D = P["DE"]
            if D >= 10: D = D // 10 + (1 if (len(heavy) * (D % 10)) % 10 < D % 10 else 0)
            i = len(heavy) - D
            if i >= 0: e.wait_vm(heavy[i])
        i = e.vm(t); heavy.append(i); return i
    W2R, B1R = SC + 28, SC + 27
    def issue(it):
        kind, n = it
        if kind in "KV":
            stamp("g%d" % (n + (32 if kind == "V" else 0)))
            r = alloc()
            s = SK if kind == "K" else SV
            ent = [n, r, [], 0]
            inflight[kind].append(ent)
            for k in range(3):
                t, j = (n, k) if kind == "K" else vl[3 * n + k]
                kv_soff(t)
                ent[2].append(hload(f"buffer_load_dwordx4 v[{r+4*k}:{r+4*k+3}], v2, {S(s)}, s10 offen offset:{128*j} nt"))
                if pacing[0]: run_ready()
        elif kind == "O":
            hs, n_ = divmod(n, 12)
            r = BUF0 + 12 * NBUF - 10 * (n_ + 1)
            for bi in {(r - BUF0) // 12, (r + 9 - BUF0) // 12}:
                if bi in pool: pool.remove(bi); taken.add(bi)
                assert bi in taken, "wo landing buffer busy"
            j_, p_ = n_ // 4, n_ % 4
            soff(12, (64 * j_ + 2 * p_) * 1280 + hs * 16 * SLAB)
            ids = []
            for h in range(2):
                ids.append(e.vm(f"buffer_load_dwordx4 v[{r+4*h}:{r+4*h+3}], v4, {S(SWO)}, s10 offen offset:{1280*h} {polo}"))
                ids.append(e.vm(f"buffer_load_dword v{r+8+h}, v5, {S(SWO)}, s10 offen offset:{1280*h+1024} {polo}"))
            inflight[kind].append((n, r, ids))
        elif kind == "P":
            e("s_and_b32 s80, s6, 7"); e("s_lshl3_add_u32 s80, s80, s3"); e("s_mul_i32 s80, s80, 3840")
            if NH == 2:
                e("s_lshr_b32 s81, s6, 3"); e(f"s_mul_i32 s81, s81, {16*SLAB}"); e("s_add_u32 s80, s80, s81")
            for k in range(4):
                if k == 3: e("s_mov_b32 exec_hi, 0xffff")
                hload(f"buffer_load_dwordx4 v[248:251], v4, {S(SWO)}, s80 offen offset:{1024*k} {P['polp']}")
            e("s_mov_b32 exec_hi, -1")
        elif kind == "F":
            e("v_lshrrev_b32 v9, 3, v0"); e("v_mul_u32_u24 v9, %d, v9" % (128 if "m" in abl else 1280)); e("v_and_b32 v10, 7, v1"); e("v_lshl_add_u32 v9, v10, 4, v9")
            ids = [e.vm(f"buffer_load_dwordx4 v[{W2R}:{W2R+3}], v9, {S(SW2)}, 0 offen {polw}")]
            e("v_and_b32 v9, 15, v1"); e("v_lshlrev_b32 v9, 3, v9"); e("v_lshrrev_b32 v10, 5, v1"); e(f"v_lshl_add_u32 v{Q+7}, v10, 2, v9")
            e("s_lshl_b32 s80, s74, 7")
            ids.append(e.vm(f"buffer_load_dword v{B1R}, v{Q+7}, {S(SB1)}, s80 offen"))
            inflight[kind].append((n, 0, ids))
            e("s_cmp_eq_u32 s42, 0"); e("s_movk_i32 s80, 5120"); e("s_cselect_b32 s80, 40960, s80")
            e("v_lshrrev_b32 v9, 2, v0"); e("v_mul_u32_u24 v9, s80, v9"); e("v_and_b32 v0, 3, v0"); e("v_lshl_add_u32 v0, v0, 4, v9")
        elif kind == "Q":
            e(f"s_andn2_b32 s80, s7, {G-1}"); e("s_cmp_ge_u32 s3, 3"); e("s_cselect_b32 s81, 5, 0"); e("s_add_u32 s81, s81, s3")
            e(f"s_cmp_lt_u32 s3, {3*NH}"); e("s_cselect_b32 s81, s81, 0"); e("s_add_u32 s80, s80, s81")
            e("s_lshl_b32 s80, s80, 9"); e(f"s_add_u32 s80, s80, {PX_OFF}")
            e("s_cmp_lt_u32 s74, 24"); e("s_cselect_b32 s81, s3, 99"); e("s_movk_i32 s83, 1536")
            e(f"s_cmp_eq_u32 s81, {3*NH}"); e("s_cselect_b32 s80, s27, s80"); e("s_cselect_b32 s83, 512, s83")
            e("v_lshrrev_b32 v9, 5, v1"); e("v_mul_u32_u24 v9, s83, v9"); e("v_and_b32 v10, 31, v1"); e("v_lshl_add_u32 v9, v10, 4, v9")
            e(f"v_add_u32 v{Q+6}, s80, v9")
            stamp("qissue")
            inflight[kind].append((n, Q, q_loads(e)))
        elif kind == "M":
            assert state["vdone"] >= 5 and state["ml"] == 2
            e(f"v_and_b32 v9, {G-1}, v1"); e("v_lshlrev_b32 v9, 7, v9"); e(f"v_bfe_u32 v{MR+4}, v1, 4, {NH}"); e(f"v_lshl_add_u32 v9, v{MR+4}, 4, v9")
            e(f"s_andn2_b32 s80, s7, {G-1}"); e("s_lshl_b32 s80, s80, 7"); e(f"s_add_u32 s80, s80, {ML_OFF}")
            e(f"s_cmp_eq_u32 s3, {P['mw']}"); e(f"s_cselect_b32 s80, s80, {OOB}"); e(f"v_add_u32 v{MR+4}, s80, v9")
            inflight[kind].append((n, MR, m_loads(e)))
        elif kind == "G":
            assert state["vdone"] >= 9 and state["m"] >= 1 and state["x"] == 0
            a = GA
            e(f"v_lshrrev_b32 v{a}, 2, v1"); e(f"v_cmp_gt_u32 vcc, 3, v{a}"); e(f"v_lshlrev_b32 v{a}, 9, v{a}")
            e("v_and_b32 v9, 3, v1"); e(f"v_lshl_add_u32 v{a}, v9, 4, v{a}"); e(f"v_mov_b32 v9, {OOB}"); e(f"v_cndmask_b32 v{a}, v9, v{a}, vcc")
            e("s_cmp_eq_u32 s100, 1"); e(f"s_cselect_b32 s82, 0, {OOB}")
            e("s_lshr_b32 s80, s43, 8"); e("s_mul_i32 s80, s80, 24"); e("s_mul_i32 s81, s3, 3"); e("s_add_u32 s80, s80, s81"); e("s_lshl_b32 s80, s80, 9")
            e("s_lshl_b32 s81, s42, 8"); e("s_add_u32 s80, s80, s81"); e("s_and_b32 s81, s43, 0xc0"); e("s_add_u32 s80, s80, s81")
            e("s_add_u32 s80, s80, s82"); e(f"s_add_u32 s80, s80, {G_OFF}"); e(f"v_add_u32 v{a}, s80, v{a}")
            ids = g_loads(e)
            srd(e, SB2, 34, 35, 1280); srd(e, SOUT, 36, 37, 2560)
            e("v_and_b32 v9, 15, v1"); e("v_lshlrev_b32 v9, 1, v9")
            e("s_lshr_b32 s80, s43, 1"); e("s_add_u32 s80, s80, s82"); e("s_mul_i32 s81, s42, 1280"); e("s_add_u32 s81, s81, s80")
            ids.append(e.vm(f"buffer_load_ushort v{B2V}, v9, {S(SB2)}, s80 offen"))
            ids.append(e.vm(f"buffer_load_ushort v{XV}, v9, {S(SX)}, s81 offen"))
            inflight[kind].append((n, GR, ids))
        elif kind == "X":
            assert state["x"] == 2, state
            e("s_andn2_b32 s27, s7, 7"); e("s_add_u32 s27, s27, s3"); e("s_mul_i32 s27, s27, 768"); e(f"s_add_u32 s27, s27, {X_OFF}")
            inflight[kind].append((n, XR, x_loads(e)))
    def issue_next(n=1):
        for _ in range(n): issue(items.pop(0))

    def put_tag(E, r):
        for k in range(4): E(f"v_mov_b32_sdwa v{r+k}, s{TAG} dst_sel:BYTE_0 dst_unused:UNUSED_PRESERVE src0_sel:BYTE_{k}")
    def cmp_tag(E, r, t0, t1):
        E(f"v_perm_b32 v{t0}, v{r+1}, v{r}, s{SEL}"); E(f"v_perm_b32 v{t1}, v{r+3}, v{r+2}, s{SEL}")
        E(f"v_lshl_or_b32 v{t0}, v{t1}, 16, v{t0}"); E(f"v_cmp_ne_u32 vcc, s{TAG}, v{t0}")
    def dual_store(text, name):
        if not P["loc"]: return e.vm(f"{text} {SC1}")
        e(f"s_cbranch_scc0 L{name}_far")
        i = e.vm(text); e.label(f"L{name}_back")
        slow.label(f"L{name}_far"); slow(f"{text} {SC1}"); slow(f"s_branch L{name}_back")
        return i
    def tagcheck(name, cmp, loadfn, cond_consumer, wb=False):
        if "s" in abl: return
        cmp(e)
        e(f"s_cbranch_scc1 L{name}_slow"); e.label(f"L{name}_ok"); e("s_nop 0")
        slow.label(f"L{name}_slow")
        if cond_consumer:
            slow("s_cmp_eq_u32 s100, 0"); slow(f"s_cbranch_scc1 L{name}_ok")
        slow(f"s_mov_b32 s101, {SPIN}")
        slow.label(f"L{name}_loop")
        slow("s_nop 4")
        if wb and P["loc"]:
            slow("s_and_b32 s80, s101, 15"); slow("s_cmp_lg_u32 s80, 1"); slow(f"s_cbranch_scc1 L{name}_nowb")
            slow("buffer_wbl2 sc1"); slow("s_waitcnt vmcnt(0)")
            slow.label(f"L{name}_nowb")
        loadfn(slow); slow("s_waitcnt vmcnt(0)")
        cmp(slow)
        slow(f"s_cbranch_scc0 L{name}_ok")
        slow("s_sub_u32 s101, s101, 1"); slow(f"s_cbranch_scc0 L{name}_loop"); slow(f"s_branch L{name}_ok")

    def layernorm():
        stamp("setup")
        e("s_cmp_ge_u32 s3, 2"); e("s_cbranch_scc1 Lln")
        sv = e.vmdone
        e.wait_vm(x1)
        stamp("xland")
        t = Q
        src = [12, 13, 14, 15, 8]
        for k in range(5):
            e(f"v_lshlrev_b32 v{t+2*k}, 16, v{src[k]}"); e(f"v_and_b32 v{t+2*k+1}, s13, v{src[k]}")
        e(f"v_add_f32 v9, v{t}, v{t+1}")
        for k in range(2, 10): e(f"v_add_f32 v9, v9, v{t+k}")
        allred8(e, "v_add_f32", [9]); e(f"v_add_f32_dpp v9, v9, v9 row_mirror {DPPF}"); allred_rows(e, "v_add_f32", 9, 10)
        e(f"v_mul_f32 v9, {f32(1/640)}, v9")
        e("v_mov_b32 v12, 0")
        for k in range(10):
            e(f"v_sub_f32 v13, v{t+k}, v9"); e("v_fmac_f32 v12, v13, v13")
        allred8(e, "v_add_f32", [12]); e(f"v_add_f32_dpp v12, v12, v12 row_mirror {DPPF}"); allred_rows(e, "v_add_f32", 12, 10)
        e(f"v_mul_f32 v12, {f32(1/640)}, v12")
        e("v_cvt_pk_bf16_f32 v9, v9, v12")
        e("v_and_b32 v12, s13, v9"); e("v_lshlrev_b32 v9, 16, v9")
        e(f"v_add_f32 v12, {f32(1e-5)}, v12"); e("v_cvt_pk_bf16_f32 v12, v12, v12"); e("v_and_b32 v12, s13, v12")
        e("v_sqrt_f32 v12, v12"); e("v_cvt_pk_bf16_f32 v12, v12, v12"); e("v_and_b32 v12, s13, v12")
        e("v_rcp_f32 v13, v12")
        for k in range(10): e(f"v_sub_f32 v{t+k}, v{t+k}, v9")
        for k in range(5):
            a, b = t + 2 * k, t + 2 * k + 1
            e(f"v_cvt_pk_bf16_f32 v{b}, v{a}, v{b}"); e(f"v_lshlrev_b32 v{a}, 16, v{b}"); e(f"v_and_b32 v{b}, s13, v{b}")
            for r in (a, b):
                e(f"v_mul_f32 v14, v{r}, v13"); e(f"v_fma_f32 v15, -v14, v12, v{r}"); e(f"v_fma_f32 v{r}, v15, v13, v14")
            e(f"v_cvt_pk_bf16_f32 v{a}, v{a}, v{b}")
            e(f"ds_write_b32 v11, v{a} offset:{XN+4*k}")
        e.label("Lln"); e.vmdone = sv
        stamp("ln")
        e("v_lshrrev_b32 v9, 3, v0"); e("v_add_u32 v9, s11, v9"); e("v_lshlrev_b32 v9, 1, v9")
        e("s_waitcnt lgkmcnt(0)"); e("s_barrier")
        for i in range(5):
            for b in range(2): e(f"ds_read_u16 v{Q+2*i+b}, v9 offset:{XN+1280*b+128*i}")
        e(f"s_and_b32 s80, s{TAG}, 0x7f7f7f7f"); e("s_add_u32 s80, s80, 0x01010101"); e(f"s_and_b32 s{TAG}, s{TAG}, 0x80808080"); e(f"s_xor_b32 s{TAG}, s{TAG}, s80")
        issue_next(P["pk1"])
        stamp("bar0")

    def tile_dots(r, m0, m1):
        for b, m in enumerate((m0, m1)):
            e(f"v_lshlrev_b32 v{9+b}, 16, v{m}")
        for b, m in enumerate((m0, m1)):
            for dw in range(4):
                e(f"v_dot2c_f32_bf16 v{ACC+8*b+2*dw}, v{r+dw}, v{m}")
                e(f"v_dot2c_f32_bf16 v{ACC+8*b+2*dw+1}, v{r+dw}, v{9+b}")
    def tile_reduce(base):
        e("v_and_b32 v11, 7, v1"); e("v_lshlrev_b32 v11, 5, v11"); e("s_lshl_b32 s80, s3, 9"); e("v_add_u32 v11, s80, v11")
        e("v_bfe_u32 v9, v1, 5, 1"); e("v_lshl_add_u32 v11, v9, 8, v11"); e("v_bfe_u32 v9, v1, 3, 2"); e("v_lshl_add_u32 v11, v9, 3, v11")
        swapred(e, 32, [(ACC + x, ACC + 8 + x) for x in range(8)])
        swapred(e, 16, [(ACC + x, ACC + 4 + x) for x in range(4)])
        for x in range(2): e(f"v_add_f32_dpp v{ACC+4+x}, v{ACC+x}, v{ACC+x} row_ror:8 row_mask:0xf bank_mask:0x3")
        for x in range(2): e(f"v_add_f32_dpp v{ACC+4+x}, v{ACC+2+x}, v{ACC+2+x} row_ror:8 row_mask:0xf bank_mask:0xc")
        e(f"ds_write_b64 v11, v[{ACC+4}:{ACC+5}] offset:{base}")
    def tile_publish(base, sreg, tag, dual=False):
        e("v_and_b32 v10, 31, v1"); e("v_lshlrev_b32 v10, 4, v10"); e("v_bfe_u32 v9, v1, 5, 1"); e("v_lshl_add_u32 v9, v9, 11, v10")
        for w in range(4): e(f"ds_read_b128 v[{ACC+4*w}:{ACC+4*w+3}], v9 offset:{base+512*w}")
        e("s_waitcnt lgkmcnt(0)")
        for st in (8, 4):
            for k in range(st): e(f"v_add_f32 v{ACC+k}, v{ACC+k}, v{ACC+st+k}")
        for k in range(4): e(f"v_mov_b32 v{ACC+4+k}, v{ACC+k}")
        swapred(e, 32, [(ACC + k, ACC + 4 + k) for k in range(4)])
        if tag: put_tag(e, ACC)
        e("s_mov_b64 exec, 0xffffffff")
        t = f"buffer_store_dwordx4 v[{ACC}:{ACC+3}], v10, {S(SWS)}, {sreg} offen"
        if dual: e("s_cmp_lt_u32 s6, 6"); dual_store(t, "px")
        else: e.vm(f"{t} {SC1}")
        e("s_mov_b64 exec, -1"); e("s_nop 0")

    def w_phase():
        e("s_waitcnt lgkmcnt(0)")
        for i in range(5):
            e.wait_vm(wid[i]); tile_dots(SC + 4 * i, Q + 2 * i, Q + 2 * i + 1)
        stamp("wdots")
        tile_reduce(TP)
        e("s_lshl_b32 s81, s7, 9"); e(f"s_add_u32 s81, s81, {PX_OFF}"); e(f"s_cmp_eq_u32 s3, {P['pubw']}"); e(f"s_cselect_b32 s81, s81, {OOB}")
        e("s_waitcnt lgkmcnt(0)"); e("s_barrier")
        stamp("bar1")
        tile_publish(TP, "s81", True, True)
        stamp("qpub")

    def q_read(r):
        for j in range(3): e(f"ds_read_b128 v[{Q+4*j}:{Q+4*j+3}], v6 offset:{QB+384*r+128*j}")
        state["qreg"] = r; state["qwait"] = True
    def q_final():
        inflight["Q"].pop(0)
        assert e.landed(inflight["F"][0][2][-1])
        stamp("qland")
        def cmp(E):
            cmp_tag(E, Q, 9, 10); E("s_cmp_lg_u64 vcc, 0")
        tagcheck("q", cmp, q_loads, False, True)
        stamp("qok")
        for k in range(4): e(f"v_and_b32 v{Q+k}, s{MSK}, v{Q+k}")
        swapred(e, 32, [(Q, Q + 2), (Q + 1, Q + 3)])
        a, b = Q, Q + 1
        e(f"v_cvt_pk_bf16_f32 v{b}, v{a}, v{b}")
        e(f"s_cmp_lt_u32 s3, {3*NH}"); e("s_cbranch_scc1 Lqh")
        e(f"v_lshlrev_b32 v{a}, 16, v{b}"); e(f"v_and_b32 v{b}, s13, v{b}")
        e(f"v_lshlrev_b32 v9, 16, v{B1R}"); e(f"v_and_b32 v10, s13, v{B1R}")
        e(f"v_add_f32 v{a}, v{a}, v9"); e(f"v_add_f32 v{b}, v{b}, v10")
        e(f"v_cvt_pk_bf16_f32 v{b}, v{a}, v{b}"); e(f"v_lshlrev_b32 v{a}, 16, v{b}"); e(f"v_and_b32 v{b}, s13, v{b}")
        e(f"v_max_f32 v{a}, 0, v{a}"); e(f"v_max_f32 v{b}, 0, v{b}")
        e(f"v_mul_f32 v{a}, v{a}, v{a}"); e(f"v_mul_f32 v{b}, v{b}, v{b}")
        e(f"v_cvt_pk_bf16_f32 v{b}, v{a}, v{b}")
        e.label("Lqh")
        e("s_mul_i32 s80, s3, 43"); e("s_lshr_b32 s80, s80, 7"); e("s_mul_i32 s80, s80, 3"); e("s_add_u32 s80, s80, s3"); e("s_lshl_b32 s80, s80, 7")
        e("v_bfe_u32 v9, v1, 4, 1"); e("v_mul_u32_u24 v9, 384, v9"); e(f"v_add3_u32 v10, s80, v9, v{Q+7}")
        e("v_and_b32 v6, 7, v1"); e("v_lshlrev_b32 v6, 4, v6")
        e(f"s_cmp_gt_u32 s3, {3*NH}"); e("s_cbranch_scc1 Lqw")
        e(f"ds_write_b32 v10, v{b} offset:{QB}")
        e.label("Lqw")
        e("s_waitcnt lgkmcnt(0)"); e("s_barrier")
        q_read(0)
        state["q"] = True
        stamp("q")

    def post_ops(a, b):
        ops = []
        for m in ("quad_perm:[1,0,3,2]", "quad_perm:[2,3,0,1]", "row_half_mirror"):
            for r in (a, b): ops.append(f"v_add_f32_dpp v{r}, v{r}, v{r} {m} {DPPF}")
        ops += [f"v_cvt_pk_bf16_f32 v{b}, v{a}, v{b}", f"v_lshlrev_b32 v{a}, 16, v{b}", f"v_and_b32 v{b}, s13, v{b}",
                f"v_mul_f32 v{a}, s14, v{a}", f"v_mul_f32 v{b}, s14, v{b}",
                f"v_cvt_pk_bf16_f32 v{b}, v{a}, v{b}", f"v_lshlrev_b32 v{a}, 16, v{b}", f"v_and_b32 v{b}, s13, v{b}",
                f"v_max3_f32 v7, v7, v{a}, v{b}"]
        return ops
    def drain_pend(n):
        for _ in range(min(n, len(pend))):
            x = pend.pop(0)
            if callable(x): x()
            else: e(x)
        while pend and callable(pend[0]): pend.pop(0)()
    def stat_ops(r):
        L = []; A = L.append
        A(f"v_max_f32_dpp v7, v7, v7 row_ror:8 {DPPF}"); allred_rows(A, "v_max_f32", 7, 14)
        A("v_mul_f32 v3, s15, v7")
        ts = list(range(r * gpr, (r + 1) * gpr))
        for c in range(0, gpr, 4):
            tc = ts[c:c + 4]
            for t in tc: A(f"v_fma_f32 v{SC+t}, v{SC+t}, s15, -v3")
            for t in tc: A(f"v_exp_f32 v{SC+t}, v{SC+t}")
            for t in tc: A(f"v_add_f32 v8, v8, v{SC+t}" if t != ts[0] else f"v_mov_b32 v8, v{SC+t}")
            for t in tc: A(f"v_cvt_pk_bf16_f32 v{SC+t}, v{SC+t}, 0")
        A(f"v_add_f32_dpp v8, v8, v8 row_ror:8 {DPPF}"); allred_rows(A, "v_add_f32", 8, 14)
        A("v_lshlrev_b32 v14, 3, s3" .replace("v_lshlrev_b32 v14, 3, s3", "v_lshlrev_b32_e64 v14, 3, s3"))
        A(f"ds_write_b32 v14, v7 offset:{MX+64*r}"); A(f"ds_write_b32 v14, v8 offset:{MX+64*r+4}")
        A("v_mov_b32 v7, 0xff800000")
        def done():
            state["st"] = r + 1
            if r == NR - 1: state["needbar"] = True
        A(done)
        return L
    def k_part(ent):
        t, r, ids, j = ent
        a = SC + t
        assert t < 27 or state["f2"] >= 1
        assert state["qreg"] == t // gpr
        if state["qwait"]: e("s_waitcnt lgkmcnt(0)"); state["qwait"] = False
        if j == 0: e(f"v_mov_b32 v{a}, 0")
        for dw in range(4):
            e(f"v_dot2c_f32_bf16 v{a}, v{r+4*j+dw}, v{Q+4*j+dw}")
            if dw or j: drain_pend(1 if len(pend) < 20 else 3)
        ent[3] += 1
        if ent[3] == 3:
            free(r); state["kdone"] += 1
            if t % 2 == 1: pend.extend(post_ops(a - 1, a))
            if t % gpr == gpr - 1:
                pend.extend(stat_ops(t // gpr))
                if t < 31: q_read(t // gpr + 1)
    def phi(t): return 253 if t < 32 - W else SC + 16 + t - (32 - W)
    def v_part(ent):
        n, r, ids, k = ent
        t, j = vl[3 * n + k]
        plo = SC + t
        rg = t // gpr
        assert state["st"] > rg
        assert rg == 0 or (rg - 1, j) in Adone
        if j == 0: e(f"v_lshlrev_b32 v{phi(t)}, 16, v{plo}")
        for dw in range(4):
            e(f"v_dot2c_f32_bf16 v{ACC+8*j+2*dw}, v{r+4*k+dw}, v{plo}")
            e(f"v_dot2c_f32_bf16 v{ACC+8*j+2*dw+1}, v{r+4*k+dw}, v{phi(t)}")
        ent[3] += 1; vcnt[(rg, j)] = vcnt.get((rg, j), 0) + 1
        if ent[3] == 3:
            free(r); state["vdone"] += 1
        if vcnt[(rg, j)] == gpr and (rg, j) != (NR - 1, 2): step_A(rg, j)
    YB = [Q, SC]
    def step_A(r, j):
        assert state["ml"] == 2 and state["addr"]
        assert r < 2 or (r - 2, j) in Bdone
        assert state["m"] == 3
        a = ACC + 8 * j
        swapred_pk(e, 32, a, a + 4, 4); swapred_pk(e, 16, a, a + 2, 2)
        e(f"v_add_f32_dpp v{a+2}, v{a}, v{a} row_ror:8 row_mask:0xf bank_mask:0x3")
        e(f"v_add_f32_dpp v{a+2}, v{a+1}, v{a+1} row_ror:8 row_mask:0xf bank_mask:0xc")
        e(f"v_mul_f32 v9, s{SF[r]}, v{a+2}"); e(f"ds_write_b32 v10, v9 offset:{OP+8*OST*(r&1)+256*j}")
        if r < NR - 1:
            for x in range(0, 8, 2): e(f"v_mov_b64 v[{a+x}:{a+x+1}], 0")
        Adone.append((r, j)); Bq.append((r, j))
        if r == NR - 1 or j == 2: state["needbar"] = True
    def b_ready(r, j):
        return (r, j) in Abar and state["m"] == 3 and all((r >> 1, j, p_, 4) in LO for p_ in range(4)) and state["x"] == 4
    def step_B(r, j):
        assert not pend and b_ready(r, j)
        Bq.remove((r, j)); Bdone.add((r, j))
        e(f"ds_read_b32 v9, v11 offset:{OP+8*OST*(r&1)+256*j}")
        e("s_waitcnt lgkmcnt(0)")
        allred8(e, "v_add_f32", [9])
        e(f"v_mov_b32_dpp v14, v9 row_ror:8 {DPPF}"); e(f"v_cvt_pk_bf16_f32 v9, v9, v14")
        for p_ in range(4): e(f"v_readlane_b32 s{16+p_}, v9, {16*p_}")
        Y = YB[r & 1]; hs = r >> 1
        for p_ in range(4):
            for dw in range(5):
                pend.append(f"v_dot2c_f32_bf16 v{Y+2*dw}, s{16+p_}, v{LO[(hs,j,p_,dw)]}")
                pend.append(f"v_dot2c_f32_bf16 v{Y+2*dw+1}, s{16+p_}, v{HI[(hs,j,p_,dw)]}")
            pend.append(lambda p_=p_: Bfin.add((r, j, p_)))
    def y_write(b):
        Y = YB[b]
        e(f"ds_write_b128 v12, v[{Y}:{Y+3}] offset:{YP+2560*b}"); e(f"ds_write_b128 v12, v[{Y+4}:{Y+7}] offset:{YP+2560*b+16}")
        e(f"ds_write_b64 v6, v[{Y+8}:{Y+9}] offset:{YP+2560*b+2048}")
    def pka(a, b):
        for k in (0, 2): e(f"v_pk_add_f32 v[{a+k}:{a+k+1}], v[{a+k}:{a+k+1}], v[{b+k}:{b+k+1}]")
    def x_publish():
        assert state["g"] and state["vdone"] >= 16
        e("s_mul_i32 s81, s7, 768"); e(f"s_add_u32 s81, s81, {X_OFF}"); e(f"s_cmp_eq_u32 s3, {P['xw']}"); e(f"s_cselect_b32 s81, s81, {OOB}")
        e("s_mov_b32 exec_hi, 0xffff"); e("s_cbranch_scc0 Lxp")
        for w in range(7): e(f"ds_read_b128 v[{Q+4*w}:{Q+4*w+3}], v4 offset:{OP+OST*w}")
        e("s_waitcnt lgkmcnt(5)"); pka(Q, Q + 4)
        e(f"ds_read_b128 v[{Q+4}:{Q+7}], v4 offset:{OP+OST*7}")
        for w in range(2, 7): e(f"s_waitcnt lgkmcnt({7-w})"); pka(Q, Q + 4 * w)
        e("s_waitcnt lgkmcnt(0)"); pka(Q, Q + 4)
        put_tag(e, Q)
        e("s_nop 0"); e.label("Lxp")
        assert P["xw"] == P["mw"]
        e("s_cmp_eq_u32 s32, 1"); dual_store(f"buffer_store_dwordx4 v[{Q}:{Q+3}], v4, {S(SWS)}, s81 offen", "xs")
        e("s_mov_b32 exec_hi, -1")
        state["x"] = 1
        stamp("xpub")
    def x_step():
        inflight["X"].pop(0)
        def cmp(E):
            cmp_tag(E, XR, 9, 14); E("s_nop 0"); E("s_and_b32 vcc_hi, vcc_hi, 0xffff"); E("s_cmp_lg_u64 vcc, 0")
        stamp("xland")
        tagcheck("x", cmp, x_loads, False)
        for k in range(4): e(f"v_and_b32 v{XR+k}, s{MSK}, v{XR+k}")
        e(f"s_mul_i32 s80, s3, {OST}"); e("v_add_u32 v9, s80, v4")
        e("s_mov_b32 exec_hi, 0xffff"); e(f"ds_write_b128 v9, v[{XR}:{XR+3}] offset:{OP}"); e("s_mov_b32 exec_hi, -1")
        for r in range(Q, Q + 10, 2): e(f"v_mov_b64 v[{r}:{r+1}], 0")
        e("s_waitcnt lgkmcnt(0)")
        for r in range(SC, SC + 10, 2): e(f"v_mov_b64 v[{r}:{r+1}], 0")
        state["x"] = 3; state["needbar"] = True
        stamp("xstep")
    def y0_final():
        t = [Q, Q + 4, Q + 8, SC + 12]
        e("s_andn2_b32 s81, s7, 7"); e("s_mul_i32 s81, s81, 5120"); e("s_mul_i32 s80, s6, 320"); e("s_add_u32 s81, s81, s80"); e(f"s_add_u32 s81, s81, {Y_OFF}")
        e(f"s_cmp_eq_u32 s3, {P['yw']}"); e(f"s_cselect_b32 s26, s81, {OOB}"); e("s_cbranch_scc0 Ly0")
        e("v_lshrrev_b32 v9, 5, v1"); e(f"v_mul_u32_u24 v9, {4*5120-512}, v9"); e("v_add3_u32 v9, v9, s80, v4")
        for k in range(4): e(f"ds_read_b128 v[{t[k]}:{t[k]+3}], v9 offset:{YP+5120*k}")
        for k in range(1, 4): e(f"s_waitcnt lgkmcnt({3-k})"); pka(Q, t[k])
        for k in (0, 2): e(f"v_mov_b64 v[{Q+4+k}:{Q+5+k}], v[{Q+k}:{Q+k+1}]")
        swapred_pk(e, 32, Q, Q + 4, 4)
        put_tag(e, Q)
        e("s_nop 0"); e.label("Ly0")
        state["y0"] = 3
        if not P["y0late"]: y0_store()
    def y0_store():
        e("s_mov_b64 exec, 0xfffff")
        e.vm(f"buffer_store_dwordx4 v[{Q}:{Q+3}], v4, {S(SWS)}, s26 offen {SC1}")
        e("s_mov_b64 exec, -1")
        stamp("y0st")
    def shadow():
        if pend: drain_pend(P["bdrain"]); return True
        if state["x"] == 0 and (0, 2) in Abar: x_publish(); return True
        if state["y0"] == 0 and all((0, j, 3) in Bfin for j in range(3)):
            y_write(0); state["y0"] = 1; state["needbar"] = True; return True
        if state["y0"] == 2: y0_final(); return True
        for rj in Bq:
            if b_ready(*rj): step_B(*rj); return True
        return False
    def tail_addr():
        e("v_and_b32 v10, 7, v1"); e(f"v_mul_u32_u24 v11, {OST}, v10"); e("v_lshlrev_b32 v10, 5, v10")
        e("v_bfe_u32 v9, v1, 5, 1"); e("v_lshl_add_u32 v10, v9, 4, v10")
        e("v_bfe_u32 v9, v1, 3, 2"); e("v_lshl_add_u32 v10, v9, 2, v10")
        e(f"s_mul_i32 s80, s3, {OST}"); e("v_add_u32 v10, s80, v10")
        e("v_lshrrev_b32 v9, 3, v1"); e("v_lshl_add_u32 v11, v9, 2, v11")
        e("s_lshl_b32 s80, s3, 5"); e("v_add_u32 v11, s80, v11")
        e("v_and_b32 v12, 15, v1"); e("v_lshlrev_b32 v8, 5, v12"); e("v_lshlrev_b32 v3, 1, v12")
        e("s_mul_i32 s80, s3, 5120"); e("v_lshl_add_u32 v12, v1, 5, s80"); e("v_lshl_add_u32 v6, v1, 3, s80")
        e("s_mul_i32 s80, s3, 320"); e("v_lshl_add_u32 v13, v1, 4, s80")
        e("s_mul_i32 s11, s7, 5120"); e(f"s_add_u32 s11, s11, {Y_OFF}")
        e(f"s_mul_i32 s22, s42, 2560"); e("s_add_u32 s22, s22, s43"); e(f"s_add_u32 s22, s22, {Y_OFF}")
        e(f"s_add_u32 s5, s22, {128*5120}")
        e("s_cmp_eq_u32 s42, 1"); e(f"s_cselect_b32 s5, s5, {OOB}"); e("s_cselect_b64 s[30:31], -1, 0"); e("s_cselect_b32 s80, 0, s3")
        e("s_cmp_lt_u32 s80, 2"); e(f"s_cselect_b32 s22, s22, {OOB}"); e("s_cselect_b64 s[24:25], -1, 0")
        e("s_mul_i32 s23, s42, 1280"); e("s_lshr_b32 s80, s43, 1"); e("s_add_u32 s23, s23, s80")
        state["addr"] = True

    def f2a():
        inflight["F"].pop(0)
        e("v_lshrrev_b32 v9, 3, v1"); e("s_lshl_b32 s80, s3, 4"); e("v_lshl_add_u32 v9, v9, 1, s80")
        e(f"ds_read_u16 v12, v9 offset:{HB}"); e(f"ds_read_u16 v13, v9 offset:{HB+384}")
        for r in range(ACC, ACC + 16): e(f"v_mov_b32 v{r}, 0")
        e("s_waitcnt lgkmcnt(0)")
        tile_dots(W2R, 12, 13)
        tile_reduce(FP)
        e("s_waitcnt lgkmcnt(0)")
        state["f2"] = 1
        if not P["bar"]:
            e("s_barrier"); state["f2"] = 2
    def f2b():
        e(f"s_cmp_eq_u32 s3, {P['pubw']}"); e(f"s_cselect_b32 s81, s26, {OOB}")
        tile_publish(FP, "s81", True)
        for r in range(ACC + 23, ACC - 1, -1): e(f"v_mov_b32 v{r}, 0")
        e("v_and_b32 v15, 3, v1"); e("v_lshlrev_b32 v15, 7, v15"); e("v_bfe_u32 v9, v1, 5, 1"); e("v_lshl_add_u32 v15, v9, 6, v15")
        e("v_bfe_u32 v9, v1, 4, 1"); e("v_lshl_add_u32 v15, v9, 5, v15"); e("s_lshl_b32 s80, s3, 2"); e("v_add_u32 v15, s80, v15")
        state["f2"] = 3

    def transition():
        assert state["f2"] == 3
        while state["st"] < 1: drain_pend(1)
        state["p"] = True
        stamp("trans")

    def ml_publish():
        e("v_and_b32 v9, 31, v1"); e("v_lshlrev_b32 v9, 3, v9")
        e(f"ds_read_b64 v[12:13], v9 offset:{MX}")
        e("s_getreg_b32 s33, hwreg(HW_REG_XCC_ID, 0, 4)"); e(f"s_xor_b32 s33, s33, s{TAG}")
        e("s_lshl_b32 s81, s7, 7"); e(f"s_add_u32 s81, s81, {ML_OFF}"); e(f"s_cmp_eq_u32 s3, {P['pubw']}"); e(f"s_cselect_b32 s80, s81, {OOB}")
        e("v_lshrrev_b32 v9, 2, v9")
        for r in range(NR): e(f"s_add_u32 s{SF[r]}, s3, {8*r}")
        e("s_waitcnt lgkmcnt(0)")
        e("v_mov_b32 v10, v12"); allred8(e, "v_max_f32", [10])
        e("v_sub_f32 v12, v12, v10"); e("v_mul_f32 v12, s15, v12"); e("v_exp_f32 v11, v12"); e("v_mul_f32 v12, v11, v13")
        for r in range(NR): e(f"v_readlane_b32 s{SF[r]}, v11, s{SF[r]}")
        allred8(e, "v_add_f32", [12])
        e(f"v_mov_b32 v11, s{TAG}"); e(f"v_mov_b32 v13, s33")
        e(f"s_mov_b64 exec, {0x01010101 if NR == 4 else 0x0101}")
        e.vm(f"buffer_store_dwordx4 v[10:13], v9, {S(SWS)}, s80 offen {'' if P['loc'] else SC1}")
        e("s_mov_b64 exec, -1"); e("s_nop 0")
        state["ml"] = 2
        stamp("mlpub")

    def m_step():
        inflight["M"].pop(0)
        e(f"s_cmp_lg_u32 s3, {P['mw']}"); e("s_cbranch_scc1 Lm_skip")
        def cmp(E):
            E(f"v_xor_b32 v9, s{TAG}, v{MR+3}"); E(f"v_cmp_ne_u32 vcc, s{TAG}, v{MR+1}"); E(f"v_cmp_lt_u32 s[80:81], 15, v9"); E("s_or_b64 vcc, vcc, s[80:81]")
        tagcheck("m", cmp, m_loads, False, True)
        if P["loc"]:
            e(f"v_cmp_ne_u32 vcc, s33, v{MR+3}"); e("s_cmp_eq_u64 vcc, 0"); e(f"s_cselect_b32 s32, {0 if 'f' in abl else 1}, 0"); e("s_cbranch_scc0 Lm_far"); e.label("Lm_back")
            slow.label("Lm_far"); slow("buffer_wbl2 sc1"); slow("s_waitcnt vmcnt(0)"); slow("s_branch Lm_back")
        m, l, t0, t1 = MR, MR + 2, MR + 1, MR + 3
        steps = ["quad_perm:[1,0,3,2]", "quad_perm:[2,3,0,1]", "row_half_mirror"] + (["row_mirror"] if G == 16 else [])
        for i, md in enumerate(steps): e(f"v_max_f32_dpp v{t0}, v{t0 if i else m}, v{t0 if i else m} {md} {DPPF}")
        e(f"v_sub_f32 v{t0}, v{m}, v{t0}"); e(f"v_mul_f32 v{t0}, s15, v{t0}"); e(f"v_exp_f32 v{t0}, v{t0}")
        e(f"v_mul_f32 v{t1}, v{t0}, v{l}")
        for md in steps: e(f"v_add_f32_dpp v{t1}, v{t1}, v{t1} {md} {DPPF}")
        e(f"v_rcp_f32 v{t1}, v{t1}"); e(f"v_mul_f32 v{t0}, v{t0}, v{t1}")
        e(f"v_lshlrev_b32 v{t1}, 2, v1")
        e(f"ds_write_b32 v{t1}, v{t0} offset:{FP}")
        e.label("Lm_skip")
        state["m"] = 1; state["needbar"] = True
        stamp("mstep")
    def c_get():
        e("v_and_b32 v9, 3, v1"); e("v_lshlrev_b32 v9, 6, v9"); e("s_lshl_b32 s80, s6, 2"); e("v_add_u32 v9, s80, v9")
        e(f"ds_read_b32 v9, v9 offset:{FP}"); e("s_waitcnt lgkmcnt(0)")
        e(f"v_mul_f32 v14, s{SF[0]}, v9"); e(f"v_mul_f32 v9, s{SF[1]}, v9")
        e(f"v_readlane_b32 s{SF[0]}, v14, 0"); e(f"v_readlane_b32 s{SF[1]}, v9, 1")
        state["m"] = 3

    def col_reduce(a, base):
        swapred(e, 32, [(a, a + 2), (a + 1, a + 3)])
        swapred(e, 16, [(a, a + 1)])
        e(f"v_add_f32_dpp v{a}, v{a}, v{a} row_ror:8 {DPPF}"); e(f"v_add_f32_dpp v{a}, v{a}, v{a} row_ror:4 {DPPF}")
        e(f"ds_write_b32 v15, v{a} offset:{base}")
    def g_step():
        inflight["G"].pop(0)
        def cmp(E):
            cmp_tag(E, GR, 9, 14); E("s_and_b64 vcc, vcc, 0xfff")
        tagcheck("g", cmp, g_loads, True)
        for k in range(4): e(f"v_and_b32 v{GR+k}, s{MSK}, v{GR+k}")
        col_reduce(GR, GP)
        state["g"] = True

    def operm(n, r):
        hs, n_ = divmod(n, 12)
        j_, p_ = n_ // 4, n_ % 4
        f = 252
        for dw in range(5):
            a, b = (r + dw, r + 4 + dw) if dw < 4 else (r + 8, r + 9)
            e(f"v_perm_b32 v{f}, v{b}, v{a}, s20"); e(f"v_perm_b32 v{b}, v{b}, v{a}, s21")
            LO[(hs, j_, p_, dw)] = f; HI[(hs, j_, p_, dw)] = b
            f = a
        e(f"v_mov_b32 v{f}, v252"); LO[(hs, j_, p_, 0)] = f

    def run_ready():
        if inflight["Q"] and e.landed(inflight["Q"][0][2][-1]): q_final()
        np_ = 0
        while state["q"] and inflight["K"] and np_ < P["maxparts"]:
            ent = inflight["K"][0]
            if ent[3] >= len(ent[2]) or not e.landed(ent[2][ent[3]]): break
            k_part(ent); np_ += 1
            if ent[3] == 3: inflight["K"].pop(0)
        if state["q"] and state["f2"] == 0 and state["kdone"] >= P["f2_at"]: f2a()
        elif state["f2"] == 2: f2b()
        while inflight["O"] and e.landed(inflight["O"][0][2][-1]):
            n, r, ids = inflight["O"].pop(0); operm(n, r)
        if state["kdone"] == 32 and not state["p"]: transition()
        while state["p"] and inflight["V"]:
            ent = inflight["V"][0]
            if ent[3] >= len(ent[2]) or not e.landed(ent[2][ent[3]]): break
            v_part(ent)
            if ent[3] == 3: inflight["V"].pop(0)
        if state["p"]:
            if state["ml"] == 1: ml_publish()
            elif state["ml"] == 2 and not state["addr"]: tail_addr()
            elif state["m"] == 2: c_get()
            else: shadow()
        if inflight["M"] and e.landed(inflight["M"][0][2][-1]): m_step()
        if inflight["G"] and e.landed(inflight["G"][0][2][-1]): g_step()
        if inflight["X"] and e.landed(inflight["X"][0][2][-1]): x_step()

    late_setup()
    def tlbpf():
        e("v_lshlrev_b32 v253, 12, v1"); e.vm(f"buffer_load_dword v252, v253, {S(SWO)}, 0 offen")
        if P["tlb"] & 4: e.vm(f"buffer_load_dword v252, v253, {S(SW2)}, 0 offen")
    if P["tlb"] & 1: tlbpf()
    issue_next(P["pk0"])
    layernorm(); w_phase()
    pacing[0] = True
    items.insert(0, ("F", 0))
    items.insert(1 + P["qdelay"], ("Q", 0))
    while items:
        it = items.pop(0)
        if P["tlb"] & 2 and it == ("K", P["tlb_at"]): tlbpf()
        issue(it)
        run_ready()
        if it[0] in "KV" and P["bar"] and state["q"]:
            pos = it[1] + (32 if it[0] == "V" else 0)
            if (pos % P["bar"] == P["bar"] - 1 and pos < P["barend"]) or state["needbar"]:
                if state["needbar"]:
                    e("s_waitcnt lgkmcnt(0)"); Abar.update(Adone); state["needbar"] = False
                    if state["m"] == 1: state["m"] = 2
                    if state["x"] == 3: state["x"] = 4; print("x bar at", pos, file=sys.stderr)
                    if state["y0"] == 1: state["y0"] = 2; print("y0 bar at", pos, file=sys.stderr)
                    if state["st"] == NR and state["ml"] == 0: state["ml"] = 1
                e("s_barrier")
                if state["f2"] == 1: state["f2"] = 2
                if state["x"] == 1: state["x"] = 2; print("xpub bar at", pos, file=sys.stderr)
            if NH == 2:
                for k in range(P["o2n"]):
                    n_ = state["o2"] - 12
                    if n_ < 12 and all((r, n_ // 4, n_ % 4) in Bfin for r in (0, 1)):
                        items.insert(k, ("O", state["o2"])); state["o2"] += 1
    assert state["g"] and state["m"] == 3 and state["addr"]
    e(f"s_mov_b32 s101, {SPIN}")
    assert not inflight["K"] and state["p"] and not inflight["O"]
    assert (NR - 1, 1) in Abar, state
    if P["y0late"] == 1: assert state["y0"] == 3; y0_store()
    while inflight["V"]:
        v = inflight["V"][0]
        last = len(inflight["V"]) == 1 and v[3] == 2
        shadow()
        if last:
            nb = len(e.L)
            while shadow(): pass
            print("leftover shadow lines before last V:", len(e.L) - nb, file=sys.stderr)
        e.wait_vm(v[2][v[3]]); v_part(v)
        if v[3] == 3: inflight["V"].pop(0)
    assert state["y0"] == 3 and not Bq and not pend
    stamp("vdone")
    step_A(NR - 1, 2); Abar.update(Adone)
    e("s_waitcnt lgkmcnt(0)"); e("s_barrier")
    stamp("tb1")
    step_B(NR - 1, 2); drain_pend(99)
    stamp("tdots")
    y_write(1)
    e("s_mov_b64 exec, 0xfffff")
    e("s_waitcnt lgkmcnt(0)"); e("s_barrier")
    stamp("tb2")
    for w in range(8): e(f"ds_read_b128 v[{BUF0+4*w}:{BUF0+4*w+3}], v13 offset:{YP+5120*w+2560}")
    for w in range(1, 8):
        e(f"s_waitcnt lgkmcnt({7-w})")
        for k in (0, 2): e(f"v_pk_add_f32 v[{BUF0+k}:{BUF0+k+1}], v[{BUF0+k}:{BUF0+k+1}], v[{BUF0+4*w+k}:{BUF0+4*w+k+1}]")
    put_tag(e, BUF0)
    e.vm(f"buffer_store_dwordx4 v[{BUF0}:{BUF0+3}], v13, {S(SWS)}, s11 offen offset:2560 {SC1}")
    e("s_mov_b64 exec, -1")
    if P["y0late"] == 2: y0_store()
    stamp("ystore")
    if stamps and "yack" in smap:
        e("s_waitcnt vmcnt(0)"); stamp("yack")
    e("s_cmp_eq_u32 s100, 0"); e("s_cbranch_scc1 LA_fin")
    B = BUF0 + 32
    def pload():
        e(f"buffer_load_dwordx4 v[{B}:{B+3}], v0, {S(SWS)}, s22 offen {SC1}")
        e(f"buffer_load_dwordx4 v[{B+4}:{B+7}], v0, {S(SWS)}, s5 offen {SC1}")
    def pk(op, a, b, c): e(f"v_pk_{op}_f32 v[{a}:{a+1}], v[{b}:{b+1}], v[{c}:{c+1}]")
    def sum8(r):
        pk("add", r, r, r + 4); pk("add", r + 2, r + 2, r + 6); pk("add", r, r, r + 2); e(f"v_add_f32 v{r}, v{r}, v{r+1}")
    pload()
    g = ACC
    e(f"ds_read_b128 v[{g}:{g+3}], v8 offset:{GP}"); e(f"ds_read_b128 v[{g+4}:{g+7}], v8 offset:{GP+16}")
    e(f"v_lshlrev_b32 v{B2V}, 16, v{B2V}"); e(f"v_lshlrev_b32 v{XV}, 16, v{XV}")
    e("s_waitcnt lgkmcnt(0)")
    sum8(g)
    bf16r(e, g); e(f"v_add_f32 v{g}, v{g}, v{B2V}"); bf16r(e, g)
    e(f"v_mul_f32 v9, s15, v{g}"); e("v_exp_f32 v9, -v9"); e("v_add_f32 v9, 1.0, v9"); e("v_rcp_f32 v9, v9")
    e(f"v_mul_f32 v{g}, v{g}, v9"); bf16r(e, g)
    e.label("Lpoll")
    e("s_waitcnt vmcnt(1)")
    cmp_tag(e, B, 9, 10); e("s_and_b64 s[80:81], vcc, s[24:25]")
    e("s_waitcnt vmcnt(0)")
    cmp_tag(e, B + 4, 9, 10); e("s_and_b64 vcc, vcc, s[30:31]")
    e("s_or_b64 exec, vcc, s[80:81]"); e("s_cbranch_scc0 Lpoll_done")
    e("s_sub_u32 s101, s101, 1"); e("s_cbranch_scc1 Lpoll_done")
    for _ in range(P["ysl"] // 16): e("s_nop 15")
    if P["sepm"]:
        e("s_and_b64 exec, vcc, vcc"); e("s_cbranch_scc0 Lpoll_a")
        e(f"buffer_load_dwordx4 v[{B+4}:{B+7}], v0, {S(SWS)}, s5 offen {SC1}")
        e.label("Lpoll_a")
        e("s_and_b64 exec, s[80:81], s[80:81]"); e("s_cbranch_scc0 Lpoll_b")
        e(f"buffer_load_dwordx4 v[{B}:{B+3}], v0, {S(SWS)}, s22 offen {SC1}")
        e.label("Lpoll_b")
        e("s_mov_b64 exec, -1"); e("s_waitcnt vmcnt(0)")
    else: pload()
    e("s_branch Lpoll")
    e.label("Lpoll_done")
    e("s_mov_b64 exec, -1")
    stamp("pdone")
    for k in range(8): e(f"v_and_b32 v{B+k}, s{MSK}, v{B+k}")
    pk("add", B, B, B + 4); pk("add", B + 2, B + 2, B + 6)
    swapred_pk(e, 32, B, B + 2, 2)
    swapred(e, 16, [(B, B + 1)])
    e(f"v_add_f32_dpp v{B}, v{B}, v{B} row_ror:8 {DPPF}"); e(f"v_add_f32_dpp v{B}, v{B}, v{B} row_ror:4 {DPPF}")
    e(f"ds_write_b32 v15, v{B} offset:{SP}")
    e("s_cmp_lg_u32 s3, 0")
    e("s_waitcnt lgkmcnt(0)"); e("s_barrier")
    stamp("cbar")
    e("s_cbranch_scc1 LA_fin")
    e(f"ds_read_b128 v[{B}:{B+3}], v8 offset:{SP}"); e(f"ds_read_b128 v[{B+4}:{B+7}], v8 offset:{SP+16}")
    e("s_waitcnt lgkmcnt(0)")
    sum8(B)
    bf16r(e, B); e(f"v_mul_f32 v{B}, v{B}, v{g}"); bf16r(e, B); e(f"v_add_f32 v{B}, v{B}, v{XV}")
    e(f"v_cvt_pk_bf16_f32 v{B}, v{B}, v{B}")
    e("s_mov_b64 exec, 0xffff")
    e(f"buffer_store_short v{B}, v3, {S(SOUT)}, s23 offen {P['polout']}")
    stamp("ostore")
    e("s_cmp_lg_u32 s2, 0"); e("s_cbranch_scc1 LA_fin")
    e(f"v_mov_b32 v9, s{TAG}"); e("s_mov_b64 exec, 1")
    e(f"buffer_store_dword v9, off, {S(SWS)}, 0 offset:{EP_OFF} {SC1}")
    e.label("LA_fin")
    if P["fixend"]:
        e("s_cmp_lg_u32 s2, 0"); e("s_cbranch_scc1 LA_done"); e("s_cmp_lg_u32 s3, 0"); e("s_cbranch_scc1 LA_done")
        e("s_waitcnt vmcnt(0)"); e("s_memrealtime s[86:87]"); e("s_waitcnt lgkmcnt(0)"); e("s_sub_u32 s86, s86, s84")
        e("s_mov_b32 s40, s38"); e("s_mov_b32 s41, s39"); e("s_mov_b32 s42, 256"); e("s_mov_b32 s43, 0x20000")
        e("s_mov_b64 exec, 1"); e("v_mov_b32 v9, s86"); e("buffer_store_dword v9, off, s[40:43], 0")
        e.label("Lfix"); e("s_memrealtime s[86:87]"); e("s_waitcnt lgkmcnt(0)"); e("s_sub_u32 s86, s86, s84")
        e(f"s_cmp_lt_u32 s86, {P['fixend']}"); e("s_cbranch_scc1 Lfix")
    if stamps:
        e(f"s_cmp_lg_u32 s3, {P['sw']}"); e("s_cbranch_scc1 LA_done")
        e("s_mov_b64 exec, 1")
        e("s_waitcnt vmcnt(0)")
        stamp("end")
        e("s_add_u32 s40, s40, 0x10000000"); e("s_addc_u32 s41, s41, 0"); e("s_mov_b32 s42, 0x100000"); e("s_mov_b32 s43, 0x20000")
        e("s_getreg_b32 s85, hwreg(HW_REG_XCC_ID)")
        if "polls" in smap:
            k = 84 + 2 * int(smap["polls"])
            e(f"s_sub_u32 s{k}, {SPIN}, s101"); e(f"s_mul_i32 s{k}, s{k}, 100"); e(f"s_add_u32 s{k}, s{k}, s84")
        for k in range(16): e(f"v_mov_b32 v{16+k}, s{84+k}")
        e("s_lshl_b32 s80, s2, 6"); e("v_mov_b32 v1, s80")
        for k in range(4): e(f"buffer_store_dwordx4 v[{16+4*k}:{19+4*k}], v1, s[40:43], 0 offen offset:{16*k}")
    e.label("LA_done")
    e("s_endpgm")
    return e.text() + slow.text() + "    s_endpgm\n"

def desc(name, vgpr, sgpr):
    return f""".amdhsa_kernel {name}
  .amdhsa_next_free_vgpr {vgpr}
  .amdhsa_next_free_sgpr {sgpr}
  .amdhsa_accum_offset {vgpr}
  .amdhsa_group_segment_fixed_size 0
  .amdhsa_kernarg_size 104
  .amdhsa_user_sgpr_count 2
  .amdhsa_user_sgpr_kernarg_segment_ptr 1
  .amdhsa_system_sgpr_workgroup_id_x 1
  .amdhsa_float_denorm_mode_32 3
.end_amdhsa_kernel
"""

DEF = dict(abl="", sm="q:1,trans:2,vdone:3,qpub:4,ystore:5,polls:6,end:7", sw=0, bar=2, barend=62,
           pf=-1, polp='', rotS=3, rotM=85, mw=1, g_at=10, x_at=21, xw=1, yw=3, loc=1, ysl=0, sepm=0, tlb=0, tlb_at=14, y0late=1, o2n=2, DP=4, DK=3, DV=3, DE=3, de_at=999, W=3, bdrain=20, polout='', wo_start=18, wo_every=2, polw="nt", polo="", sc="sc1", maxparts=6,
           pk0=0, pk1=2, qdelay=3, f2_at=12, m_at=6, pubw=0, fixend=0)

def build(**kw):
    P = dict(DEF); P.update(kw)
    a = kernel(P)
    s = HEADER
    s += f"; @launch grid=(256,1,1) block=(512,1,1) lds={LDS_A}\n"
    s += '.amdgcn_target "amdgcn-amd-amdhsa--gfx950"\n.text\n'
    s += f".globl {KN}_kernel\n.p2align 8\n.type {KN}_kernel,@function\n{KN}_kernel:\n" + a
    s += '.section .rodata,"a"\n.p2align 6\n' + desc(KN + "_kernel", 256, 102)
    return s

if __name__ == "__main__":
    out = sys.argv[1]
    kw = {}
    for a in sys.argv[2:]:
        k, v = a.split("=", 1)
        kw[k] = int(v) if v.lstrip("-").isdigit() else v.replace("+", " ")
    open(out, "w").write(build(**kw))
```

```python
import sys, struct
from em import Em
KN = "recurrent_scan__gqa_block_cached__dense_activation_squared_relu__decode"
R = 8192 * 384
def f32(x): return "0x%08x" % struct.unpack("<I", struct.pack("<f", x))[0]
LOG2E = 1.4426950408889634
XN, TP, QB, MX, FP, YP, GP, SP, CO, OP = 0, 2560, 6656, 8960, 9216, 0, 40960, 41472, 41984, 42048
OST = 800
LDS_A = OP + 2 * 8 * OST
EP_OFF, ML_OFF, PX_OFF, G_OFF, Y_OFF, X_OFF, WS_SIZE = 0, 0x1000, 0x10000, 0x30000, 0x50000, 0x190000, 0x200000
KVTOT = 64 * R
SLAB = 245760
OOB = 0x40000000
DPPF = "row_mask:0xf bank_mask:0xf"
SPIN = 200000

HEADER = open("cdna_kernels/" + KN + ".s.ref").read().split("; Override launch")[0]

def allred8(e, op, rs):
    for m in ("quad_perm:[1,0,3,2]", "quad_perm:[2,3,0,1]", "row_half_mirror"):
        for r in rs: e(f"{op}_dpp v{r}, v{r}, v{r} {m} {DPPF}")
def allred_rows(e, op, r, t):
    for k in (16, 32):
        e(f"v_mov_b32 v{t}, v{r}"); e(f"v_permlane{k}_swap_b32 v{r}, v{t}"); e(f"{op} v{r}, v{r}, v{t}")
def swapred(e, kind, pairs):
    for a, b in pairs: e(f"v_permlane{kind}_swap_b32 v{a}, v{b}")
    for a, b in pairs: e(f"v_add_f32 v{a}, v{a}, v{b}")
def swapred_pk(e, kind, a, b, n):
    for x in range(n): e(f"v_permlane{kind}_swap_b32 v{a+x}, v{b+x}")
    for x in range(0, n, 2): e(f"v_pk_add_f32 v[{a+x}:{a+x+1}], v[{a+x}:{a+x+1}], v[{b+x}:{b+x+1}]")
def srd(e, d, lo, hi, size, addlo=None):
    if addlo is None:
        e(f"s_mov_b32 s{d}, s{lo}"); e(f"s_mov_b32 s{d+1}, s{hi}")
    else:
        e(f"s_add_u32 s{d}, s{lo}, {addlo}"); e(f"s_addc_u32 s{d+1}, s{hi}, 0")
    e(f"s_mov_b32 s{d+2}, {size}"); e(f"s_mov_b32 s{d+3}, 0x20000")
def bf16r(e, r):
    e(f"v_cvt_pk_bf16_f32 v{r}, v{r}, v{r}"); e(f"v_and_b32 v{r}, s13, v{r}")

def kernel(P):
    wo_start, wo_every = P["wo_start"], P["wo_every"]
    NR = 2; NH = NR // 2; G = 4 * NR; gpr = 32 // NR
    HB = QB + 768 * NH
    SF, SCO = [28, 29, 30, 31], [32, 33, 24, 25]
    polw, polo, SC1 = P["polw"], P["polo"], P["sc"]
    stamps = P.get("stamps", False)
    abl = P["abl"]
    e = Em(); slow = Em()
    ACC, Q, SC, BUF0, NBUF = 16, 40, 52, 84, 14
    SK, SV, SWQ, SWO, SX, SB1, SW2, SWS = 44, 48, 52, 56, 60, 64, 68, 76
    SB2, SOUT = SWQ, SB1
    TAG, SEL, MSK = 75, 72, 73
    XV, B2V = 254, 255
    def S(d): return f"s[{d}:{d+3}]"
    smap = dict(kv.split(":") for kv in P["sm"].split(","))
    def stamp(name):
        if stamps and name in smap:
            k = int(smap[name]); e(f"s_memrealtime s[{84+2*k}:{85+2*k}]"); e("s_waitcnt lgkmcnt(0)")
    e("s_cmp_ge_u32 s2, 256"); e("s_cbranch_scc1 LA_done")
    e("s_load_dwordx16 s[16:31], s[0:1], 0")
    e("s_load_dwordx8 s[32:39], s[0:1], 64")
    e("s_load_dwordx2 s[40:41], s[0:1], 96")
    if stamps or P["fixend"]: e("s_memrealtime s[84:85]")
    e("v_lshrrev_b32 v9, 6, v0"); e("v_and_b32 v1, 63, v0"); e("v_readfirstlane_b32 s3, v9")
    e("s_and_b32 s80, s2, 7"); e("s_lshr_b32 s81, s2, 3")
    e("s_lshr_b32 s82, s81, 3")
    if NH == 1: e("s_lshl2_add_u32 s4, s80, s82"); e("s_mov_b32 s5, s4")
    else:
        e("s_lshr_b32 s4, s81, 4"); e("s_lshl1_add_u32 s4, s80, s4"); e("s_and_b32 s5, s82, 1"); e("s_lshl4_add_u32 s5, s5, s4")
    e("s_and_b32 s83, s81, 7")
    e("s_cmp_ge_u32 s83, 3"); e("s_cselect_b32 s42, 1, 0"); e("s_mul_i32 s43, s42, 3"); e("s_sub_u32 s43, s83, s43")
    e("s_mul_i32 s100, s5, 3"); e("s_add_u32 s43, s43, s100")
    e("s_mul_i32 s100, s80, 3"); e("s_add_u32 s100, s100, s82")
    e("s_sub_u32 s101, s83, 6")
    e("s_cmp_eq_u32 s82, 3"); e(f"s_cselect_b32 s12, 0, {319*3072+128}")
    e("s_movk_i32 s10, 3072")
    e("s_cmp_lt_u32 s83, 6")
    e("s_cselect_b32 s42, s42, s101"); e("s_cselect_b32 s43, s43, s100"); e("s_cselect_b32 s10, 12288, s10")
    e(f"s_cselect_b32 s{SWQ+2}, {319*12288+128}, s12")
    e("s_mul_i32 s11, s42, 320"); e("s_mul_i32 s42, s11, s10"); e("s_mul_i32 s43, s43, 128")
    if "l" in abl:
        e("s_mul_i32 s42, s11, 128"); e("s_mul_i32 s43, s43, 640"); e("s_movk_i32 s10, 128"); e(f"s_min_u32 s{SWQ+2}, s{SWQ+2}, 40960"); e("s_cmp_lt_u32 s83, 6")
    e("v_lshrrev_b32 v9, 3, v0"); e("v_and_b32 v10, 7, v1"); e("v_lshlrev_b32 v10, 4, v10")
    e("v_mul_u32_u24 v3, s10, v9"); e("v_add_u32 v3, v3, v10")
    e("s_mul_i32 s12, s3, 1280")
    e("v_mul_u32_u24 v11, 20, v1"); e("v_add_u32 v11, s12, v11")
    e("s_mul_i32 s10, s10, 64")
    e("s_waitcnt lgkmcnt(0)")
    e("s_cselect_b32 s100, s22, s28"); e("s_cselect_b32 s101, s23, s29")
    srd(e, SX, 16, 17, 2560)
    if stamps:
        for k in range(1, 8): e(f"s_mov_b32 s{84+2*k}, s84")
    x0 = e.vm(f"buffer_load_dwordx4 v[12:15], v11, {S(SX)}, 0 offen")
    x1 = e.vm(f"buffer_load_dword v8, v11, {S(SX)}, 0 offen offset:16")
    e("s_add_u32 s42, s42, s43")
    e(f"s_add_u32 s{SWQ}, s100, s42"); e(f"s_addc_u32 s{SWQ+1}, s101, 0"); e(f"s_mov_b32 s{SWQ+3}, 0x20000")
    if "w" in abl: e(f"s_mov_b32 s{SWQ+2}, 0")
    wid = []
    for i in range(5):
        if i >= 2: e(f"s_mul_i32 s12, s10, {i}")
        so = "0" if i == 0 else ("s10" if i == 1 else "s12")
        wid.append(e.vm(f"buffer_load_dwordx4 v[{SC+4*i}:{SC+4*i+3}], v3, {S(SWQ)}, {so} offen {polw}"))
    e(f"s_load_dword s{TAG}, s[40:41], {EP_OFF}")
    e(f"s_and_b32 s6, s81, {G-1}")
    e("s_lshl_b32 s7, s80, 5"); e("s_add_u32 s7, s7, s81")
    e(f"s_mul_i32 s8, s4, {R}")
    e("v_lshrrev_b32 v9, 3, v1"); e("v_mul_u32_u24 v2, 384, v9"); e("v_add_u32 v2, v2, v10")
    e("s_lshl3_add_u32 s9, s6, s3")
    if P["rotM"]:
        e(f"s_lshr_b32 s82, s4, {P['rotS']}"); e(f"s_mul_i32 s82, s82, {P['rotM']}"); e("s_add_u32 s9, s9, s82")
    e("s_mul_i32 s9, s9, 3072"); e("s_add_u32 s9, s9, s8"); e(f"s_add_u32 s8, s8, {R}")
    srd(e, SK, 18, 19, KVTOT)

    def late_setup():
        srd(e, SV, 20, 21, KVTOT)
        e("s_sub_u32 s81, 31, s81"); e("s_mul_i32 s82, s81, 26"); e("s_lshr_b32 s82, s82, 8")
        e("s_mul_i32 s83, s82, 10"); e("s_sub_u32 s83, s81, s83")
        e("s_mul_i32 s74, s80, 3"); e("s_add_u32 s74, s74, s82")
        e(f"s_mul_i32 s81, s74, {64*1280}"); e("s_lshl_b32 s100, s83, %d" % (13 if "m" in abl else 7)); e("s_add_u32 s81, s81, s100")
        e("s_mul_i32 s26, s83, 24"); e("s_add_u32 s26, s26, s74"); e("s_lshl_b32 s26, s26, 9"); e(f"s_add_u32 s26, s26, {G_OFF}")
        e("s_lshl2_add_u32 s27, s80, s82"); e("s_lshl_b32 s27, s27, 12"); e(f"s_add_u32 s27, s27, {PX_OFF+6*512}")
        e("s_cmp_lt_u32 s82, 3")
        e("s_cselect_b32 s81, s81, 0"); e(f"s_cselect_b32 s100, {0 if 'w' in abl else (8192 if 'm' in abl else 63*1280+128)}, 0"); e(f"s_cselect_b32 s26, s26, {OOB}"); e("s_cselect_b32 s74, s74, 99")
        srd(e, SW2, 32, 33, "s100", "s81")
        e("s_mul_i32 s81, s4, 245760"); e("s_mul_i32 s12, s3, 10240")
        srd(e, SWO, 24, 25, 0 if "o" in abl else SLAB * (1 if NH == 1 else 17), "s81")
        srd(e, SB1, 30, 31, 3072)
        srd(e, SWS, 40, 41, 0 if "s" in abl else WS_SIZE)
        e("s_mov_b32 s13, 0xffff0000"); e(f"s_mov_b32 s14, {f32(192 ** -0.5)}"); e(f"s_mov_b32 s15, {f32(LOG2E)}")
        e(f"s_mov_b32 s{SEL}, 0x0c0c0400"); e(f"s_mov_b32 s{MSK}, 0xffffff00")
        e("s_cmp_lt_u32 s2, %d" % (0 if "c" in abl else 80)); e("s_cselect_b32 s100, 1, 0")
        e("s_cmp_ge_u32 s2, 40"); e("s_cselect_b32 s42, 1, 0"); e("s_mul_i32 s43, s42, 40"); e("s_sub_u32 s43, s2, s43"); e("s_lshl_b32 s43, s43, 6")
        e("v_lshlrev_b32 v4, 4, v1"); e("v_lshlrev_b32 v5, 2, v1")
        e("s_mov_b32 s20, 0x05040100"); e("s_mov_b32 s21, 0x07060302")
        e("v_mov_b32 v7, 0xff800000"); e("s_mov_b32 s32, 1")
        if P["fb"]:
            e("s_lshr_b32 s38, s7, 5"); e("s_lshl_b32 s38, s38, 6"); e("s_and_b32 s39, s7, 31"); e("s_add_u32 s39, s39, s38")
            e("s_lshl_b32 s39, s39, 2"); e("s_add_u32 s39, s39, 0xA000"); e("s_cmp_eq_u32 s3, 0"); e(f"s_cselect_b32 s39, s39, {OOB}"); e(f"s_mov_b32 s38, {P['fb0']}")
        for r in range(ACC, ACC + 16): e(f"v_mov_b32 v{r}, 0")

    items = []
    on = 0
    W = P["W"]; assert W % 3 == 0
    vl = [(t, j) for t in range(32 - W) for j in range(3)] + [(t, j) for j in range(3) for t in range(32 - W, 32)]
    for pos in range(64):
        items.append(("K", pos) if pos < 32 else ("V", pos - 32))
        if pos >= wo_start and (pos - wo_start) % wo_every == 0 and on < 12:
            items.append(("O", on)); on += 1
        if pos == 32 + P["m_at"]: items.append(("M", 0))
        if pos == 32 + P["g_at"]: items.append(("G", 0))
        if pos == 32 + P["x_at"]: items.append(("X", 0))
    assert on == 12, on
    if P["pf"] >= 0: items.insert(P["pf"], ("P", 0))
    pool = list(range(NBUF))
    def alloc(top=False):
        assert pool, "out of buffers"
        pool.sort(); return BUF0 + 12 * pool.pop(-1 if top else 0)
    def free(r): pool.append((r - BUF0) // 12)
    state = dict(addr=False, q=False, p=False, kdone=0, vdone=0, f2=0, st=0, ml=0, g=False, m=0, qreg=0, qwait=False, needbar=False, y0=0, x=0, o2=12)
    vcnt = {}; Adone = []; Abar = set(); Bq = []; Bdone = set(); Bfin = set()
    inflight = {k: [] for k in "KVOFQMGX"}
    stores = []
    pend = []
    LO = {}; HI = {}
    cur_so = [None]
    taken = set()
    heavy = []
    pacing = [False]; fbn = [0]; fbq = []
    PR_OFF = 0xA000
    def fb_issue(pos):
        if not (P["fb"] and state["q"]) or pos > P["fbe"]: return
        e(f"s_xor_b32 s80, s{TAG}, {pos}"); e("v_mov_b32 v9, s80"); e("s_mov_b64 exec, 1")
        e.vm(f"buffer_store_dword v9, v5, {S(SWS)}, s39 offen")
        gp = 32 + P["g_at"]
        busy = gp - 2 <= pos and not state["g"]
        if P["fb"] == 2 and pos >= P["fbs"] and pos % P["fbr"] == 0 and not busy and not fbq:
            e("s_mov_b64 exec, -1"); agg(pos)
            e(f"s_cselect_b32 s81, {PR_OFF + 0x800 - 5120}, {OOB}")
            e("s_lshr_b32 s80, s7, 5"); e("s_lshl_b32 s80, s80, 8"); e(f"s_add_u32 s80, s80, {PR_OFF}")
            e(f"v_add_u32 v{XV}, s80, v5"); e("v_lshl_add_u32 v9, v1, 7, s81"); e("v_cmp_lt_u32 vcc, 39, v1"); e(f"v_cndmask_b32 v{XV}, v{XV}, v9, vcc")
            e("s_mov_b32 exec_hi, 0xff01")
            fbq.append(e.vm(f"buffer_load_dword v{XV}, v{XV}, {S(SWS)}, 0 offen {SC1}")); fbp[0] = pos
        elif pos >= P["fbs"] and pos % P["fbr"] == 0 and not busy and not fbq:
            e("s_lshr_b32 s80, s7, 5"); e("s_lshl_b32 s80, s80, 8"); e(f"s_add_u32 s80, s80, {PR_OFF}"); e("s_mov_b32 exec_lo, -1")
            fbq.append(e.vm(f"buffer_load_dword v{XV}, v5, {S(SWS)}, s80 offen {SC1}"))
        e("s_mov_b64 exec, -1"); e("s_nop 0")
    fbp = [0]
    def agg(pos):
        e(f"s_and_b32 s80, s7, {P['fbA']}"); e("s_lshl3_add_u32 s80, s80, s3"); e(f"s_cmp_eq_u32 s80, {8 * ((pos // P['fbr']) & P['fbA'])}")
    def fb_step2():
        fbq.pop(0)
        e(f"v_xor_b32 v9, s{TAG}, v{XV}"); e("s_and_b32 s80, s7, 31"); e("s_lshr_b32 s83, s7, 5"); e("s_add_u32 s83, s83, 40")
        e("v_readlane_b32 s81, v9, s80"); e("v_readlane_b32 s82, v9, 32"); e("v_readlane_b32 s83, v9, s83")
        e("v_min_u32 v9, 0x4000, v9"); allred8(e, "v_add_u32", [9])
        e("v_readlane_b32 s80, v9, 40")
        e(f"v_add_u32_dpp v9, v9, v9 row_mirror {DPPF}")
        e("s_lshl_b32 s83, s83, 3"); e("s_sub_u32 s83, s83, s80"); e("s_cmp_lt_u32 s80, 0x4000"); e("s_cselect_b32 s83, s83, 0")
        e("s_add_u32 s83, s83, 0x8000"); e(f"s_xor_b32 s83, s83, s{TAG}"); e(f"v_mov_b32 v{XV}, s83")
        e("v_readlane_b32 s80, v9, 0"); e("v_readlane_b32 s83, v9, 16")
        e("s_cmp_lt_u32 s82, 0x10000"); e("s_cselect_b32 s82, s82, 0x8000"); e("s_sub_u32 s82, s82, 0x8000"); e(f"s_ashr_i32 s82, s82, {P['fbG']}")
        e("s_add_u32 s80, s80, s83"); e("s_lshl_b32 s81, s81, 5"); e("s_sub_u32 s81, s81, s80"); e("s_add_u32 s82, s82, s81")
        e("s_cmp_lt_u32 s80, 0x4000"); e("s_cselect_b32 s82, s82, 0")
        e(f"s_xor_b32 s80, s80, s{TAG}"); e("v_mov_b32 v9, s80")
        e(f"s_cmp_gt_i32 s82, {P['fbT']}"); e(f"s_cselect_b32 s38, 2, 1"); e(f"s_cmp_lt_i32 s82, {-P['fbU']}"); e("s_cselect_b32 s38, 0, s38")
        agg(fbp[0]); e(f"s_cselect_b32 s81, {PR_OFF}, {OOB}")
        e("s_lshr_b32 s80, s7, 5"); e("s_lshl_b32 s82, s80, 7"); e("s_add_u32 s82, s82, s81"); e("s_lshl_b32 s80, s80, 8"); e("s_add_u32 s80, s80, s81")
        e("s_mov_b64 exec, 1")
        e.vm(f"buffer_store_dword v9, v5, {S(SWS)}, s82 offen offset:2048 {SC1}")
        e.vm(f"buffer_store_dword v{XV}, v5, {S(SWS)}, s80 offen offset:128")
        e("s_mov_b64 exec, -1"); e("s_nop 0")
    def fb_step():
        if P["fb"] == 2: return fb_step2()
        fbq.pop(0)
        e(f"v_xor_b32 v9, s{TAG}, v{XV}"); e("v_min_u32 v9, 64, v9"); e("s_and_b32 s80, s7, 31"); e("s_nop 1"); e("v_readlane_b32 s81, v9, s80"); e("s_nop 1")
        e("v_cmp_gt_u32 vcc, s81, v9"); e("s_nop 1"); e("s_bcnt1_i32_b32 s82, vcc_lo")
        e("v_cmp_lt_u32 vcc, s81, v9"); e("s_nop 1"); e("s_bcnt1_i32_b32 s83, vcc_lo"); e("s_sub_i32 s82, s82, s83")
        e(f"s_cmp_gt_i32 s82, {P['fbT']}"); e(f"s_cselect_b32 s38, 2, 1"); e(f"s_cmp_lt_i32 s82, {-P['fbU']}"); e("s_cselect_b32 s38, 0, s38")
    def soff(base, const):
        key = (base, const)
        if cur_so[0] != key:
            e(f"s_add_u32 s10, s{base}, {const}"); cur_so[0] = key
    def kv_soff(t):
        key = ("kv", t)
        if cur_so[0] == key: return
        cur_so[0] = key
        r, tl = divmod(t, gpr)
        o = tl * G * 64 * 384; rc = ((r & 1) * 32 + (r >> 1) * 16) * R
        if P["rotM"]:
            e(f"s_add_u32 s10, s9, {o}"); e("s_cmp_ge_u32 s10, s8")
            e(f"s_cselect_b32 s83, {R}, 0"); e("s_sub_u32 s10, s10, s83")
            if rc: e(f"s_add_u32 s10, s10, {rc}")
        else: e(f"s_add_u32 s10, s9, {o+rc}")
    def q_loads(E):
        return [E.vm(f"buffer_load_dwordx4 v[{Q}:{Q+3}], v{Q+6}, {S(SWS)}, 0 offen {SC1}")]
    MR, GR, GA, XR = SC, SC + 4, SC + 8, SC
    def x_loads(E):
        E("s_mov_b32 exec_hi, 0xffff")
        i = E.vm(f"buffer_load_dwordx4 v[{XR}:{XR+3}], v4, {S(SWS)}, s27 offen {SC1}")
        E("s_mov_b32 exec_hi, -1")
        return [i]
    def m_loads(E):
        return [E.vm(f"buffer_load_dwordx4 v[{MR}:{MR+3}], v{MR+4}, {S(SWS)}, 0 offen {SC1}")]
    def g_loads(E):
        return [E.vm(f"buffer_load_dwordx4 v[{GR}:{GR+3}], v{GA}, {S(SWS)}, 0 offen {SC1}")]
    def hload(t):
        if pacing[0]:
            D = P["DV"] if state["p"] else (P["DK"] if state["q"] else P["DP"])
            if len(heavy) >= P["de_at"]: D = P["DE"]
            if D >= 10: D = D // 10 + (1 if (len(heavy) * (D % 10)) % 10 < D % 10 else 0)
            i = len(heavy) - D
            if i >= 0: e.wait_vm(heavy[i])
            if P["fb"] and state["q"]:
                fbn[0] += 1; L = f"Lfb{fbn[0]}"
                for lv in (1, 2):
                    h = heavy[len(heavy) - (P["DK"] - lv)]
                    if e.landed(h): continue
                    e(f"s_cmp_lt_u32 s38, {lv}"); e(f"s_cbranch_scc1 {L}"); e(f"s_waitcnt vmcnt({e.vmq - 1 - h})")
                e.label(L)
        i = e.vm(t); heavy.append(i); return i
    W2R, B1R = SC + 28, SC + 27
    def issue(it):
        kind, n = it
        if kind in "KV":
            stamp("g%d" % (n + (32 if kind == "V" else 0)))
            fb_issue(n + (32 if kind == "V" else 0))
            r = alloc()
            s = SK if kind == "K" else SV
            ent = [n, r, [], 0]
            inflight[kind].append(ent)
            for k in range(3):
                t, j = (n, k) if kind == "K" else vl[3 * n + k]
                kv_soff(t)
                ent[2].append(hload(f"buffer_load_dwordx4 v[{r+4*k}:{r+4*k+3}], v2, {S(s)}, s10 offen offset:{128*j} nt"))
                if pacing[0]: run_ready()
        elif kind == "O":
            hs, n_ = divmod(n, 12)
            r = BUF0 + 12 * NBUF - 10 * (n_ + 1)
            for bi in {(r - BUF0) // 12, (r + 9 - BUF0) // 12}:
                if bi in pool: pool.remove(bi); taken.add(bi)
                assert bi in taken, "wo landing buffer busy"
            j_, p_ = n_ // 4, n_ % 4
            soff(12, (64 * j_ + 2 * p_) * 1280 + hs * 16 * SLAB)
            ids = []
            for h in range(2):
                ids.append(e.vm(f"buffer_load_dwordx4 v[{r+4*h}:{r+4*h+3}], v4, {S(SWO)}, s10 offen offset:{1280*h} {polo}"))
                ids.append(e.vm(f"buffer_load_dword v{r+8+h}, v5, {S(SWO)}, s10 offen offset:{1280*h+1024} {polo}"))
            inflight[kind].append((n, r, ids))
        elif kind == "P":
            e("s_and_b32 s80, s6, 7"); e("s_lshl3_add_u32 s80, s80, s3"); e("s_mul_i32 s80, s80, 3840")
            if NH == 2:
                e("s_lshr_b32 s81, s6, 3"); e(f"s_mul_i32 s81, s81, {16*SLAB}"); e("s_add_u32 s80, s80, s81")
            for k in range(4):
                if k == 3: e("s_mov_b32 exec_hi, 0xffff")
                hload(f"buffer_load_dwordx4 v[248:251], v4, {S(SWO)}, s80 offen offset:{1024*k} {P['polp']}")
            e("s_mov_b32 exec_hi, -1")
        elif kind == "F":
            e("v_lshrrev_b32 v9, 3, v0"); e("v_mul_u32_u24 v9, %d, v9" % (128 if "m" in abl else 1280)); e("v_and_b32 v10, 7, v1"); e("v_lshl_add_u32 v9, v10, 4, v9")
            ids = [e.vm(f"buffer_load_dwordx4 v[{W2R}:{W2R+3}], v9, {S(SW2)}, 0 offen {polw}")]
            e("v_and_b32 v9, 15, v1"); e("v_lshlrev_b32 v9, 3, v9"); e("v_lshrrev_b32 v10, 5, v1"); e(f"v_lshl_add_u32 v{Q+7}, v10, 2, v9")
            e("s_lshl_b32 s80, s74, 7")
            ids.append(e.vm(f"buffer_load_dword v{B1R}, v{Q+7}, {S(SB1)}, s80 offen"))
            inflight[kind].append((n, 0, ids))
            e("s_cmp_eq_u32 s42, 0"); e("s_movk_i32 s80, 5120"); e("s_cselect_b32 s80, 40960, s80")
            e("v_lshrrev_b32 v9, 2, v0"); e("v_mul_u32_u24 v9, s80, v9"); e("v_and_b32 v0, 3, v0"); e("v_lshl_add_u32 v0, v0, 4, v9")
        elif kind == "Q":
            e(f"s_andn2_b32 s80, s7, {G-1}"); e("s_cmp_ge_u32 s3, 3"); e("s_cselect_b32 s81, 5, 0"); e("s_add_u32 s81, s81, s3")
            e(f"s_cmp_lt_u32 s3, {3*NH}"); e("s_cselect_b32 s81, s81, 0"); e("s_add_u32 s80, s80, s81")
            e("s_lshl_b32 s80, s80, 9"); e(f"s_add_u32 s80, s80, {PX_OFF}")
            e("s_cmp_lt_u32 s74, 24"); e("s_cselect_b32 s81, s3, 99"); e("s_movk_i32 s83, 1536")
            e(f"s_cmp_eq_u32 s81, {3*NH}"); e("s_cselect_b32 s80, s27, s80"); e("s_cselect_b32 s83, 512, s83")
            e("v_lshrrev_b32 v9, 5, v1"); e("v_mul_u32_u24 v9, s83, v9"); e("v_and_b32 v10, 31, v1"); e("v_lshl_add_u32 v9, v10, 4, v9")
            e(f"v_add_u32 v{Q+6}, s80, v9")
            stamp("qissue")
            inflight[kind].append((n, Q, q_loads(e)))
        elif kind == "M":
            assert state["vdone"] >= 5 and state["ml"] == 2
            e(f"v_and_b32 v9, {G-1}, v1"); e("v_lshlrev_b32 v9, 7, v9"); e(f"v_bfe_u32 v{MR+4}, v1, 4, {NH}"); e(f"v_lshl_add_u32 v9, v{MR+4}, 4, v9")
            e(f"s_andn2_b32 s80, s7, {G-1}"); e("s_lshl_b32 s80, s80, 7"); e(f"s_add_u32 s80, s80, {ML_OFF}")
            e(f"s_cmp_eq_u32 s3, {P['mw']}"); e(f"s_cselect_b32 s80, s80, {OOB}"); e(f"v_add_u32 v{MR+4}, s80, v9")
            inflight[kind].append((n, MR, m_loads(e)))
        elif kind == "G":
            assert state["vdone"] >= 9 and state["m"] >= 1 and state["x"] == 0
            a = GA
            e(f"v_lshrrev_b32 v{a}, 2, v1"); e(f"v_cmp_gt_u32 vcc, 3, v{a}"); e(f"v_lshlrev_b32 v{a}, 9, v{a}")
            e("v_and_b32 v9, 3, v1"); e(f"v_lshl_add_u32 v{a}, v9, 4, v{a}"); e(f"v_mov_b32 v9, {OOB}"); e(f"v_cndmask_b32 v{a}, v9, v{a}, vcc")
            e("s_cmp_eq_u32 s100, 1"); e(f"s_cselect_b32 s82, 0, {OOB}")
            e("s_lshr_b32 s80, s43, 8"); e("s_mul_i32 s80, s80, 24"); e("s_mul_i32 s81, s3, 3"); e("s_add_u32 s80, s80, s81"); e("s_lshl_b32 s80, s80, 9")
            e("s_lshl_b32 s81, s42, 8"); e("s_add_u32 s80, s80, s81"); e("s_and_b32 s81, s43, 0xc0"); e("s_add_u32 s80, s80, s81")
            e("s_add_u32 s80, s80, s82"); e(f"s_add_u32 s80, s80, {G_OFF}"); e(f"v_add_u32 v{a}, s80, v{a}")
            assert not fbq
            ids = g_loads(e)
            srd(e, SB2, 34, 35, 1280); srd(e, SOUT, 36, 37, 2560)
            e("v_and_b32 v9, 15, v1"); e("v_lshlrev_b32 v9, 1, v9")
            e("s_lshr_b32 s80, s43, 1"); e("s_add_u32 s80, s80, s82"); e("s_mul_i32 s81, s42, 1280"); e("s_add_u32 s81, s81, s80")
            ids.append(e.vm(f"buffer_load_ushort v{B2V}, v9, {S(SB2)}, s80 offen"))
            ids.append(e.vm(f"buffer_load_ushort v{XV}, v9, {S(SX)}, s81 offen"))
            inflight[kind].append((n, GR, ids))
        elif kind == "X":
            assert state["x"] == 2, state
            e("s_andn2_b32 s27, s7, 7"); e("s_add_u32 s27, s27, s3"); e("s_mul_i32 s27, s27, 768"); e(f"s_add_u32 s27, s27, {X_OFF}")
            inflight[kind].append((n, XR, x_loads(e)))
    def issue_next(n=1):
        for _ in range(n): issue(items.pop(0))

    def put_tag(E, r):
        for k in range(4): E(f"v_mov_b32_sdwa v{r+k}, s{TAG} dst_sel:BYTE_0 dst_unused:UNUSED_PRESERVE src0_sel:BYTE_{k}")
    def cmp_tag(E, r, t0, t1):
        E(f"v_perm_b32 v{t0}, v{r+1}, v{r}, s{SEL}"); E(f"v_perm_b32 v{t1}, v{r+3}, v{r+2}, s{SEL}")
        E(f"v_lshl_or_b32 v{t0}, v{t1}, 16, v{t0}"); E(f"v_cmp_ne_u32 vcc, s{TAG}, v{t0}")
    def dual_store(text, name):
        if not P["loc"]: return e.vm(f"{text} {SC1}")
        e(f"s_cbranch_scc0 L{name}_far")
        i = e.vm(text); e.label(f"L{name}_back")
        slow.label(f"L{name}_far"); slow(f"{text} {SC1}"); slow(f"s_branch L{name}_back")
        return i
    def tagcheck(name, cmp, loadfn, cond_consumer, wb=False):
        if "s" in abl: return
        cmp(e)
        e(f"s_cbranch_scc1 L{name}_slow"); e.label(f"L{name}_ok"); e("s_nop 0")
        slow.label(f"L{name}_slow")
        if cond_consumer:
            slow("s_cmp_eq_u32 s100, 0"); slow(f"s_cbranch_scc1 L{name}_ok")
        slow(f"s_mov_b32 s101, {SPIN}")
        slow.label(f"L{name}_loop")
        slow("s_nop 4")
        if wb and P["loc"]:
            slow("s_and_b32 s80, s101, 15"); slow("s_cmp_lg_u32 s80, 1"); slow(f"s_cbranch_scc1 L{name}_nowb")
            slow("buffer_wbl2 sc1"); slow("s_waitcnt vmcnt(0)")
            slow.label(f"L{name}_nowb")
        loadfn(slow); slow("s_waitcnt vmcnt(0)")
        cmp(slow)
        slow(f"s_cbranch_scc0 L{name}_ok")
        slow("s_sub_u32 s101, s101, 1"); slow(f"s_cbranch_scc0 L{name}_loop"); slow(f"s_branch L{name}_ok")

    def layernorm():
        stamp("setup")
        e("s_cmp_ge_u32 s3, 2"); e("s_cbranch_scc1 Lln")
        sv = e.vmdone
        e.wait_vm(x1)
        stamp("xland")
        t = Q
        src = [12, 13, 14, 15, 8]
        for k in range(5):
            e(f"v_lshlrev_b32 v{t+2*k}, 16, v{src[k]}"); e(f"v_and_b32 v{t+2*k+1}, s13, v{src[k]}")
        e(f"v_add_f32 v9, v{t}, v{t+1}")
        for k in range(2, 10): e(f"v_add_f32 v9, v9, v{t+k}")
        allred8(e, "v_add_f32", [9]); e(f"v_add_f32_dpp v9, v9, v9 row_mirror {DPPF}"); allred_rows(e, "v_add_f32", 9, 10)
        e(f"v_mul_f32 v9, {f32(1/640)}, v9")
        e("v_mov_b32 v12, 0")
        for k in range(10):
            e(f"v_sub_f32 v13, v{t+k}, v9"); e("v_fmac_f32 v12, v13, v13")
        allred8(e, "v_add_f32", [12]); e(f"v_add_f32_dpp v12, v12, v12 row_mirror {DPPF}"); allred_rows(e, "v_add_f32", 12, 10)
        e(f"v_mul_f32 v12, {f32(1/640)}, v12")
        e("v_cvt_pk_bf16_f32 v9, v9, v12")
        e("v_and_b32 v12, s13, v9"); e("v_lshlrev_b32 v9, 16, v9")
        e(f"v_add_f32 v12, {f32(1e-5)}, v12"); e("v_cvt_pk_bf16_f32 v12, v12, v12"); e("v_and_b32 v12, s13, v12")
        e("v_sqrt_f32 v12, v12"); e("v_cvt_pk_bf16_f32 v12, v12, v12"); e("v_and_b32 v12, s13, v12")
        e("v_rcp_f32 v13, v12")
        for k in range(10): e(f"v_sub_f32 v{t+k}, v{t+k}, v9")
        for k in range(5):
            a, b = t + 2 * k, t + 2 * k + 1
            e(f"v_cvt_pk_bf16_f32 v{b}, v{a}, v{b}"); e(f"v_lshlrev_b32 v{a}, 16, v{b}"); e(f"v_and_b32 v{b}, s13, v{b}")
            for r in (a, b):
                e(f"v_mul_f32 v14, v{r}, v13"); e(f"v_fma_f32 v15, -v14, v12, v{r}"); e(f"v_fma_f32 v{r}, v15, v13, v14")
            e(f"v_cvt_pk_bf16_f32 v{a}, v{a}, v{b}")
            e(f"ds_write_b32 v11, v{a} offset:{XN+4*k}")
        e.label("Lln"); e.vmdone = sv
        stamp("ln")
        e("v_lshrrev_b32 v9, 3, v0"); e("v_add_u32 v9, s11, v9"); e("v_lshlrev_b32 v9, 1, v9")
        e("s_waitcnt lgkmcnt(0)"); e("s_barrier")
        for i in range(5):
            for b in range(2): e(f"ds_read_u16 v{Q+2*i+b}, v9 offset:{XN+1280*b+128*i}")
        e(f"s_and_b32 s80, s{TAG}, 0x7f7f7f7f"); e("s_add_u32 s80, s80, 0x01010101"); e(f"s_and_b32 s{TAG}, s{TAG}, 0x80808080"); e(f"s_xor_b32 s{TAG}, s{TAG}, s80")
        issue_next(P["pk1"])
        stamp("bar0")

    def tile_dots(r, m0, m1):
        for b, m in enumerate((m0, m1)):
            e(f"v_lshlrev_b32 v{9+b}, 16, v{m}")
        for b, m in enumerate((m0, m1)):
            for dw in range(4):
                e(f"v_dot2c_f32_bf16 v{ACC+8*b+2*dw}, v{r+dw}, v{m}")
                e(f"v_dot2c_f32_bf16 v{ACC+8*b+2*dw+1}, v{r+dw}, v{9+b}")
    def tile_reduce(base):
        e("v_and_b32 v11, 7, v1"); e("v_lshlrev_b32 v11, 5, v11"); e("s_lshl_b32 s80, s3, 9"); e("v_add_u32 v11, s80, v11")
        e("v_bfe_u32 v9, v1, 5, 1"); e("v_lshl_add_u32 v11, v9, 8, v11"); e("v_bfe_u32 v9, v1, 3, 2"); e("v_lshl_add_u32 v11, v9, 3, v11")
        swapred(e, 32, [(ACC + x, ACC + 8 + x) for x in range(8)])
        swapred(e, 16, [(ACC + x, ACC + 4 + x) for x in range(4)])
        for x in range(2): e(f"v_add_f32_dpp v{ACC+4+x}, v{ACC+x}, v{ACC+x} row_ror:8 row_mask:0xf bank_mask:0x3")
        for x in range(2): e(f"v_add_f32_dpp v{ACC+4+x}, v{ACC+2+x}, v{ACC+2+x} row_ror:8 row_mask:0xf bank_mask:0xc")
        e(f"ds_write_b64 v11, v[{ACC+4}:{ACC+5}] offset:{base}")
    def tile_publish(base, sreg, tag, dual=False):
        e("v_and_b32 v10, 31, v1"); e("v_lshlrev_b32 v10, 4, v10"); e("v_bfe_u32 v9, v1, 5, 1"); e("v_lshl_add_u32 v9, v9, 11, v10")
        for w in range(4): e(f"ds_read_b128 v[{ACC+4*w}:{ACC+4*w+3}], v9 offset:{base+512*w}")
        e("s_waitcnt lgkmcnt(0)")
        for st in (8, 4):
            for k in range(st): e(f"v_add_f32 v{ACC+k}, v{ACC+k}, v{ACC+st+k}")
        for k in range(4): e(f"v_mov_b32 v{ACC+4+k}, v{ACC+k}")
        swapred(e, 32, [(ACC + k, ACC + 4 + k) for k in range(4)])
        if tag: put_tag(e, ACC)
        e("s_mov_b64 exec, 0xffffffff")
        t = f"buffer_store_dwordx4 v[{ACC}:{ACC+3}], v10, {S(SWS)}, {sreg} offen"
        if dual: e("s_cmp_lt_u32 s6, 6"); dual_store(t, "px")
        else: e.vm(f"{t} {SC1}")
        e("s_mov_b64 exec, -1"); e("s_nop 0")

    def w_phase():
        e("s_waitcnt lgkmcnt(0)")
        for i in range(5):
            e.wait_vm(wid[i]); tile_dots(SC + 4 * i, Q + 2 * i, Q + 2 * i + 1)
        stamp("wdots")
        tile_reduce(TP)
        e("s_lshl_b32 s81, s7, 9"); e(f"s_add_u32 s81, s81, {PX_OFF}"); e(f"s_cmp_eq_u32 s3, {P['pubw']}"); e(f"s_cselect_b32 s81, s81, {OOB}")
        e("s_waitcnt lgkmcnt(0)"); e("s_barrier")
        stamp("bar1")
        tile_publish(TP, "s81", True, True)
        stamp("qpub")

    def q_read(r):
        for j in range(3): e(f"ds_read_b128 v[{Q+4*j}:{Q+4*j+3}], v6 offset:{QB+384*r+128*j}")
        state["qreg"] = r; state["qwait"] = True
    def q_final():
        inflight["Q"].pop(0)
        assert e.landed(inflight["F"][0][2][-1])
        stamp("qland")
        def cmp(E):
            cmp_tag(E, Q, 9, 10); E("s_cmp_lg_u64 vcc, 0")
        tagcheck("q", cmp, q_loads, False, True)
        stamp("qok")
        for k in range(4): e(f"v_and_b32 v{Q+k}, s{MSK}, v{Q+k}")
        swapred(e, 32, [(Q, Q + 2), (Q + 1, Q + 3)])
        a, b = Q, Q + 1
        e(f"v_cvt_pk_bf16_f32 v{b}, v{a}, v{b}")
        e(f"s_cmp_lt_u32 s3, {3*NH}"); e("s_cbranch_scc1 Lqh")
        e(f"v_lshlrev_b32 v{a}, 16, v{b}"); e(f"v_and_b32 v{b}, s13, v{b}")
        e(f"v_lshlrev_b32 v9, 16, v{B1R}"); e(f"v_and_b32 v10, s13, v{B1R}")
        e(f"v_add_f32 v{a}, v{a}, v9"); e(f"v_add_f32 v{b}, v{b}, v10")
        e(f"v_cvt_pk_bf16_f32 v{b}, v{a}, v{b}"); e(f"v_lshlrev_b32 v{a}, 16, v{b}"); e(f"v_and_b32 v{b}, s13, v{b}")
        e(f"v_max_f32 v{a}, 0, v{a}"); e(f"v_max_f32 v{b}, 0, v{b}")
        e(f"v_mul_f32 v{a}, v{a}, v{a}"); e(f"v_mul_f32 v{b}, v{b}, v{b}")
        e(f"v_cvt_pk_bf16_f32 v{b}, v{a}, v{b}")
        e.label("Lqh")
        e("s_mul_i32 s80, s3, 43"); e("s_lshr_b32 s80, s80, 7"); e("s_mul_i32 s80, s80, 3"); e("s_add_u32 s80, s80, s3"); e("s_lshl_b32 s80, s80, 7")
        e("v_bfe_u32 v9, v1, 4, 1"); e("v_mul_u32_u24 v9, 384, v9"); e(f"v_add3_u32 v10, s80, v9, v{Q+7}")
        e("v_and_b32 v6, 7, v1"); e("v_lshlrev_b32 v6, 4, v6")
        e(f"s_cmp_gt_u32 s3, {3*NH}"); e("s_cbranch_scc1 Lqw")
        e(f"ds_write_b32 v10, v{b} offset:{QB}")
        e.label("Lqw")
        e("s_waitcnt lgkmcnt(0)"); e("s_barrier")
        q_read(0)
        state["q"] = True
        stamp("q")

    def post_ops(a, b):
        ops = []
        for m in ("quad_perm:[1,0,3,2]", "quad_perm:[2,3,0,1]", "row_half_mirror"):
            for r in (a, b): ops.append(f"v_add_f32_dpp v{r}, v{r}, v{r} {m} {DPPF}")
        ops += [f"v_cvt_pk_bf16_f32 v{b}, v{a}, v{b}", f"v_lshlrev_b32 v{a}, 16, v{b}", f"v_and_b32 v{b}, s13, v{b}",
                f"v_mul_f32 v{a}, s14, v{a}", f"v_mul_f32 v{b}, s14, v{b}",
                f"v_cvt_pk_bf16_f32 v{b}, v{a}, v{b}", f"v_lshlrev_b32 v{a}, 16, v{b}", f"v_and_b32 v{b}, s13, v{b}",
                f"v_max3_f32 v7, v7, v{a}, v{b}"]
        return ops
    def drain_pend(n):
        for _ in range(min(n, len(pend))):
            x = pend.pop(0)
            if callable(x): x()
            else: e(x)
        while pend and callable(pend[0]): pend.pop(0)()
    def stat_ops(r):
        L = []; A = L.append
        A(f"v_max_f32_dpp v7, v7, v7 row_ror:8 {DPPF}"); allred_rows(A, "v_max_f32", 7, 14)
        A("v_mul_f32 v3, s15, v7")
        ts = list(range(r * gpr, (r + 1) * gpr))
        for c in range(0, gpr, 4):
            tc = ts[c:c + 4]
            for t in tc: A(f"v_fma_f32 v{SC+t}, v{SC+t}, s15, -v3")
            for t in tc: A(f"v_exp_f32 v{SC+t}, v{SC+t}")
            for t in tc: A(f"v_add_f32 v8, v8, v{SC+t}" if t != ts[0] else f"v_mov_b32 v8, v{SC+t}")
            for t in tc: A(f"v_cvt_pk_bf16_f32 v{SC+t}, v{SC+t}, 0")
        A(f"v_add_f32_dpp v8, v8, v8 row_ror:8 {DPPF}"); allred_rows(A, "v_add_f32", 8, 14)
        A("v_lshlrev_b32 v14, 3, s3" .replace("v_lshlrev_b32 v14, 3, s3", "v_lshlrev_b32_e64 v14, 3, s3"))
        A(f"ds_write_b32 v14, v7 offset:{MX+64*r}"); A(f"ds_write_b32 v14, v8 offset:{MX+64*r+4}")
        A("v_mov_b32 v7, 0xff800000")
        def done():
            state["st"] = r + 1
            if r == NR - 1: state["needbar"] = True
        A(done)
        return L
    def k_part(ent):
        t, r, ids, j = ent
        a = SC + t
        assert t < 27 or state["f2"] >= 1
        assert state["qreg"] == t // gpr
        if state["qwait"]: e("s_waitcnt lgkmcnt(0)"); state["qwait"] = False
        if j == 0: e(f"v_mov_b32 v{a}, 0")
        for dw in range(4):
            e(f"v_dot2c_f32_bf16 v{a}, v{r+4*j+dw}, v{Q+4*j+dw}")
            if dw or j: drain_pend(1 if len(pend) < 20 else 3)
        ent[3] += 1
        if ent[3] == 3:
            free(r); state["kdone"] += 1
            if t % 2 == 1: pend.extend(post_ops(a - 1, a))
            if t % gpr == gpr - 1:
                pend.extend(stat_ops(t // gpr))
                if t < 31: q_read(t // gpr + 1)
    def phi(t): return 253 if t < 32 - W else SC + 16 + t - (32 - W)
    def v_part(ent):
        n, r, ids, k = ent
        t, j = vl[3 * n + k]
        plo = SC + t
        rg = t // gpr
        assert state["st"] > rg
        assert rg == 0 or (rg - 1, j) in Adone
        if j == 0: e(f"v_lshlrev_b32 v{phi(t)}, 16, v{plo}")
        for dw in range(4):
            e(f"v_dot2c_f32_bf16 v{ACC+8*j+2*dw}, v{r+4*k+dw}, v{plo}")
            e(f"v_dot2c_f32_bf16 v{ACC+8*j+2*dw+1}, v{r+4*k+dw}, v{phi(t)}")
        ent[3] += 1; vcnt[(rg, j)] = vcnt.get((rg, j), 0) + 1
        if ent[3] == 3:
            free(r); state["vdone"] += 1
        if vcnt[(rg, j)] == gpr and (rg, j) != (NR - 1, 2): step_A(rg, j)
    YB = [Q, SC]
    def step_A(r, j):
        assert state["ml"] == 2 and state["addr"]
        assert r < 2 or (r - 2, j) in Bdone
        assert state["m"] == 3
        a = ACC + 8 * j
        swapred_pk(e, 32, a, a + 4, 4); swapred_pk(e, 16, a, a + 2, 2)
        e(f"v_add_f32_dpp v{a+2}, v{a}, v{a} row_ror:8 row_mask:0xf bank_mask:0x3")
        e(f"v_add_f32_dpp v{a+2}, v{a+1}, v{a+1} row_ror:8 row_mask:0xf bank_mask:0xc")
        e(f"v_mul_f32 v9, s{SF[r]}, v{a+2}"); e(f"ds_write_b32 v10, v9 offset:{OP+8*OST*(r&1)+256*j}")
        if r < NR - 1:
            for x in range(0, 8, 2): e(f"v_mov_b64 v[{a+x}:{a+x+1}], 0")
        Adone.append((r, j)); Bq.append((r, j))
        if r == NR - 1 or j == 2: state["needbar"] = True
    def b_ready(r, j):
        return (r, j) in Abar and state["m"] == 3 and all((r >> 1, j, p_, 4) in LO for p_ in range(4)) and state["x"] == 4
    def step_B(r, j):
        assert not pend and b_ready(r, j)
        Bq.remove((r, j)); Bdone.add((r, j))
        e(f"ds_read_b32 v9, v11 offset:{OP+8*OST*(r&1)+256*j}")
        e("s_waitcnt lgkmcnt(0)")
        allred8(e, "v_add_f32", [9])
        e(f"v_mov_b32_dpp v14, v9 row_ror:8 {DPPF}"); e(f"v_cvt_pk_bf16_f32 v9, v9, v14")
        for p_ in range(4): e(f"v_readlane_b32 s{16+p_}, v9, {16*p_}")
        Y = YB[r & 1]; hs = r >> 1
        for p_ in range(4):
            for dw in range(5):
                pend.append(f"v_dot2c_f32_bf16 v{Y+2*dw}, s{16+p_}, v{LO[(hs,j,p_,dw)]}")
                pend.append(f"v_dot2c_f32_bf16 v{Y+2*dw+1}, s{16+p_}, v{HI[(hs,j,p_,dw)]}")
            pend.append(lambda p_=p_: Bfin.add((r, j, p_)))
    def y_write(b):
        Y = YB[b]
        e(f"ds_write_b128 v12, v[{Y}:{Y+3}] offset:{YP+2560*b}"); e(f"ds_write_b128 v12, v[{Y+4}:{Y+7}] offset:{YP+2560*b+16}")
        e(f"ds_write_b64 v6, v[{Y+8}:{Y+9}] offset:{YP+2560*b+2048}")
    def pka(a, b):
        for k in (0, 2): e(f"v_pk_add_f32 v[{a+k}:{a+k+1}], v[{a+k}:{a+k+1}], v[{b+k}:{b+k+1}]")
    def x_publish():
        assert state["g"] and state["vdone"] >= 16
        e("s_mul_i32 s81, s7, 768"); e(f"s_add_u32 s81, s81, {X_OFF}"); e(f"s_cmp_eq_u32 s3, {P['xw']}"); e(f"s_cselect_b32 s81, s81, {OOB}")
        e("s_mov_b32 exec_hi, 0xffff"); e("s_cbranch_scc0 Lxp")
        for w in range(7): e(f"ds_read_b128 v[{Q+4*w}:{Q+4*w+3}], v4 offset:{OP+OST*w}")
        e("s_waitcnt lgkmcnt(5)"); pka(Q, Q + 4)
        e(f"ds_read_b128 v[{Q+4}:{Q+7}], v4 offset:{OP+OST*7}")
        for w in range(2, 7): e(f"s_waitcnt lgkmcnt({7-w})"); pka(Q, Q + 4 * w)
        e("s_waitcnt lgkmcnt(0)"); pka(Q, Q + 4)
        put_tag(e, Q)
        e("s_nop 0"); e.label("Lxp")
        assert P["xw"] == P["mw"]
        e("s_cmp_eq_u32 s32, 1"); dual_store(f"buffer_store_dwordx4 v[{Q}:{Q+3}], v4, {S(SWS)}, s81 offen", "xs")
        e("s_mov_b32 exec_hi, -1")
        state["x"] = 1
        stamp("xpub")
    def x_step():
        inflight["X"].pop(0)
        def cmp(E):
            cmp_tag(E, XR, 9, 14); E("s_nop 0"); E("s_and_b32 vcc_hi, vcc_hi, 0xffff"); E("s_cmp_lg_u64 vcc, 0")
        stamp("xland")
        tagcheck("x", cmp, x_loads, False)
        for k in range(4): e(f"v_and_b32 v{XR+k}, s{MSK}, v{XR+k}")
        e(f"s_mul_i32 s80, s3, {OST}"); e("v_add_u32 v9, s80, v4")
        e("s_mov_b32 exec_hi, 0xffff"); e(f"ds_write_b128 v9, v[{XR}:{XR+3}] offset:{OP}"); e("s_mov_b32 exec_hi, -1")
        for r in range(Q, Q + 10, 2): e(f"v_mov_b64 v[{r}:{r+1}], 0")
        e("s_waitcnt lgkmcnt(0)")
        for r in range(SC, SC + 10, 2): e(f"v_mov_b64 v[{r}:{r+1}], 0")
        state["x"] = 3; state["needbar"] = True
        stamp("xstep")
    def y0_final():
        t = [Q, Q + 4, Q + 8, SC + 12]
        e("s_andn2_b32 s81, s7, 7"); e("s_mul_i32 s81, s81, 5120"); e("s_mul_i32 s80, s6, 320"); e("s_add_u32 s81, s81, s80"); e(f"s_add_u32 s81, s81, {Y_OFF}")
        e(f"s_cmp_eq_u32 s3, {P['yw']}"); e(f"s_cselect_b32 s26, s81, {OOB}"); e("s_cbranch_scc0 Ly0")
        e("v_lshrrev_b32 v9, 5, v1"); e(f"v_mul_u32_u24 v9, {4*5120-512}, v9"); e("v_add3_u32 v9, v9, s80, v4")
        for k in range(4): e(f"ds_read_b128 v[{t[k]}:{t[k]+3}], v9 offset:{YP+5120*k}")
        for k in range(1, 4): e(f"s_waitcnt lgkmcnt({3-k})"); pka(Q, t[k])
        for k in (0, 2): e(f"v_mov_b64 v[{Q+4+k}:{Q+5+k}], v[{Q+k}:{Q+k+1}]")
        swapred_pk(e, 32, Q, Q + 4, 4)
        put_tag(e, Q)
        e("s_nop 0"); e.label("Ly0")
        state["y0"] = 3
        if not P["y0late"]: y0_store()
    def y0_store():
        e("s_mov_b64 exec, 0xfffff")
        e.vm(f"buffer_store_dwordx4 v[{Q}:{Q+3}], v4, {S(SWS)}, s26 offen {SC1}")
        e("s_mov_b64 exec, -1")
        stamp("y0st")
    def shadow():
        if pend: drain_pend(P["bdrain"]); return True
        if state["x"] == 0 and (0, 2) in Abar: x_publish(); return True
        if state["y0"] == 0 and all((0, j, 3) in Bfin for j in range(3)):
            y_write(0); state["y0"] = 1; state["needbar"] = True; return True
        if state["y0"] == 2: y0_final(); return True
        for rj in Bq:
            if b_ready(*rj): step_B(*rj); return True
        return False
    def tail_addr():
        e("v_and_b32 v10, 7, v1"); e(f"v_mul_u32_u24 v11, {OST}, v10"); e("v_lshlrev_b32 v10, 5, v10")
        e("v_bfe_u32 v9, v1, 5, 1"); e("v_lshl_add_u32 v10, v9, 4, v10")
        e("v_bfe_u32 v9, v1, 3, 2"); e("v_lshl_add_u32 v10, v9, 2, v10")
        e(f"s_mul_i32 s80, s3, {OST}"); e("v_add_u32 v10, s80, v10")
        e("v_lshrrev_b32 v9, 3, v1"); e("v_lshl_add_u32 v11, v9, 2, v11")
        e("s_lshl_b32 s80, s3, 5"); e("v_add_u32 v11, s80, v11")
        e("v_and_b32 v12, 15, v1"); e("v_lshlrev_b32 v8, 5, v12"); e("v_lshlrev_b32 v3, 1, v12")
        e("s_mul_i32 s80, s3, 5120"); e("v_lshl_add_u32 v12, v1, 5, s80"); e("v_lshl_add_u32 v6, v1, 3, s80")
        e("s_mul_i32 s80, s3, 320"); e("v_lshl_add_u32 v13, v1, 4, s80")
        e("s_mul_i32 s11, s7, 5120"); e(f"s_add_u32 s11, s11, {Y_OFF}")
        e(f"s_mul_i32 s22, s42, 2560"); e("s_add_u32 s22, s22, s43"); e(f"s_add_u32 s22, s22, {Y_OFF}")
        e(f"s_add_u32 s5, s22, {128*5120}")
        e("s_cmp_eq_u32 s42, 1"); e(f"s_cselect_b32 s5, s5, {OOB}"); e("s_cselect_b64 s[30:31], -1, 0"); e("s_cselect_b32 s80, 0, s3")
        e("s_cmp_lt_u32 s80, 2"); e(f"s_cselect_b32 s22, s22, {OOB}"); e("s_cselect_b64 s[24:25], -1, 0")
        e("s_mul_i32 s23, s42, 1280"); e("s_lshr_b32 s80, s43, 1"); e("s_add_u32 s23, s23, s80")
        state["addr"] = True

    def f2a():
        inflight["F"].pop(0)
        e("v_lshrrev_b32 v9, 3, v1"); e("s_lshl_b32 s80, s3, 4"); e("v_lshl_add_u32 v9, v9, 1, s80")
        e(f"ds_read_u16 v12, v9 offset:{HB}"); e(f"ds_read_u16 v13, v9 offset:{HB+384}")
        for r in range(ACC, ACC + 16): e(f"v_mov_b32 v{r}, 0")
        e("s_waitcnt lgkmcnt(0)")
        tile_dots(W2R, 12, 13)
        tile_reduce(FP)
        e("s_waitcnt lgkmcnt(0)")
        state["f2"] = 1
        if not P["bar"]:
            e("s_barrier"); state["f2"] = 2
    def f2b():
        e(f"s_cmp_eq_u32 s3, {P['pubw']}"); e(f"s_cselect_b32 s81, s26, {OOB}")
        tile_publish(FP, "s81", True)
        for r in range(ACC + 23, ACC - 1, -1): e(f"v_mov_b32 v{r}, 0")
        e("v_and_b32 v15, 3, v1"); e("v_lshlrev_b32 v15, 7, v15"); e("v_bfe_u32 v9, v1, 5, 1"); e("v_lshl_add_u32 v15, v9, 6, v15")
        e("v_bfe_u32 v9, v1, 4, 1"); e("v_lshl_add_u32 v15, v9, 5, v15"); e("s_lshl_b32 s80, s3, 2"); e("v_add_u32 v15, s80, v15")
        state["f2"] = 3

    def transition():
        assert state["f2"] == 3
        while state["st"] < 1: drain_pend(1)
        state["p"] = True
        stamp("trans")

    def ml_publish():
        e("v_and_b32 v9, 31, v1"); e("v_lshlrev_b32 v9, 3, v9")
        e(f"ds_read_b64 v[12:13], v9 offset:{MX}")
        e("s_getreg_b32 s33, hwreg(HW_REG_XCC_ID, 0, 4)"); e(f"s_xor_b32 s33, s33, s{TAG}")
        e("s_lshl_b32 s81, s7, 7"); e(f"s_add_u32 s81, s81, {ML_OFF}"); e(f"s_cmp_eq_u32 s3, {P['pubw']}"); e(f"s_cselect_b32 s80, s81, {OOB}")
        e("v_lshrrev_b32 v9, 2, v9")
        for r in range(NR): e(f"s_add_u32 s{SF[r]}, s3, {8*r}")
        e("s_waitcnt lgkmcnt(0)")
        e("v_mov_b32 v10, v12"); allred8(e, "v_max_f32", [10])
        e("v_sub_f32 v12, v12, v10"); e("v_mul_f32 v12, s15, v12"); e("v_exp_f32 v11, v12"); e("v_mul_f32 v12, v11, v13")
        for r in range(NR): e(f"v_readlane_b32 s{SF[r]}, v11, s{SF[r]}")
        allred8(e, "v_add_f32", [12])
        e(f"v_mov_b32 v11, s{TAG}"); e(f"v_mov_b32 v13, s33")
        e(f"s_mov_b64 exec, {0x01010101 if NR == 4 else 0x0101}")
        e.vm(f"buffer_store_dwordx4 v[10:13], v9, {S(SWS)}, s80 offen {'' if P['loc'] else SC1}")
        e("s_mov_b64 exec, -1"); e("s_nop 0")
        state["ml"] = 2
        stamp("mlpub")

    def m_step():
        inflight["M"].pop(0)
        e(f"s_cmp_lg_u32 s3, {P['mw']}"); e("s_cbranch_scc1 Lm_skip")
        def cmp(E):
            E(f"v_xor_b32 v9, s{TAG}, v{MR+3}"); E(f"v_cmp_ne_u32 vcc, s{TAG}, v{MR+1}"); E(f"v_cmp_lt_u32 s[80:81], 15, v9"); E("s_or_b64 vcc, vcc, s[80:81]")
        tagcheck("m", cmp, m_loads, False, True)
        if P["loc"]:
            e(f"v_cmp_ne_u32 vcc, s33, v{MR+3}"); e("s_cmp_eq_u64 vcc, 0"); e(f"s_cselect_b32 s32, {0 if 'f' in abl else 1}, 0"); e("s_cbranch_scc0 Lm_far"); e.label("Lm_back")
            slow.label("Lm_far"); slow("buffer_wbl2 sc1"); slow("s_waitcnt vmcnt(0)"); slow("s_branch Lm_back")
        m, l, t0, t1 = MR, MR + 2, MR + 1, MR + 3
        steps = ["quad_perm:[1,0,3,2]", "quad_perm:[2,3,0,1]", "row_half_mirror"] + (["row_mirror"] if G == 16 else [])
        for i, md in enumerate(steps): e(f"v_max_f32_dpp v{t0}, v{t0 if i else m}, v{t0 if i else m} {md} {DPPF}")
        e(f"v_sub_f32 v{t0}, v{m}, v{t0}"); e(f"v_mul_f32 v{t0}, s15, v{t0}"); e(f"v_exp_f32 v{t0}, v{t0}")
        e(f"v_mul_f32 v{t1}, v{t0}, v{l}")
        for md in steps: e(f"v_add_f32_dpp v{t1}, v{t1}, v{t1} {md} {DPPF}")
        e(f"v_rcp_f32 v{t1}, v{t1}"); e(f"v_mul_f32 v{t0}, v{t0}, v{t1}")
        e(f"v_lshlrev_b32 v{t1}, 2, v1")
        e(f"ds_write_b32 v{t1}, v{t0} offset:{FP}")
        e.label("Lm_skip")
        state["m"] = 1; state["needbar"] = True
        stamp("mstep")
    def c_get():
        e("v_and_b32 v9, 3, v1"); e("v_lshlrev_b32 v9, 6, v9"); e("s_lshl_b32 s80, s6, 2"); e("v_add_u32 v9, s80, v9")
        e(f"ds_read_b32 v9, v9 offset:{FP}"); e("s_waitcnt lgkmcnt(0)")
        e(f"v_mul_f32 v14, s{SF[0]}, v9"); e(f"v_mul_f32 v9, s{SF[1]}, v9")
        e(f"v_readlane_b32 s{SF[0]}, v14, 0"); e(f"v_readlane_b32 s{SF[1]}, v9, 1")
        state["m"] = 3

    def col_reduce(a, base):
        swapred(e, 32, [(a, a + 2), (a + 1, a + 3)])
        swapred(e, 16, [(a, a + 1)])
        e(f"v_add_f32_dpp v{a}, v{a}, v{a} row_ror:8 {DPPF}"); e(f"v_add_f32_dpp v{a}, v{a}, v{a} row_ror:4 {DPPF}")
        e(f"ds_write_b32 v15, v{a} offset:{base}")
    def g_step():
        inflight["G"].pop(0)
        def cmp(E):
            cmp_tag(E, GR, 9, 14); E("s_and_b64 vcc, vcc, 0xfff")
        tagcheck("g", cmp, g_loads, True)
        for k in range(4): e(f"v_and_b32 v{GR+k}, s{MSK}, v{GR+k}")
        col_reduce(GR, GP)
        if P["fb"]: e(f"v_lshl_or_b32 v{B2V}, v{XV}, 16, v{B2V}")
        state["g"] = True

    def operm(n, r):
        hs, n_ = divmod(n, 12)
        j_, p_ = n_ // 4, n_ % 4
        f = 252
        for dw in range(5):
            a, b = (r + dw, r + 4 + dw) if dw < 4 else (r + 8, r + 9)
            e(f"v_perm_b32 v{f}, v{b}, v{a}, s20"); e(f"v_perm_b32 v{b}, v{b}, v{a}, s21")
            LO[(hs, j_, p_, dw)] = f; HI[(hs, j_, p_, dw)] = b
            f = a
        e(f"v_mov_b32 v{f}, v252"); LO[(hs, j_, p_, 0)] = f

    def run_ready():
        if fbq and e.landed(fbq[0]): fb_step()
        if inflight["Q"] and e.landed(inflight["Q"][0][2][-1]): q_final()
        np_ = 0
        while state["q"] and inflight["K"] and np_ < P["maxparts"]:
            ent = inflight["K"][0]
            if ent[3] >= len(ent[2]) or not e.landed(ent[2][ent[3]]): break
            k_part(ent); np_ += 1
            if ent[3] == 3: inflight["K"].pop(0)
        if state["q"] and state["f2"] == 0 and state["kdone"] >= P["f2_at"]: f2a()
        elif state["f2"] == 2: f2b()
        while inflight["O"] and e.landed(inflight["O"][0][2][-1]):
            n, r, ids = inflight["O"].pop(0); operm(n, r)
        if state["kdone"] == 32 and not state["p"]: transition()
        while state["p"] and inflight["V"]:
            ent = inflight["V"][0]
            if ent[3] >= len(ent[2]) or not e.landed(ent[2][ent[3]]): break
            v_part(ent)
            if ent[3] == 3: inflight["V"].pop(0)
        if state["p"]:
            if state["ml"] == 1: ml_publish()
            elif state["ml"] == 2 and not state["addr"]: tail_addr()
            elif state["m"] == 2: c_get()
            else: shadow()
        if inflight["M"] and e.landed(inflight["M"][0][2][-1]): m_step()
        if inflight["G"] and e.landed(inflight["G"][0][2][-1]): g_step()
        if inflight["X"] and e.landed(inflight["X"][0][2][-1]): x_step()

    late_setup()
    def tlbpf():
        e("v_lshlrev_b32 v253, 12, v1"); e.vm(f"buffer_load_dword v252, v253, {S(SWO)}, 0 offen")
        if P["tlb"] & 4: e.vm(f"buffer_load_dword v252, v253, {S(SW2)}, 0 offen")
    if P["tlb"] & 1: tlbpf()
    issue_next(P["pk0"])
    layernorm(); w_phase()
    pacing[0] = True
    items.insert(0, ("F", 0))
    items.insert(1 + P["qdelay"], ("Q", 0))
    while items:
        it = items.pop(0)
        if P["tlb"] & 2 and it == ("K", P["tlb_at"]): tlbpf()
        issue(it)
        run_ready()
        if it[0] in "KV" and P["bar"] and state["q"]:
            pos = it[1] + (32 if it[0] == "V" else 0)
            if (pos % P["bar"] == P["bar"] - 1 and pos < P["barend"]) or state["needbar"]:
                if state["needbar"]:
                    e("s_waitcnt lgkmcnt(0)"); Abar.update(Adone); state["needbar"] = False
                    if state["m"] == 1: state["m"] = 2
                    if state["x"] == 3: state["x"] = 4; print("x bar at", pos, file=sys.stderr)
                    if state["y0"] == 1: state["y0"] = 2; print("y0 bar at", pos, file=sys.stderr)
                    if state["st"] == NR and state["ml"] == 0: state["ml"] = 1
                e("s_barrier")
                if state["f2"] == 1: state["f2"] = 2
                if state["x"] == 1: state["x"] = 2; print("xpub bar at", pos, file=sys.stderr)
            if NH == 2:
                for k in range(P["o2n"]):
                    n_ = state["o2"] - 12
                    if n_ < 12 and all((r, n_ // 4, n_ % 4) in Bfin for r in (0, 1)):
                        items.insert(k, ("O", state["o2"])); state["o2"] += 1
    assert state["g"] and state["m"] == 3 and state["addr"]
    e(f"s_mov_b32 s101, {SPIN}")
    assert not inflight["K"] and state["p"] and not inflight["O"]
    assert (NR - 1, 1) in Abar, state
    if P["y0late"] == 1: assert state["y0"] == 3; y0_store()
    while inflight["V"]:
        v = inflight["V"][0]
        last = len(inflight["V"]) == 1 and v[3] == 2
        shadow()
        if last:
            nb = len(e.L)
            while shadow(): pass
            print("leftover shadow lines before last V:", len(e.L) - nb, file=sys.stderr)
        e.wait_vm(v[2][v[3]]); v_part(v)
        if v[3] == 3: inflight["V"].pop(0)
    assert state["y0"] == 3 and not Bq and not pend
    stamp("vdone")
    step_A(NR - 1, 2); Abar.update(Adone)
    e("s_waitcnt lgkmcnt(0)"); e("s_barrier")
    stamp("tb1")
    step_B(NR - 1, 2); drain_pend(99)
    stamp("tdots")
    y_write(1)
    e("s_mov_b64 exec, 0xfffff")
    e("s_waitcnt lgkmcnt(0)"); e("s_barrier")
    stamp("tb2")
    for w in range(8): e(f"ds_read_b128 v[{BUF0+4*w}:{BUF0+4*w+3}], v13 offset:{YP+5120*w+2560}")
    for w in range(1, 8):
        e(f"s_waitcnt lgkmcnt({7-w})")
        for k in (0, 2): e(f"v_pk_add_f32 v[{BUF0+k}:{BUF0+k+1}], v[{BUF0+k}:{BUF0+k+1}], v[{BUF0+4*w+k}:{BUF0+4*w+k+1}]")
    put_tag(e, BUF0)
    e.vm(f"buffer_store_dwordx4 v[{BUF0}:{BUF0+3}], v13, {S(SWS)}, s11 offen offset:2560 {SC1}")
    e("s_mov_b64 exec, -1")
    if P["y0late"] == 2: y0_store()
    stamp("ystore")
    if stamps and "yack" in smap:
        e("s_waitcnt vmcnt(0)"); stamp("yack")
    e("s_cmp_eq_u32 s100, 0"); e("s_cbranch_scc1 LA_fin")
    B = BUF0 + 32
    def pload():
        e(f"buffer_load_dwordx4 v[{B}:{B+3}], v0, {S(SWS)}, s22 offen {SC1}")
        e(f"buffer_load_dwordx4 v[{B+4}:{B+7}], v0, {S(SWS)}, s5 offen {SC1}")
    def pk(op, a, b, c): e(f"v_pk_{op}_f32 v[{a}:{a+1}], v[{b}:{b+1}], v[{c}:{c+1}]")
    def sum8(r):
        pk("add", r, r, r + 4); pk("add", r + 2, r + 2, r + 6); pk("add", r, r, r + 2); e(f"v_add_f32 v{r}, v{r}, v{r+1}")
    pload()
    g = ACC
    e(f"ds_read_b128 v[{g}:{g+3}], v8 offset:{GP}"); e(f"ds_read_b128 v[{g+4}:{g+7}], v8 offset:{GP+16}")
    assert not fbq
    if P["fb"]: e(f"v_and_b32 v{XV}, s13, v{B2V}"); e(f"v_lshlrev_b32 v{B2V}, 16, v{B2V}")
    else: e(f"v_lshlrev_b32 v{B2V}, 16, v{B2V}"); e(f"v_lshlrev_b32 v{XV}, 16, v{XV}")
    e("s_waitcnt lgkmcnt(0)")
    sum8(g)
    bf16r(e, g); e(f"v_add_f32 v{g}, v{g}, v{B2V}"); bf16r(e, g)
    e(f"v_mul_f32 v9, s15, v{g}"); e("v_exp_f32 v9, -v9"); e("v_add_f32 v9, 1.0, v9"); e("v_rcp_f32 v9, v9")
    e(f"v_mul_f32 v{g}, v{g}, v9"); bf16r(e, g)
    e.label("Lpoll")
    e("s_waitcnt vmcnt(1)")
    cmp_tag(e, B, 9, 10); e("s_and_b64 s[80:81], vcc, s[24:25]")
    e("s_waitcnt vmcnt(0)")
    cmp_tag(e, B + 4, 9, 10); e("s_and_b64 vcc, vcc, s[30:31]")
    e("s_or_b64 exec, vcc, s[80:81]"); e("s_cbranch_scc0 Lpoll_done")
    e("s_sub_u32 s101, s101, 1"); e("s_cbranch_scc1 Lpoll_done")
    for _ in range(P["ysl"] // 16): e("s_nop 15")
    if P["sepm"]:
        e("s_and_b64 exec, vcc, vcc"); e("s_cbranch_scc0 Lpoll_a")
        e(f"buffer_load_dwordx4 v[{B+4}:{B+7}], v0, {S(SWS)}, s5 offen {SC1}")
        e.label("Lpoll_a")
        e("s_and_b64 exec, s[80:81], s[80:81]"); e("s_cbranch_scc0 Lpoll_b")
        e(f"buffer_load_dwordx4 v[{B}:{B+3}], v0, {S(SWS)}, s22 offen {SC1}")
        e.label("Lpoll_b")
        e("s_mov_b64 exec, -1"); e("s_waitcnt vmcnt(0)")
    else: pload()
    e("s_branch Lpoll")
    e.label("Lpoll_done")
    e("s_mov_b64 exec, -1")
    stamp("pdone")
    for k in range(8): e(f"v_and_b32 v{B+k}, s{MSK}, v{B+k}")
    pk("add", B, B, B + 4); pk("add", B + 2, B + 2, B + 6)
    swapred_pk(e, 32, B, B + 2, 2)
    swapred(e, 16, [(B, B + 1)])
    e(f"v_add_f32_dpp v{B}, v{B}, v{B} row_ror:8 {DPPF}"); e(f"v_add_f32_dpp v{B}, v{B}, v{B} row_ror:4 {DPPF}")
    e(f"ds_write_b32 v15, v{B} offset:{SP}")
    e("s_cmp_lg_u32 s3, 0")
    e("s_waitcnt lgkmcnt(0)"); e("s_barrier")
    stamp("cbar")
    e("s_cbranch_scc1 LA_fin")
    e(f"ds_read_b128 v[{B}:{B+3}], v8 offset:{SP}"); e(f"ds_read_b128 v[{B+4}:{B+7}], v8 offset:{SP+16}")
    e("s_waitcnt lgkmcnt(0)")
    sum8(B)
    bf16r(e, B); e(f"v_mul_f32 v{B}, v{B}, v{g}"); bf16r(e, B); e(f"v_add_f32 v{B}, v{B}, v{XV}")
    e(f"v_cvt_pk_bf16_f32 v{B}, v{B}, v{B}")
    e("s_mov_b64 exec, 0xffff")
    e(f"buffer_store_short v{B}, v3, {S(SOUT)}, s23 offen {P['polout']}")
    stamp("ostore")
    e("s_cmp_lg_u32 s2, 0"); e("s_cbranch_scc1 LA_fin")
    e(f"v_mov_b32 v9, s{TAG}"); e("s_mov_b64 exec, 1")
    e(f"buffer_store_dword v9, off, {S(SWS)}, 0 offset:{EP_OFF} {SC1}")
    e.label("LA_fin")
    if P["fixend"]:
        e("s_cmp_lg_u32 s2, 0"); e("s_cbranch_scc1 LA_done"); e("s_cmp_lg_u32 s3, 0"); e("s_cbranch_scc1 LA_done")
        e("s_waitcnt vmcnt(0)"); e("s_memrealtime s[86:87]"); e("s_waitcnt lgkmcnt(0)"); e("s_sub_u32 s86, s86, s84")
        e("s_mov_b32 s40, s38"); e("s_mov_b32 s41, s39"); e("s_mov_b32 s42, 256"); e("s_mov_b32 s43, 0x20000")
        e("s_mov_b64 exec, 1"); e("v_mov_b32 v9, s86"); e("buffer_store_dword v9, off, s[40:43], 0")
        e.label("Lfix"); e("s_memrealtime s[86:87]"); e("s_waitcnt lgkmcnt(0)"); e("s_sub_u32 s86, s86, s84")
        e(f"s_cmp_lt_u32 s86, {P['fixend']}"); e("s_cbranch_scc1 Lfix")
    if stamps:
        e(f"s_cmp_lg_u32 s3, {P['sw']}"); e("s_cbranch_scc1 LA_done")
        e("s_mov_b64 exec, 1")
        e("s_waitcnt vmcnt(0)")
        stamp("end")
        e("s_add_u32 s40, s40, 0x10000000"); e("s_addc_u32 s41, s41, 0"); e("s_mov_b32 s42, 0x100000"); e("s_mov_b32 s43, 0x20000")
        e("s_getreg_b32 s85, hwreg(HW_REG_XCC_ID)")
        if "polls" in smap:
            k = 84 + 2 * int(smap["polls"])
            e(f"s_sub_u32 s{k}, {SPIN}, s101"); e(f"s_mul_i32 s{k}, s{k}, 100"); e(f"s_add_u32 s{k}, s{k}, s84")
        for k in range(16): e(f"v_mov_b32 v{16+k}, s{84+k}")
        e("s_lshl_b32 s80, s2, 6"); e("v_mov_b32 v1, s80")
        for k in range(4): e(f"buffer_store_dwordx4 v[{16+4*k}:{19+4*k}], v1, s[40:43], 0 offen offset:{16*k}")
    e.label("LA_done")
    e("s_endpgm")
    return e.text() + slow.text() + "    s_endpgm\n"

def desc(name, vgpr, sgpr):
    return f""".amdhsa_kernel {name}
  .amdhsa_next_free_vgpr {vgpr}
  .amdhsa_next_free_sgpr {sgpr}
  .amdhsa_accum_offset {vgpr}
  .amdhsa_group_segment_fixed_size 0
  .amdhsa_kernarg_size 104
  .amdhsa_user_sgpr_count 2
  .amdhsa_user_sgpr_kernarg_segment_ptr 1
  .amdhsa_system_sgpr_workgroup_id_x 1
  .amdhsa_float_denorm_mode_32 3
.end_amdhsa_kernel
"""

DEF = dict(abl="", sm="q:1,trans:2,vdone:3,qpub:4,ystore:5,polls:6,end:7", sw=0, bar=2, barend=62,
           pf=-1, polp='', rotS=3, rotM=85, mw=1, g_at=10, x_at=21, xw=1, yw=3, loc=1, ysl=0, sepm=0, tlb=0, tlb_at=14, y0late=1, o2n=2, DP=4, DK=3, DV=3, DE=3, de_at=999, W=3, bdrain=20, polout='', wo_start=18, wo_every=2, polw="nt", polo="", sc="sc1", maxparts=6,
           pk0=0, pk1=2, qdelay=3, f2_at=12, m_at=6, pubw=0, fixend=0, fb=0, fbs=6, fbe=60, fbr=2, fbT=10, fbU=10, fb0=1, fbA=7, fbG=3)

def build(**kw):
    P = dict(DEF); P.update(kw)
    a = kernel(P)
    s = HEADER
    s += f"; @launch grid=(256,1,1) block=(512,1,1) lds={LDS_A}\n"
    s += '.amdgcn_target "amdgcn-amd-amdhsa--gfx950"\n.text\n'
    s += f".globl {KN}_kernel\n.p2align 8\n.type {KN}_kernel,@function\n{KN}_kernel:\n" + a
    s += '.section .rodata,"a"\n.p2align 6\n' + desc(KN + "_kernel", 256, 102)
    return s

if __name__ == "__main__":
    out = sys.argv[1]
    kw = {}
    for a in sys.argv[2:]:
        k, v = a.split("=", 1)
        kw[k] = int(v) if v.lstrip("-").isdigit() else v.replace("+", " ")
    open(out, "w").write(build(**kw))
```
